```python
import torch

def _softmax(x, axis=-1):
    return torch.softmax(x, dim=axis)
def _gelu(x):
    return torch.nn.functional.gelu(x, approximate="tanh")
def _silu(x):
    return torch.nn.functional.silu(x)
def _sigmoid(x):
    return torch.sigmoid(x)
def _layernorm(x, axis=-1, eps=1e-5):
    m = x.mean(dim=axis, keepdim=True)
    v = x.var(dim=axis, keepdim=True, unbiased=False)
    return (x - m) / torch.sqrt(v + eps)
def _scatter_add(tgt, idx, src, axis=0):
    return tgt.clone().index_add_(axis, idx, src)
def _segment_sum(src, seg, n):
    out = torch.zeros((n,) + src.shape[1:], dtype=src.dtype)
    return out.index_add_(0, seg, src)
def _pad(x, pw):
    flat = tuple(v for pair in reversed(pw) for v in pair)
    return torch.nn.functional.pad(x, flat)

kernel_name = 'gather_scatter__hybrid_graph_tf_graphgps__graph'

def setup_inputs():

    _w = (lambda a: (lambda t: t.to(torch.bfloat16) if t.is_floating_point() else t)(torch.as_tensor(a)))
    N, deg, D = 10000, 16, 128
    E = N * deg
    src = (lambda lo, hi, *s: torch.randint(lo, hi, s))(0, N, E).to(torch.int64)
    dst = (lambda lo, hi, *s: torch.randint(lo, hi, s))(0, N, E).to(torch.int64)
    deg_cnt = torch.bincount(dst, minlength=N).to(float) + 1.0
    sc = 1.0 / float(D) ** 0.5
    return {
        "x": _w((lambda *s: torch.randn(*s, dtype=torch.bfloat16) * 0.05)(N, D)),
        "src": _w(src),
        "dst": _w(dst),
        "deg_inv": _w((1.0 / deg_cnt).to(float)),
        "w_msg": _w((lambda *s: torch.randn(*s, dtype=torch.bfloat16) * 0.2)(D, D) * sc),
        "wq": _w((lambda *s: torch.randn(*s, dtype=torch.bfloat16) * 1.6)(D, D) * sc),
        "wk": _w((lambda *s: torch.randn(*s, dtype=torch.bfloat16) * 1.6)(D, D) * sc),
        "wv": _w((lambda *s: torch.randn(*s, dtype=torch.bfloat16) * 0.2)(D, D) * sc),
        "w_out": _w((lambda *s: torch.randn(*s, dtype=torch.bfloat16) * 0.2)(D, D) * sc),
    }

def reference(x, src, dst, deg_inv, w_msg, wq, wk, wv, w_out):
    N, D = x.shape[0], x.shape[1]
    h = _layernorm(x, axis=-1)
    m_e = torch.einsum('nd,de->ne', h, w_msg)
    h_local = _segment_sum(m_e[src], dst, N) * deg_inv[:, None]
    q = torch.einsum('nd,de->ne', h, wq)
    k = torch.einsum('nd,de->ne', h, wk)
    v = torch.einsum('nd,de->ne', h, wv)
    logits = torch.einsum('id,jd->ij', q, k) / (float(D) ** 0.5)
    attn = _softmax(logits, axis=-1)
    h_global = torch.einsum('ij,jd->id', attn, v)
    y = torch.einsum('nd,de->ne', h_local + h_global, w_out)
    return x + y
```

```python
class Asm:
    def __init__(self):
        self.lines = []
    def __call__(self, s):
        for l in s.strip("\n").split("\n"):
            self.lines.append(l if l.strip().endswith(":") and not l.startswith(" ") else "    " + l.strip())
    def label(self, name):
        self.lines.append(name + ":")
    def raw(self, s):
        self.lines.append(s)
    def text(self):
        return "\n".join(self.lines) + "\n"

def vr(b, n=1):
    return f"v{b}" if n == 1 else f"v[{b}:{b+n-1}]"
def ar(b, n=1):
    return f"a{b}" if n == 1 else f"a[{b}:{b+n-1}]"
def sr(b, n=1):
    return f"s{b}" if n == 1 else f"s[{b}:{b+n-1}]"

def kernel_begin(a, name):
    a.raw(".text")
    a.raw(f".globl {name}")
    a.raw(".p2align 8")
    a.raw(f".type {name},@function")
    a.label(name)

def kernel_desc(a, name, vgpr, accum, sgpr=96, extra=()):
    a.raw('.section .rodata,"a"')
    a.raw(".p2align 6")
    a.raw(f".amdhsa_kernel {name}")
    a.raw(f"  .amdhsa_next_free_vgpr {vgpr}")
    a.raw(f"  .amdhsa_next_free_sgpr {sgpr}")
    a.raw(f"  .amdhsa_accum_offset {accum}")
    a.raw("  .amdhsa_group_segment_fixed_size 0")
    a.raw("  .amdhsa_kernarg_size 96")
    a.raw("  .amdhsa_user_sgpr_count 2")
    a.raw("  .amdhsa_user_sgpr_kernarg_segment_ptr 1")
    a.raw("  .amdhsa_system_sgpr_workgroup_id_x 1")
    for e in extra:
        a.raw("  " + e)
    a.raw(".end_amdhsa_kernel")

def srd(a, s, base_lo, nbytes, off=0):
    if off:
        a(f"s_add_u32 s{s}, s{base_lo}, {off}")
        a(f"s_addc_u32 s{s+1}, s{base_lo+1}, 0")
    else:
        a(f"s_mov_b32 s{s}, s{base_lo}")
        a(f"s_mov_b32 s{s+1}, s{base_lo+1}")
    a(f"s_mov_b32 s{s+2}, {nbytes}")
    a(f"s_mov_b32 s{s+3}, 0x00020000")
```

```python
import re
TRANS = ("v_exp_f32", "v_log_f32", "v_rcp_f32", "v_rsq_f32", "v_sqrt_f32", "v_sin_f32", "v_cos_f32", "v_rcp_iflag_f32")
def regs(tok):
    tok = tok.strip()
    tok = tok.lstrip("-")
    if tok.startswith("abs("): tok = tok[4:-1]
    if tok.startswith("|"): tok = tok.strip("|")
    m = re.fullmatch(r"([vas])(\d+)", tok)
    if m: return {(m.group(1), int(m.group(2)))}
    m = re.fullmatch(r"([vas])\[(\d+):(\d+)\]", tok)
    if m: return {(m.group(1), i) for i in range(int(m.group(2)), int(m.group(3)) + 1)}
    if tok == "vcc": return {("s", "vcc")}
    if tok in ("vcc_lo", "vcc_hi"): return {("s", "vcc")}
    if tok == "exec": return {("s", "exec")}
    if tok == "m0": return {("s", "m0")}
    return set()
class I:
    def __init__(self, line):
        self.line = line
        s = line.split(";")[0].strip()
        self.is_ins = bool(s) and not s.endswith(":") and not s.startswith(".")
        if not self.is_ins: return
        p = s.split(None, 1)
        self.op = p[0]
        rest = p[1] if len(p) > 1 else ""
        rest = re.sub(r"(op_sel(_hi)?|neg_lo|neg_hi):\[([^\]]*)\]", lambda m: m.group(0).replace(",", "_"), rest)
        ops = [o.strip() for o in rest.split(",")] if rest else []
        mods = ""
        if ops:
            l = ops[-1].split(None, 1)
            ops[-1] = l[0]
            mods = l[1] if len(l) > 1 else ""
        self.ops, self.mods = ops, mods
        op = self.op
        R = [regs(o) for o in ops]
        U = lambda xs: set().union(*xs) if xs else set()
        self.w, self.r = set(), set()
        self.cls = "other"
        self.dpp = bool(re.search(r"row_|quad_perm|wave_|row_newbcast", mods))
        if op.startswith("v_mfma"):
            self.cls = "mfma"; self.w = R[0]; self.ab = R[1] | R[2]; self.c = R[3]; self.r = self.ab | self.c
            self.passes = 8 if "32x32" in op else 4
        elif op.startswith("v_"):
            self.cls = "valu"
            if op.startswith("v_cmp"):
                self.w = R[0]; self.r = U(R[1:])
                if op.startswith("v_cmpx"): self.w = self.w | {("s", "exec")}
            elif "_co_" in op or op.startswith("v_div_scale") or op.startswith("v_mad_u64"):
                self.w = R[0] | R[1]; self.r = U(R[2:])
            elif op.startswith("v_permlane"):
                self.w = R[0] | R[1]; self.r = R[0] | R[1]
            else:
                self.w = R[0]; self.r = U(R[1:])
                if op.startswith(("v_fmac", "v_writelane", "v_dot2c", "v_pk_fmac")) or "dst_unused:UNUSED_PRESERVE" in mods or self.dpp: self.r |= R[0]
                if op.startswith("v_cndmask") and len(ops) == 3: self.r |= {("s", "vcc")}
        elif op.startswith("ds_"):
            self.cls = "ds"
            if op.startswith(("ds_read", "ds_bpermute", "ds_permute", "ds_swizzle")) or "_rtn" in op:
                self.w = R[0]; self.r = U(R[1:])
            else: self.r = U(R)
        elif op.startswith(("buffer_", "global_")):
            self.cls = "vmem"
            self.lds = " lds" in " " + mods
            if "store" in op or ("atomic" in op and "sc0" not in mods): self.r = U(R)
            elif self.lds: self.r = U(R) | {("s", "m0")}
            elif op in ("buffer_wbl2", "buffer_inv"): pass
            else:
                self.w = R[0]; self.r = U(R[1:])
                if "d16" in op or "atomic" in op: self.r |= R[0]
            self.wide_store = "store" in op and ("x3" in op or "x4" in op)
            if self.wide_store: self.data = R[0] if op.startswith("buffer_") else R[1]
        elif op.startswith("s_"):
            self.cls = "salu"
            if op.startswith(("s_cmp", "s_cbranch", "s_branch", "s_waitcnt", "s_nop", "s_barrier", "s_endpgm", "s_setprio", "s_sleep")): self.r = U(R)
            elif ops: self.w = R[0]; self.r = U(R[1:])
            if "saveexec" in op: self.w |= {("s", "exec")}
    def states(self):
        if self.op == "s_nop": return int(self.ops[0]) + 1
        return 1
def need(p, c):
    n = 0
    vw = {x for x in p.w if x[0] in "va"}; sw = {x for x in p.w if x[0] == "s"}
    if p.cls == "valu":
        if c.cls == "mfma" and vw & c.r: n = max(n, 2)
        if c.cls == "mfma" and ("s", "exec") in sw: n = max(n, 4)
        if c.cls in ("valu", "ds", "vmem", "mfma") and p.op.startswith("v_dot") and vw & (c.r | c.w) and not (c.op == p.op and not vw & set().union(*[regs(o) for o in c.ops[1:3]])): n = max(n, 3)
        if c.cls == "valu":
            if c.dpp and vw & c.r: n = max(n, 2)
            if c.dpp and ("s", "exec") in sw: n = max(n, 5)
            if c.op.startswith("v_permlane") and vw & c.r: n = max(n, 2)
            if c.op.startswith("v_permlane") and ("s", "exec") in sw: n = max(n, 4)
            if c.op.startswith(("v_readlane", "v_readfirstlane")) and vw & c.r: n = max(n, 1)
            if c.op.startswith(("v_readlane", "v_readfirstlane", "v_writelane")) and ("s", "exec") in sw: n = max(n, 4)
            if sw & c.r: n = max(n, 4 if c.op.startswith(("v_readlane", "v_writelane", "v_div_fmas")) else 2)
            if p.op.startswith(TRANS) and not c.op.startswith(TRANS) and vw & (c.r | c.w): n = max(n, 1)
            if ("sdwa" in p.op or "op_sel:" in p.mods or "dst_sel" in p.mods) and vw & (c.r | c.w): n = max(n, 1)
        if c.cls == "vmem" and sw & c.r: n = max(n, 5)
        if c.cls == "salu" and sw & c.r: n = max(n, 1)
    if p.cls == "mfma":
        big = {4: 8, 8: 12}[p.passes]
        if c.cls == "mfma":
            if p.w & c.ab: n = max(n, big)
            if p.w & c.c and not (p.w == c.c and p.passes == c.passes): n = max(n, big - 2)
            if p.w & c.w and not (p.w & c.c): n = max(n, big - 2)
        elif c.cls in ("valu", "ds", "vmem"):
            if p.w & (c.r | c.w): n = max(n, big)
            if c.cls == "valu" and p.c & c.w: n = max(n, {4: 3, 8: 7}[p.passes])
    if p.cls == "vmem" and p.wide_store and p.data & c.w: n = max(n, 2)
    if p.cls == "salu" and ("s", "m0") in p.w and (c.cls == "vmem" and c.lds): n = max(n, 1)
    return n
def fix(text, report=None):
    ins = [I(l) for l in text.split("\n")]
    out = []; hist = []
    added = 0
    for x in ins:
        if not x.is_ins:
            out.append(x.line); continue
        gap = 0; req = 0
        for p in reversed(hist):
            k = need(p, x) - gap
            if k > req: req = k; why = p
            gap += p.states()
            if gap > 20: break
        if req > 0:
            nop = I(f"    s_nop {req-1}")
            out.append(nop.line + f"   ; hz: {why.op}"); hist.append(nop); added += 1
            if report is not None: report.append((x.line.strip(), why.line.strip(), req))
        out.append(x.line); hist.append(x)
    return "\n".join(out)
if __name__ == "__main__":
    import sys
    rep = []
    fix(open(sys.argv[1]).read(), rep)
    for r in rep: print(r)
```

```python
from asmlib import *
from layout import *
NAME1 = "prep_kernel"
WG_W0, WG_LN0 = 64, 70
LN_WGS = 313
K1_GRID = WG_LN0 + LN_WGS

def dpp(op, d, s0, s1, ctl, rm="0xf", bc=False):
    return f"{op}_dpp v{d}, v{s0}, v{s1} {ctl} row_mask:{rm} bank_mask:0xf" + (" bound_ctrl:1" if bc else "")
def wave_scan(a, v):
    for k in (1, 2, 4, 8): a(dpp("v_add_u32", v, v, v, f"row_shr:{k}", bc=True))
    a(dpp("v_add_u32", v, v, v, "row_bcast:15", "0xa"))
    a(dpp("v_add_u32", v, v, v, "row_bcast:31", "0xc"))
def row_sum(a, vs):
    for k in (8, 4, 2, 1):
        for v in vs: a(dpp("v_add_f32", v, v, v, f"row_ror:{k}"))

def gen_k1(a):
    kernel_begin(a, NAME1)
    a(f"s_cmp_ge_u32 s2, {K1_GRID}")
    a("s_cbranch_scc1 L1_end")
    a(f"s_load_dwordx2 s[4:5], s[0:1], {A_WS}")
    a(f"s_cmp_ge_u32 s2, {WG_LN0}")
    a("s_cbranch_scc1 L1_ln")
    a(f"s_cmp_ge_u32 s2, {WG_W0}")
    a("s_cbranch_scc1 L1_w")
    a(f"s_load_dwordx4 s[8:11], s[0:1], {A_SRC}")
    a("v_lshlrev_b32 v1, 4, v0")
    for i in range(4): a(f"v_mov_b32 v{4+i}, 0")
    a("ds_write_b128 v1, v[4:7]")
    a(f"s_mul_i32 s3, s2, {EPP*4}")
    a("v_lshlrev_b32 v2, 3, v0")
    a("s_waitcnt lgkmcnt(0)")
    srd(a, 12, 8, E * 4); srd(a, 16, 10, E * 4)
    srd(a, 20, 4, NPROD * 4096, TAB_OFF); srd(a, 24, 4, E * 4, SEG_OFF); srd(a, 28, 4, 256 * 128, FLG_OFF)
    DST = lambda i: 10 + i; SRC = lambda i: 20 + i; BK = lambda i: 30 + i; RK = lambda i: 40 + i
    a("s_add_u32 s6, s3, 4096")
    a("s_add_u32 s7, s3, 8192")
    for i in range(5):
        a(f"buffer_load_dwordx2 {vr(DST(2*i),2)}, v2, s[16:19], s{(3,3,6,6,7)[i]} offen offset:{(i%2)*2048}")
    for i in range(5):
        a(f"buffer_load_dwordx2 {vr(SRC(2*i),2)}, v2, s[12:15], s{(3,3,6,6,7)[i]} offen offset:{(i%2)*2048}")
    a("s_cmp_lg_u32 s2, 0")
    a("s_cbranch_scc1 L1_noflag")
    a("v_lshlrev_b32 v3, 7, v0")
    a("buffer_store_dword v4, v3, s[28:31], 0 offen")
    a.label("L1_noflag")
    a("s_barrier")
    a("s_mov_b32 s33, 52429")
    a("v_mov_b32 v8, 1")
    a(f"v_cmp_gt_u32 vcc, {EPP//2 - 4*256}, v0")
    a("s_mov_b64 s[34:35], vcc")
    a("s_waitcnt vmcnt(5)")
    for i in range(10):
        a(f"v_mul_u32_u24 v{BK(i)}, s33, v{DST(i)}")
        a(f"v_lshrrev_b32 v{BK(i)}, 19, v{BK(i)}")
        a(f"v_mul_u32_u24 v9, 10, v{BK(i)}")
        a(f"v_sub_u32 v{DST(i)}, v{DST(i)}, v9")
        a(f"v_lshlrev_b32 v{BK(i)}, 2, v{BK(i)}")
        if i == 8: a("s_mov_b64 exec, s[34:35]")
        a(f"ds_add_rtn_u32 v{RK(i)}, v{BK(i)}, v8")
    a("s_mov_b64 exec, -1")
    a("s_waitcnt vmcnt(0)")
    for i in range(10):
        a(f"v_and_b32 v9, 7, v{SRC(i)}")
        a(f"v_lshl_or_b32 v{DST(i)}, v9, 5, v{DST(i)}")
        a(f"v_lshl_or_b32 v{DST(i)}, v{SRC(i)}, 8, v{DST(i)}")
    a("s_waitcnt lgkmcnt(0)")
    a("s_barrier")
    a("ds_read_b128 v[4:7], v1")
    a("v_lshrrev_b32 v3, 6, v0")
    a("v_lshlrev_b32 v3, 2, v3")
    a("s_waitcnt lgkmcnt(0)")
    a("v_add_u32 v50, v4, v5")
    a("v_add_u32 v51, v50, v6")
    a("v_add_u32 v52, v51, v7")
    a("v_mov_b32 v53, v52")
    wave_scan(a, 53)
    a("v_and_b32 v9, 63, v0")
    a("v_cmp_eq_u32 vcc, 63, v9")
    a("s_and_saveexec_b64 s[36:37], vcc")
    a("ds_write_b32 v3, v53 offset:4096")
    a("s_mov_b64 exec, -1")
    a("v_mov_b32 v9, 0")
    a("s_waitcnt lgkmcnt(0)")
    a("s_barrier")
    a("ds_read_b128 v[56:59], v9 offset:4096")
    a("v_sub_u32 v53, v53, v52")
    a("v_readfirstlane_b32 s38, v3")
    a("s_waitcnt lgkmcnt(0)")
    for w in range(3):
        a(f"s_cmp_gt_u32 s38, {4*w}")
        a("s_cselect_b32 s39, -1, 0")
        a(f"v_and_b32 v9, s39, v{56+w}")
        a("v_add_u32 v53, v53, v9")
    a("v_mov_b32 v56, v53")
    a("v_add_u32 v57, v53, v4")
    a("v_add_u32 v58, v53, v50")
    a("v_add_u32 v59, v53, v51")
    a("ds_write_b128 v1, v[56:59]")
    for i in range(4): a(f"v_lshl_or_b32 v{60+i}, v{4+i}, 16, v{56+i}")
    a("s_lshl_b32 s39, s2, 12")
    a("buffer_store_dwordx4 v[60:63], v1, s[20:23], s39 offen")
    a("s_waitcnt lgkmcnt(0)")
    a("s_barrier")
    for i in range(10):
        if i == 8: a("s_mov_b64 exec, s[34:35]")
        a(f"ds_read_b32 v{BK(i)}, v{BK(i)}")
    a("s_mov_b64 exec, -1")
    for i in range(10):
        a(f"s_waitcnt lgkmcnt({9-i})")
        a(f"v_add_lshl_u32 v{BK(i)}, v{BK(i)}, v{RK(i)}, 2")
        if i == 8: a("s_mov_b64 exec, s[34:35]")
        a(f"buffer_store_dword v{DST(i)}, v{BK(i)}, s[24:27], s3 offen")
    a("s_endpgm")
    a.label("L1_w")
    a(f"s_load_dwordx8 s[8:15], s[0:1], {A_WMSG}")
    a(f"s_load_dwordx2 s[16:17], s[0:1], {A_WOUT}")
    a("v_lshrrev_b32 v1, 6, v0")
    a("v_and_b32 v0, 63, v0")
    a(f"s_sub_u32 s6, s2, {WG_W0}")
    a("v_readfirstlane_b32 s3, v1")
    a("v_and_b32 v2, 15, v0")
    a("v_lshrrev_b32 v3, 4, v0")
    a("s_and_b32 s7, s6, 1")
    a("s_lshl_b32 s7, s7, 2")
    a("s_add_u32 s7, s7, s3")
    a("s_lshr_b32 s6, s6, 1")
    a("v_lshlrev_b32 v4, 8, v2")
    a("v_lshl_add_u32 v4, v3, 4, v4")
    a("v_lshrrev_b32 v5, 3, v2")
    a("v_and_b32 v6, 3, v2")
    a("v_lshl_add_u32 v5, v5, 2, v6")
    a("v_bfe_u32 v6, v2, 2, 1")
    a("v_lshlrev_b32 v6, 12, v6")
    a("v_lshl_add_u32 v5, v5, 4, v6")
    a(f"s_mov_b32 s40, {f32(CH)}")
    a(f"s_mov_b32 s41, {f32(RS128)}")
    a(f"s_mov_b32 s42, {f32(QSCALE)}")
    BIG = lambda blk, ks: 32 + (blk * 4 + ks) * 4
    SM = lambda ks: 16 + ks * 4
    DD = lambda blk: 160 + blk * 4
    a("s_cmp_eq_u32 s6, 0")
    a("s_waitcnt lgkmcnt(0)")
    a("s_cbranch_scc0 L1_wv")
    srd(a, 20, 10, 32768); srd(a, 24, 12, 32768); srd(a, 28, 4, 32768, MQ_OFF)
    a("s_lshl_b32 s33, s7, 12")
    for ks in range(4): a(f"buffer_load_dwordx4 {vr(SM(ks),4)}, v4, s[20:23], s33 offen offset:{ks*64}")
    for blk in range(8):
        a(f"s_mov_b32 s34, {blk*4096}")
        for ks in range(4): a(f"buffer_load_dwordx4 {vr(BIG(blk,ks),4)}, v4, s[24:27], s34 offen offset:{ks*64}")
    a("v_lshrrev_b32 v6, 1, v3")
    a("v_lshl_add_u32 v5, v6, 8, v5")
    a("v_and_b32 v6, 1, v3")
    a("v_lshl_add_u32 v5, v6, 3, v5")
    a("s_lshr_b32 s34, s7, 1")
    a("s_lshl_b32 s34, s34, 10")
    a("s_and_b32 s35, s7, 1")
    a("s_lshl_b32 s35, s35, 9")
    a("s_add_u32 s34, s34, s35")
    for blk in range(8):
        a(f"s_waitcnt vmcnt({28-4*blk})")
        for ks in range(4):
            a(f"v_mfma_f32_16x16x32_bf16 {vr(DD(blk),4)}, {vr(SM(ks),4)}, {vr(BIG(blk,ks),4)}, {'0' if ks==0 else vr(DD(blk),4)}")
    for r in range(4): a(f"v_add_f32 v{8+r}, v{DD(0)+r}, v{DD(1)+r}")
    for blk in range(2, 8):
        for r in range(4): a(f"v_add_f32 v{8+r}, v{8+r}, v{DD(blk)+r}")
    row_sum(a, [8, 9, 10, 11])
    for r in range(4): a(f"v_mov_b32_dpp v{12+r}, v{DD(0)+r} row_newbcast:0 row_mask:0xf bank_mask:0xf")
    for r in range(4): a(f"v_fma_f32 v{8+r}, v{8+r}, s41, -v{12+r}")
    for r in range(4): a(f"v_mul_f32 v{8+r}, s40, v{8+r}")
    a("v_cmp_eq_u32 vcc, 0, v2")
    for blk in range(8):
        for r in range(4): a(f"v_sub_f32 v{DD(blk)+r}, v{DD(blk)+r}, v{8+r}")
        for r in range(4): a(f"v_mul_f32 v{DD(blk)+r}, s42, v{DD(blk)+r}")
        if blk == 0:
            for r in range(4): a(f"v_cndmask_b32 v{DD(0)+r}, v{DD(0)+r}, 0, vcc")
        a(f"v_cvt_pk_bf16_f32 v{DD(blk)}, v{DD(blk)}, v{DD(blk)+1}")
        a(f"v_cvt_pk_bf16_f32 v{DD(blk)+1}, v{DD(blk)+2}, v{DD(blk)+3}")
        a(f"s_add_u32 s35, s34, {(blk//2)*8192}")
        a(f"buffer_store_dwordx2 {vr(DD(blk),2)}, v5, s[28:31], s35 offen offset:{(blk%2)*128}")
    a("s_endpgm")
    a.label("L1_wv")
    a("s_cmp_eq_u32 s6, 1")
    a("s_cselect_b32 s20, s14, s8")
    a("s_cselect_b32 s21, s15, s9")
    a("s_mov_b32 s22, 32768")
    a("s_mov_b32 s23, 0x00020000")
    a(f"s_mov_b32 s33, {MM_OFF}")
    a(f"s_cselect_b32 s33, {MV_OFF}, s33")
    a("s_add_u32 s28, s4, s33")
    a("s_addc_u32 s29, s5, 0")
    a("s_mov_b32 s30, 32768")
    a("s_mov_b32 s31, 0x00020000")
    srd(a, 24, 16, 32768)
    a("v_lshlrev_b32 v6, 11, v3")
    a("v_lshl_add_u32 v6, v2, 1, v6")
    a("s_lshl_b32 s33, s7, 5")
    T = lambda ks, jj: 192 + ks * 8 + jj
    for ks in range(4):
        for jj in range(8): a(f"buffer_load_ushort v{T(ks,jj)}, v6, s[24:27], s33 offen offset:{jj*256}")
        a("s_add_u32 s33, s33, 8192")
    for blk in range(7):
        a(f"s_mov_b32 s34, {blk*4096}")
        for ks in range(4): a(f"buffer_load_dwordx4 {vr(BIG(blk,ks),4)}, v4, s[20:23], s34 offen offset:{ks*64}")
    a("v_lshl_add_u32 v5, v3, 8, v5")
    a("s_lshr_b32 s35, s7, 1")
    a("s_lshl_b32 s35, s35, 13")
    a("s_and_b32 s36, s7, 1")
    a("s_lshl_b32 s36, s36, 7")
    a("s_add_u32 s35, s35, s36")
    a("s_waitcnt vmcnt(28)")
    a(f"s_mov_b32 s34, {7*4096}")
    for ks in range(4): a(f"buffer_load_dwordx4 {vr(BIG(7,ks),4)}, v4, s[20:23], s34 offen offset:{ks*64}")
    for ks in range(4):
        for c in range(4): a(f"v_lshl_or_b32 v{SM(ks)+c}, v{T(ks,2*c+1)}, 16, v{T(ks,2*c)}")
    for blk in range(8):
        a(f"s_waitcnt vmcnt({28-4*blk})")
        for ks in range(4):
            a(f"v_mfma_f32_16x16x32_bf16 {vr(DD(blk),4)}, {vr(BIG(blk,ks),4)}, {vr(SM(ks),4)}, {'0' if ks==0 else vr(DD(blk),4)}")
    for r in range(4): a(f"v_add_f32 v{8+r}, v{DD(0)+r}, v{DD(1)+r}")
    for blk in range(2, 8):
        for r in range(4): a(f"v_add_f32 v{8+r}, v{8+r}, v{DD(blk)+r}")
    a("v_add_f32 v8, v8, v9")
    a("v_add_f32 v10, v10, v11")
    a("v_add_f32 v8, v8, v10")
    a("v_xor_b32 v9, 16, v0")
    a("v_lshlrev_b32 v9, 2, v9")
    a("ds_bpermute_b32 v10, v9, v8")
    a("v_lshlrev_b32 v11, 2, v2")
    a(f"ds_bpermute_b32 v12, v11, v{DD(0)}")
    a("v_xor_b32 v9, 32, v0")
    a("v_lshlrev_b32 v9, 2, v9")
    a("s_waitcnt lgkmcnt(0)")
    a("v_add_f32 v8, v8, v10")
    a("ds_bpermute_b32 v10, v9, v8")
    a("s_waitcnt lgkmcnt(0)")
    a("v_add_f32 v8, v8, v10")
    a("v_fma_f32 v8, v8, s41, -v12")
    a("v_mul_f32 v8, s40, v8")
    a("v_cmp_eq_u32 vcc, 0, v3")
    for blk in range(8):
        for r in range(4): a(f"v_sub_f32 v{DD(blk)+r}, v{DD(blk)+r}, v8")
    a(f"v_cndmask_b32 v{DD(0)}, v{DD(0)}, 0, vcc")
    for ks in range(4):
        for c in range(4): a(f"v_cvt_pk_bf16_f32 v{32+4*ks+c}, v{DD(2*ks)+2*c}, v{DD(2*ks)+2*c+1}")
        a(f"buffer_store_dwordx4 {vr(32+4*ks,4)}, v5, s[28:31], s35 offen offset:{ks*1024}")
    a("s_endpgm")
    a.label("L1_ln")
    a(f"s_load_dwordx2 s[6:7], s[0:1], {A_X}")
    a(f"s_sub_u32 s3, s2, {WG_LN0}")
    a("s_lshl_b32 s3, s3, 13")
    a("v_lshrrev_b32 v1, 6, v0")
    a("v_and_b32 v2, 63, v0")
    a("v_lshlrev_b32 v3, 4, v2")
    a("v_lshl_add_u32 v3, v1, 11, v3")
    a("v_and_b32 v4, 15, v0")
    a("v_lshrrev_b32 v5, 4, v2")
    a("s_waitcnt lgkmcnt(0)")
    srd(a, 8, 6, N * 256); srd(a, 12, 4, N * 256, HP_OFF); srd(a, 16, 4, N * 256, HQ_OFF)
    for i in range(2): a(f"buffer_load_dwordx4 {vr(8+4*i,4)}, v3, s[8:11], s3 offen offset:{i*1024}")
    for i in range(2):
        a(f"v_add_u32 v6, {4*i}, v5")
        a("v_lshlrev_b32 v6, 5, v6")
        a(f"v_xor_b32 v{16+i}, v3, v6")
    a("v_cmp_eq_u32 vcc, 0, v4")
    a(f"s_mov_b32 s20, {f32(1.0/128)}")
    a(f"s_mov_b32 s21, {f32(1e-5)}")
    a(f"s_mov_b32 s22, {f32(CH)}")
    a("s_mov_b32 s23, 0xffff0000")
    X = lambda i, k: 20 + 8 * i + k
    for i in range(2):
        a(f"s_waitcnt vmcnt({1-i})")
        for c in range(4):
            a(f"v_lshlrev_b32 v{X(i,2*c)}, 16, v{8+4*i+c}")
            a(f"v_and_b32 v{X(i,2*c+1)}, s23, v{8+4*i+c}")
    for i in range(2):
        a(f"v_add_f32 v{40+i}, v{X(i,0)}, v{X(i,1)}")
    for k in range(2, 8):
        for i in range(2): a(f"v_add_f32 v{40+i}, v{40+i}, v{X(i,k)}")
    row_sum(a, [40, 41])
    for i in range(2): a(f"v_mul_f32 v{40+i}, s20, v{40+i}")
    for k in range(8):
        for i in range(2): a(f"v_sub_f32 v{X(i,k)}, v{X(i,k)}, v{40+i}")
    for i in range(2): a(f"v_mul_f32 v{42+i}, v{X(i,0)}, v{X(i,0)}")
    for k in range(1, 8):
        for i in range(2): a(f"v_fmac_f32 v{42+i}, v{X(i,k)}, v{X(i,k)}")
    row_sum(a, [42, 43])
    a("v_mov_b32 v44, s21")
    for i in range(2): a(f"v_fma_f32 v{42+i}, v{42+i}, s20, v44")
    for i in range(2): a(f"v_rsq_f32 v{42+i}, v{42+i}")
    for k in range(8):
        for i in range(2): a(f"v_mul_f32 v{X(i,k)}, v{X(i,k)}, v{42+i}")
    a("v_mov_b32 v44, s22")
    for i in range(2): a(f"v_mul_f32_dpp v{40+i}, v{X(i,0)}, v44 row_newbcast:0 row_mask:0xf bank_mask:0xf")
    for i in range(2):
        for c in range(4): a(f"v_cvt_pk_bf16_f32 v{8+4*i+c}, v{X(i,2*c)}, v{X(i,2*c+1)}")
        a(f"buffer_store_dwordx4 {vr(8+4*i,4)}, v3, s[16:19], s3 offen offset:{i*1024}")
    for k in range(8):
        for i in range(2): a(f"v_add_f32 v{X(i,k)}, v{X(i,k)}, v{40+i}")
    for i in range(2): a(f"v_cndmask_b32 v{X(i,0)}, v{X(i,0)}, 1.0, vcc")
    for i in range(2):
        for c in range(4): a(f"v_cvt_pk_bf16_f32 v{48+4*i+c}, v{X(i,2*c)}, v{X(i,2*c+1)}")
        a(f"buffer_store_dwordx4 {vr(48+4*i,4)}, v{16+i}, s[12:15], s3 offen offset:{i*1024}")
    a.label("L1_end")
    a("s_endpgm")
def desc_k1(a):
    kernel_desc(a, NAME1, 224, 224, 64)
K1_LAUNCH = f"; @launch kernel={NAME1} grid=({K1_GRID},1,1) block=(256,1,1) lds=4352"
```

```python
from asmlib import *
from layout import *
from k1 import wave_scan
NAME2 = "attn_kernel"
NWG = 250
NSTEP = 39
RING = 32768
SPARE = 4 * RING
LIST_B = 1088 * 4
LDS2 = SPARE + 20480
WS_BYTES = XCH_OFF + NWG * XCH_WG
MF = "v_mfma_f32_16x16x32_bf16"
OOB = "0x7fffff00"
NORM2_MAX = 70.0
O = lambda j, qb: (qb * 8 + j) * 4
Q = lambda qb, ks: 160 + (qb * 4 + ks) * 4
KF = lambda par, kb, ks: 32 + par * 32 + (kb * 4 + ks) * 4
VF = lambda par, j: 96 + par * 32 + j * 4
S = lambda par, kb: 160 + par * 8 + kb * 4
P = lambda par: 176 + par * 4
KA = lambda ks: 8 + ks
VA = lambda j: 12 + j
VOFF0, VOFF1 = 20, 21
V_TAB, V_SEG, V_Q, V_G = 22, 23, 24, 25
V_DEG, V_ROW = 26, 27
V_ROW2 = 28
ENT = lambda j: 184 + j
CM = lambda qb: 200 + qb * 4
XR = lambda b: 220 + b * 4
S_W, S_TILE, S_SPLIT, S_RING, S_KOFF, S_CNT = 3, 28, 29, 30, 31, 33
ST_OFF = 0x1000000

def gen_k2(a, stamps=False):
    nst = [0]
    def stamp():
        if not stamps: return
        i = nst[0]; nst[0] += 1
        a(f"s_memtime s[{64+2*i}:{65+2*i}]")
    kernel_begin(a, NAME2)
    a(f"s_cmp_ge_u32 s2, {NWG}")
    a("s_cbranch_scc1 L2_end")
    a(f"s_load_dwordx2 s[4:5], s[0:1], {A_WS}")
    a(f"s_load_dwordx2 s[16:17], s[0:1], {A_X}")
    a(f"s_load_dwordx2 s[20:21], s[0:1], {A_OUT}")
    a(f"s_load_dwordx2 s[24:25], s[0:1], {A_DEG}")
    if stamps: a("s_memrealtime s[62:63]")
    stamp()
    a("v_lshrrev_b32 v1, 6, v0")
    a("v_and_b32 v0, 63, v0")
    a(f"s_lshr_b32 s{S_TILE}, s2, 1")
    a(f"v_readfirstlane_b32 s{S_W}, v1")
    a("s_lshr_b32 s34, s2, 3")
    a("s_xor_b32 s34, s34, s2")
    a(f"s_and_b32 s{S_SPLIT}, s34, 1")
    a(f"v_and_b32 v{V_Q}, 15, v0")
    a(f"v_lshrrev_b32 v{V_G}, 4, v0")
    a(f"s_lshl_b32 s{S_RING}, s{S_W}, 15")
    a(f"s_lshl_b32 s34, s{S_SPLIT}, 2")
    a(f"s_add_u32 s34, s34, s{S_W}")
    a(f"s_mul_i32 s{S_KOFF}, s34, {NSTEP*8192}")
    a(f"s_mul_i32 s35, s{S_SPLIT}, 15")
    a(f"v_xor_b32 v1, s35, v{V_Q}")
    a("v_lshlrev_b32 v1, 8, v1")
    a(f"v_lshl_add_u32 v1, v{V_G}, 4, v1")
    a(f"s_mul_i32 s36, s{S_TILE}, {80*256}")
    a(f"s_mul_i32 s37, s{S_SPLIT}, {4*4096}")
    a("s_add_u32 s36, s36, s37")
    a(f"s_lshl_b32 s37, s{S_SPLIT}, 13")
    a("s_sub_u32 s37, 4096, s37")
    a(f"v_lshlrev_b32 v{VOFF0}, 4, v0")
    a(f"v_add_u32 v{VOFF1}, 4096, v{VOFF0}")
    a(f"s_mul_i32 s38, s{S_SPLIT}, 7")
    a(f"s_xor_b32 s38, s38, s{S_W}")
    a(f"s_lshl_b32 s39, s{S_TILE}, 3")
    a("s_add_u32 s38, s38, s39")
    a("s_lshl_b32 s39, s38, 2")
    a(f"s_add_u32 s39, s39, {TAB_OFF}")
    a("v_lshlrev_b32 v2, 12, v0")
    a(f"s_lshl_b32 s40, s{S_W}, 13")
    a(f"s_add_u32 s40, s40, {MQ_OFF}")
    a("s_add_u32 s41, s40, 4096")
    a(f"s_add_u32 s42, s36, {HQ_OFF}")
    a("s_waitcnt lgkmcnt(0)")
    stamp()
    srd(a, 12, 4, WS_BYTES)
    a(f"buffer_load_dword v{V_TAB}, v2, s[12:15], s39 offen")
    HB = lambda qb, ks: 32 + (qb * 4 + ks) * 4
    MA = lambda hf, ks: 112 + (hf * 4 + ks) * 4
    QD = lambda qb, hf: 144 + (qb * 2 + hf) * 4
    for hf in range(2):
        for ks in range(4): a(f"buffer_load_dwordx4 {vr(MA(hf,ks),4)}, v{VOFF0}, s[12:15], s{40+hf} offen offset:{ks*1024}")
    for qb in range(5):
        for ks in range(4): a(f"buffer_load_dwordx4 {vr(HB(qb,ks),4)}, v1, s[12:15], s42 offen offset:{ks*64}")
        if qb < 4: a("s_add_u32 s42, s42, s37")
    srd(a, 8, 4, N * 256, HP_OFF)

    def dma(slot, piece, last=7):
        out = []
        half, sub = piece // 4, piece % 4
        if sub == 0: out.append(f"s_add_u32 m0, s{S_RING}, {slot*8192 + half*4096}")
        out.append(f"buffer_load_dwordx4 v{VOFF0 if half==0 else VOFF1}, s[8:11], s{S_KOFF} offen offset:{sub*1024} lds")
        if piece == last: out.append(f"s_add_u32 s{S_KOFF}, s{S_KOFF}, 8192")
        return out
    for t in range(4):
        for pc in range(8):
            for ins in dma(t, pc): a(ins)
    stamp()
    for s, nb in ((16, N * 256), (20, N * 256), (24, N * 2)):
        a(f"s_mov_b32 s{s+2}, {nb}")
        a(f"s_mov_b32 s{s+3}, 0x00020000")
    a(f"v_and_b32 v4, 7, v{V_Q}")
    a(f"v_lshrrev_b32 v5, 1, v{V_G}")
    a(f"v_and_b32 v6, 1, v{V_G}")
    a("v_lshlrev_b32 v6, 4, v6")
    a(f"v_lshl_add_u32 v6, v{V_Q}, 8, v6")
    a(f"v_add_u32 v6, s{S_RING}, v6")
    for ks in range(4):
        a(f"v_add_u32 v7, {2*ks}, v5")
        a("v_xor_b32 v7, v7, v4")
        a(f"v_lshl_add_u32 v{KA(ks)}, v7, 5, v6")
    a(f"v_lshrrev_b32 v4, 2, v{V_Q}")
    a(f"v_lshl_add_u32 v4, v{V_G}, 2, v4")
    a(f"v_and_b32 v5, 3, v{V_Q}")
    a("v_lshlrev_b32 v5, 3, v5")
    a("v_lshl_add_u32 v5, v4, 8, v5")
    a(f"v_add_u32 v5, s{S_RING}, v5")
    a("v_and_b32 v4, 7, v4")
    a(f"s_lshl_b32 s43, s{S_W}, 1")
    for j in range(8):
        a(f"s_add_u32 s44, s43, {j}")
        a("s_and_b32 s44, s44, 7")
        a("v_xor_b32 v7, s44, v4")
        a(f"v_lshl_add_u32 v{VA(j)}, v7, 5, v5")
    a(f"s_lshl_b32 s44, s{S_W}, 6")
    a("s_add_u32 s44, s44, s36")
    a(f"v_add_u32 v{V_ROW}, s44, v1")
    a("s_lshl_b32 s45, s37, 1")
    a(f"v_add_u32 v{V_ROW2}, s45, v{V_ROW}")
    a(f"v_mov_b32 v3, {OOB}")
    a(f"v_cmp_gt_u32 vcc, 8, v{V_Q}")
    a(f"v_cndmask_b32 v{V_ROW2}, v3, v{V_ROW2}, vcc")
    a(f"v_sub_u32 v4, 9, v{V_Q}")
    a(f"s_cmp_eq_u32 s{S_SPLIT}, 0")
    a("s_cselect_b64 vcc, -1, 0")
    a(f"v_cndmask_b32 v29, v4, v{V_Q}, vcc")
    a("s_mul_i32 s45, s38, 10")
    a("v_add_lshl_u32 v4, v29, s45, 1")
    a(f"v_cmp_gt_u32 vcc, 10, v{V_Q}")
    a("v_cndmask_b32 v4, v3, v4, vcc")
    a("v_sub_u32 v5, 14, v29")
    a("v_lshlrev_b32 v5, v5, 1")
    a("v_cndmask_b32 v29, 0, v5, vcc")
    a(f"v_mul_u32_u24 v{V_SEG}, {EPP*4}, v0")
    a(f"v_add_u32 v{V_SEG}, {SEG_OFF}, v{V_SEG}")
    a(f"v_lshl_add_u32 v5, s{S_W}, 10, v{VOFF0}")
    a(f"v_add_u32 v5, {SPARE}, v5")
    a(f"v_add_u32 v6, {SPARE}, v{VOFF0}")
    a("s_waitcnt vmcnt(60)")
    a(f"v_and_b32 v7, 0xffff, v{V_TAB}")
    a(f"v_lshl_add_u32 v{V_SEG}, v7, 2, v{V_SEG}")
    a(f"v_lshrrev_b32 v{V_TAB}, 16, v{V_TAB}")
    stamp()
    for qb in range(5):
        a(f"s_waitcnt vmcnt({32 + 4*(4-qb)})")
        for hf in range(2):
            for ks in range(4):
                a(f"{MF} {vr(QD(qb,hf),4)}, {vr(MA(hf,ks),4)}, {vr(HB(qb,ks),4)}, {'0' if ks==0 else vr(QD(qb,hf),4)}")
    stamp()
    NX = 8
    for j in range(4): a(f"buffer_load_dwordx4 {vr(ENT(4*j),4)}, v{V_SEG}, s[12:15], 0 offen offset:{16*j}")
    a(f"buffer_load_dwordx4 {vr(XR(0),4)}, v{V_ROW}, s[16:19], 0 offen")
    a(f"v_add_u32 v7, s37, v{V_ROW}")
    a(f"buffer_load_dwordx4 {vr(XR(1),4)}, v7, s[16:19], 0 offen")
    a(f"buffer_load_dwordx4 {vr(XR(2),4)}, v{V_ROW2}, s[16:19], 0 offen")
    a(f"buffer_load_ushort v{V_DEG}, v4, s[24:27], 0 offen")
    for qb in range(5):
        for c in range(4): a(f"v_cvt_pk_bf16_f32 v{HB(qb,0)+c}, v{QD(qb,0)+2*c}, v{QD(qb,0)+2*c+1}")
        a(f"ds_write_b128 v5, {vr(HB(qb,0),4)} offset:{qb*4096}")
    a("s_waitcnt lgkmcnt(0)")
    a("s_barrier")
    for qb in range(5):
        for ks in range(4): a(f"ds_read_b128 {ar(Q(qb,ks),4)}, v6 offset:{qb*4096 + ks*1024}")

    def kread(par, slot, j):
        kb, ks = j // 4, j % 4
        return f"ds_read_b128 {vr(KF(par,kb,ks),4)}, v{KA(ks)} offset:{slot*8192 + kb*4096}"
    def vread(par, slot, j):
        db, hf = j // 2, j % 2
        return f"ds_read_b64_tr_b16 {vr(VF(par,db)+2*hf,2)}, v{VA(db)} offset:{slot*8192 + hf*4096}"
    a(f"s_waitcnt vmcnt({24+NX})")
    for j in range(8): a(kread(0, 0, j))
    for qb in range(5):
        a(f"s_waitcnt lgkmcnt({min(15, 8 + 4*(4-qb))})")
        for ks in range(4): a(f"{MF} {vr(160+4*qb,4)}, {ar(Q(qb,ks),4)}, {ar(Q(qb,ks),4)}, {'0' if ks==0 else vr(160+4*qb,4)}")
    for j in range(16): a(vread(0, 0, j))
    a("v_max3_f32 v1, v160, v161, v162")
    for i in range(163, 179, 2): a(f"v_max3_f32 v1, v1, v{i}, v{i+1}")
    a("v_max_f32 v1, v1, v179")
    a(f"v_mov_b32 v2, {f32(NORM2_MAX)}")
    a("v_cmp_nle_f32 vcc, v1, v2")
    a("s_nop 4")
    a("s_cbranch_vccnz L2_slow")

    def qk(spar, kpar, qb, j, slow):
        kb, ks = j // 4, j % 4
        c = (vr(CM(qb), 4) if slow else "0") if ks == 0 else vr(S(spar, kb), 4)
        return f"{MF} {vr(S(spar,kb),4)}, {vr(KF(kpar,kb,ks),4)}, {ar(Q(qb,ks),4)}, {c}"
    def pv(ppar, vpar, qb, j, first=False):
        return f"{MF} {ar(O(j,qb),4)}, {vr(VF(vpar,j),4)}, {vr(P(ppar),4)}, {'0' if first else ar(O(j,qb),4)}"

    def step(t, slow, loop_end=False):
        par = t % 2
        nslot = (t + 1) % 4
        sc = [[] for _ in range(80)]; mem = [[] for _ in range(80)]; val = [[] for _ in range(80)]
        last = t == NSTEP - 1
        kl = [kread(1 - par, nslot, j) for j in range(4 if last else 8)]
        vl = [vread(1 - par, nslot, j) for j in range(16) if not (last and j % 2)]
        for j, ins in enumerate(kl): mem[1 + 2 * j].append(ins)
        for j, ins in enumerate(vl): mem[16 + 4 * j + 3].append(ins)
        vm = {0: 16 + NX, 1: 16 + NX, 2: 16 + NX, NSTEP - 3: 12, NSTEP - 2: 4, NSTEP - 1: 0}.get(t, 16)
        sc[0].append(f"s_waitcnt vmcnt({vm})")
        sc[14].append(f"s_waitcnt lgkmcnt({min(7, len(kl))})")
        if not last: sc[62].append("s_waitcnt lgkmcnt(11)")
        npc = 8 if t + 4 < NSTEP else (4 if t + 4 == NSTEP else 0)
        if npc == 4: sc[2].append(f"s_mov_b32 s{S_KOFF}, {8*NSTEP*8192}")
        for pc in range(npc):
            G = 16 + 8 * pc + 1
            for ins in dma(t % 4, pc):
                if ins.startswith("s_add_u32 m0"): sc[G - 1].append(ins)
                elif ins.startswith("s_"): sc[G + 1].append(ins)
                else: mem[G].append(ins)
        if loop_end:
            sc[76].append(f"s_sub_u32 s{S_CNT}, s{S_CNT}, 1")
            sc[78].append(f"s_cmp_lg_u32 s{S_CNT}, 0")
        for p in range(5):
            u = 5 * t + p
            sp = u % 2
            qks = [qk(1 - sp, (par + (p == 4)) % 2, (p + 1) % 5, j, slow) for j in range(8)]
            pvs = [pv(1 - sp, (par - (p == 0)) % 2, (p + 4) % 5, j, u <= 5) for j in range(8)]
            if u == 0: pvs = [None] * 8
            if last and p == 4: qks = [None] * 8
            mf = qks[:4] + pvs[:4] + qks[4:] + pvs[4:]
            for e in range(8): val[16 * p + 2 * e].append(f"v_exp_f32 v{S(sp,e//4)+e%4}, v{S(sp,e//4)+e%4}")
            for c in range(4): val[16 * p + 4 * c + 3].append(f"v_cvt_pk_bf16_f32 v{P(sp)+c}, v{S(sp,c//2)+2*(c%2)}, v{S(sp,c//2)+2*(c%2)+1}")
            for i in range(16):
                G = 16 * p + i
                if mf[i]: a(mf[i])
                for ins in sc[G] + mem[G] + val[G]: a(ins)

    def main_loop(slow):
        tag = "s" if slow else "f"
        a("s_waitcnt lgkmcnt(0)")
        for j in range(8): a(qk(0, 0, 0, j, slow))
        a(f"s_mov_b32 s{S_CNT}, {(NSTEP-7)//4}")
        if not slow: stamp()
        for t in range(3): step(t, slow)
        a.raw(".p2align 6")
        a.label(f"L2_loop_{tag}")
        for t in range(3, 7): step(t, slow, t == 6)
        a(f"s_cbranch_scc1 L2_loop_{tag}")
        for t in range(NSTEP - 4, NSTEP): step(t, slow)
        ul = 5 * NSTEP - 1
        lp = ul % 2; par = NSTEP % 2
        a(f"s_mul_i32 s34, s{S_SPLIT}, 4")
        a(f"s_mul_i32 s34, s34, s{S_W}")
        a(f"s_add_u32 s34, s34, s{S_W}")
        a("s_waitcnt lgkmcnt(0)")
        for r in range(4):
            a(f"s_cmp_eq_u32 s34, {r}")
            a(f"s_cbranch_scc1 L2_tail{r}_{tag}")
        for j in range(8): a(pv(lp, 1 - par, 4, j))
        a("s_branch L2_epi")
        for r in range(4):
            a.label(f"L2_tail{r}_{tag}")
            for j in range(4): a(qk(1 - lp, par, r, j, slow))
            for j in range(8):
                a(pv(lp, 1 - par, 4, j))
                if j == 0:
                    a(f"v_mov_b32 v{P(1-lp)+2}, 0"); a(f"v_mov_b32 v{P(1-lp)+3}, 0")
                if 2 <= j < 6: a(f"v_exp_f32 v{S(1-lp,0)+j-2}, v{S(1-lp,0)+j-2}")
                if j == 6:
                    for c in range(2): a(f"v_cvt_pk_bf16_f32 v{P(1-lp)+c}, v{S(1-lp,0)+2*c}, v{S(1-lp,0)+2*c+1}")
            for j in range(8): a(pv(1 - lp, par, r, j))
            a("s_branch L2_epi")
    main_loop(False)

    a.label("L2_slow")
    a("s_waitcnt lgkmcnt(0)")
    for ks in range(4): a(f"v_subrev_u32 v{232+ks}, s{S_RING}, v{KA(ks)}")
    for qb in range(5): a(f"v_mov_b32 v{CM(qb)}, 0xff800000")
    a("s_mov_b32 s34, 0")
    a.label("L2_max")
    for ks in range(4): a(f"buffer_load_dwordx4 {vr(KF(1,0,ks),4)}, v{232+ks}, s[8:11], s34 offen")
    a("s_waitcnt vmcnt(0)")
    for qb in range(5):
        for ks in range(4): a(f"{MF} {vr(160+4*qb,4)}, {vr(KF(1,0,ks),4)}, {ar(Q(qb,ks),4)}, {'0' if ks==0 else vr(160+4*qb,4)}")
    for qb in range(5):
        a(f"v_max3_f32 v{CM(qb)}, v{CM(qb)}, v{160+4*qb}, v{161+4*qb}")
        a(f"v_max3_f32 v{CM(qb)}, v{CM(qb)}, v{162+4*qb}, v{163+4*qb}")
    a("s_add_u32 s34, s34, 4096")
    a(f"s_cmp_lt_u32 s34, {N*256}")
    a("s_cbranch_scc1 L2_max")
    for x in (16, 32):
        a(f"v_xor_b32 v1, {x}, v0")
        a("v_lshlrev_b32 v1, 2, v1")
        for qb in range(5): a(f"ds_bpermute_b32 v{CM(qb)+1}, v1, v{CM(qb)}")
        a("s_waitcnt lgkmcnt(0)")
        for qb in range(5): a(f"v_max_f32 v{CM(qb)}, v{CM(qb)}, v{CM(qb)+1}")
    for qb in range(5):
        a(f"v_sub_f32 v{CM(qb)}, 0, v{CM(qb)}")
        for r in range(1, 4): a(f"v_mov_b32 v{CM(qb)+r}, v{CM(qb)}")
    main_loop(True)

    a.label("L2_epi")
    stamp()
    AM = lambda m, hf, ks: 160 + ((m * 2 + hf) * 4 + ks) * 4
    R = lambda qb: 32 + qb * 8
    T = lambda k: 72 + (k % 8) * 8
    a(f"s_lshl_b32 s40, s{S_W}, 13")
    a(f"s_add_u32 s40, s40, {MV_OFF}")
    a(f"v_add_u32 v1, s{S_RING}, v{VOFF0}")
    a(f"v_lshl_add_u32 v2, v0, 2, s{S_RING}")
    a("s_nop 3")
    order = [2, 3, 4, 0, 1]
    for m in range(2):
        for hf in range(2):
            a(f"s_add_u32 s41, s40, {m*(MM_OFF-MV_OFF) + hf*4096}")
            for ks in range(4): a(f"buffer_load_dwordx4 {ar(AM(m,hf,ks),4)}, v{VOFF0}, s[12:15], s41 offen offset:{ks*1024}")
    for s in range(1, 4):
        for qb in range(5):
            for h in range(2): a(f"ds_write_b128 v1, {ar(O(2*s+h,qb),4)} offset:{(s-1)*10240 + (qb*2+h)*1024}")
    for qb in range(3): a(f"ds_write_b32 v2, a{O(0,qb)} offset:{30720 + qb*256}")
    for qb in range(5):
        for h in range(2):
            for r in range(4): a(f"v_accvgpr_read_b32 v{R(qb)+4*h+r}, a{O(h,qb)+r}")
    for s in range(1, 4):
        a(f"s_sub_u32 s41, s{S_W}, {s}")
        a("s_and_b32 s41, s41, 3")
        a("s_lshl_b32 s41, s41, 15")
        a(f"v_add_u32 v{2+s}, s41, v{VOFF0}")
    a("s_xor_b32 s42, s2, 1")
    a(f"s_mul_i32 s42, s42, {XCH_WG}")
    a(f"s_mul_i32 s43, s{S_W}, 5120")
    a(f"s_add_u32 s43, s43, {XCH_OFF}")
    a("s_add_u32 s42, s42, s43")
    a(f"s_mul_i32 s44, s2, {XCH_WG}")
    a("s_add_u32 s43, s43, s44")
    a(f"s_add_u32 s44, s44, {XCH_OFF}")
    a(f"v_sub_u32 v6, 15, v{V_Q}")
    a("v_lshlrev_b32 v6, 6, v6")
    a(f"v_lshl_add_u32 v6, v{V_G}, 4, v6")
    a("v_add_u32 v7, 2048, v6")
    a(f"v_mov_b32 v30, {OOB}")
    a(f"v_cmp_lt_u32 vcc, 7, v{V_Q}")
    a("v_cndmask_b32 v7, v30, v7, vcc")
    a(f"v_lshlrev_b32 v30, 4, v{V_Q}")
    a(f"v_add_u32 v31, {2*RING}, v30")
    a(f"v_lshlrev_b32 v8, 2, v{V_Q}")
    a("s_waitcnt lgkmcnt(0)")
    a("s_barrier")
    stamp()
    rd = [(s, qb) for qb in order for s in range(3)]
    issued = 0
    def red_reads(upto):
        nonlocal issued
        while issued < min(upto, 15):
            s, qb = rd[issued]
            for h in range(2): a(f"ds_read_b128 {vr(T(issued)+4*h,4)}, v{3+s} offset:{s*10240 + (qb*2+h)*1024}")
            issued += 1
    red_reads(6)
    for n, qb in enumerate(order):
        for s in range(3):
            k = 3 * n + s
            a(f"s_waitcnt lgkmcnt({2*(issued-k-1)})")
            for i in range(8): a(f"v_add_f32 v{R(qb)+i}, v{R(qb)+i}, v{T(k)+i}")
            red_reads(k + 7)
        if qb >= 2:
            for h in range(2):
                va, off = (7, 0) if qb == 2 else (6, (4 - qb) * 1024)
                a(f"buffer_store_dwordx4 {vr(R(qb)+4*h,4)}, v{va}, s[12:15], s42 offen offset:{off + h*2560} sc1")
    LL = lambda b, k: 72 + b * 4 + k
    for b in range(3):
        a(f"ds_read_b32 v{LL(b,0)}, v8 offset:{30720 + b*256}")
        a(f"ds_read_b32 v{LL(b,1)}, v30 offset:{RING + 2*10240 + b*2048}")
        a(f"ds_read_b32 v{LL(b,2)}, v31 offset:{1*10240 + b*2048}")
        a(f"ds_read_b32 v{LL(b,3)}, v31 offset:{RING + b*2048}")
    AG = lambda j: 96 + 4 * j
    GV = lambda j: 128 + 4 * j
    for i in range(32): a(f"v_mov_b32 v{AG(0)+i}, 0")
    a(f"s_mul_i32 s45, s{S_W}, {LIST_B}")
    a(f"s_add_u32 s45, s45, {SPARE}")
    S_NB, S_I = 46, 47
    def build_list(tag):
        a(f"v_min_u32 v1, 16, v{V_TAB}")
        a("v_mov_b32 v2, v1")
        wave_scan(a, 2)
        a(f"v_readlane_b32 s{S_NB}, v2, 63")
        a("v_sub_u32 v2, v2, v1")
        a("v_lshl_add_u32 v2, v2, 2, s45")
        a(f"v_add_u32 v3, s{S_NB}, v0")
        a("v_lshl_add_u32 v3, v3, 2, s45")
        a("v_mov_b32 v4, 0x7fffff0f")
        a("ds_write_b32 v3, v4")
        for j in range(16):
            a(f"v_cmp_lt_u32 vcc, {j}, v1")
            a("s_and_b64 exec, exec, vcc")
            a(f"s_cbranch_execz L2_built_{tag}")
            a(f"ds_write_b32 v2, v{ENT(j)} offset:{4*j}")
        a.label(f"L2_built_{tag}")
        a("s_mov_b64 exec, -1")
        a(f"s_add_u32 s{S_NB}, s{S_NB}, 31")
        a(f"s_lshr_b32 s{S_NB}, s{S_NB}, 5")
    build_list("a")
    a(f"v_lshrrev_b32 v1, 1, v{V_Q}")
    a(f"v_xor_b32 v1, v1, v{V_G}")
    a("v_lshlrev_b32 v1, 5, v1")
    a(f"v_and_b32 v2, 1, v{V_Q}")
    a("v_lshl_or_b32 v9, v2, 4, v1")
    a("v_xor_b32 v10, 0x80, v9")
    a("v_lshlrev_b32 v11, 16, v29")
    a("s_mov_b32 s48, 0xfffffff0")
    a("s_waitcnt vmcnt(0) lgkmcnt(0)")
    for b in range(3):
        a(f"v_add_f32 v{LL(b,0)}, v{LL(b,0)}, v{LL(b,1)}")
        a(f"v_add_f32 v{LL(b,2)}, v{LL(b,2)}, v{LL(b,3)}")
    for b in range(3): a(f"v_add_f32 v{56+b}, v{LL(b,0)}, v{LL(b,2)}")
    a("s_barrier")
    stamp()
    a(f"s_cmp_lg_u32 s{S_W}, 0")
    a("s_cbranch_scc1 L2_noflag")
    a("s_lshl_b32 s41, s2, 7")
    a(f"s_add_u32 s41, s41, {FLG_OFF}")
    a("v_mov_b32 v1, 1")
    a("s_mov_b64 exec, 1")
    a("buffer_store_dword v1, off, s[12:15], s41 sc1")
    a("s_mov_b64 exec, -1")
    a.label("L2_noflag")
    a.label("L2_round")
    V_AD, V_OH = 60, 61
    GA = lambda i: 64 + i
    OH = lambda i: 84 + i
    OB = 92
    a(f"v_lshl_add_u32 v{V_AD}, v{V_G}, 5, s45")
    a(f"v_lshl_add_u32 v{V_OH}, v{V_G}, 2, s45")
    a(f"s_mov_b32 s{S_I}, 0")
    def issue(slot, off):
        a(f"ds_read_b128 {vr(GA(0),4)}, v{V_AD} offset:{off}")
        a(f"ds_read_b128 {vr(GA(4),4)}, v{V_AD} offset:{off+16}")
        a("s_waitcnt lgkmcnt(0)")
        for i in range(8):
            a(f"s_add_u32 m0, s{S_RING}, {slot*8192 + i*1024}")
            a(f"v_bitop3_b32 v{GA(i)}, v{GA(i)}, v{9 + i%2}, s48 bitop3:0x28")
            a(f"buffer_load_dwordx4 v{GA(i)}, s[8:11], 0 offen lds")
    for k in range(4):
        a(f"s_cmp_le_u32 s{S_NB}, {k}")
        a("s_cbranch_scc1 L2_primed")
        issue(k, k * 128)
    a.label("L2_primed")
    a.label("L2_agg")
    for k in range(4):
        a(f"s_cmp_ge_u32 s{S_I}, s{S_NB}")
        a("s_cbranch_scc1 L2_aggdone")
        for c in range(4): a(f"ds_read2_b32 {vr(OH(2*c),2)}, v{V_OH} offset0:{32*k + 16*(c%2) + 4*(c//2)} offset1:{32*k + 16*(c%2) + 4*(c//2) + 8}")
        a(f"s_sub_u32 s41, s{S_NB}, s{S_I}")
        a("s_cmp_ge_u32 s41, 4")
        a(f"s_cbranch_scc1 L2_w3_{k}")
        a("s_cmp_eq_u32 s41, 3")
        a(f"s_cbranch_scc1 L2_w2_{k}")
        a("s_cmp_eq_u32 s41, 2")
        a(f"s_cbranch_scc1 L2_w1_{k}")
        a("s_waitcnt vmcnt(0)")
        a.label(f"L2_w1_{k}")
        a("s_waitcnt vmcnt(8)")
        a.label(f"L2_w2_{k}")
        a("s_waitcnt vmcnt(16)")
        a.label(f"L2_w3_{k}")
        a("s_waitcnt vmcnt(24)")
        for j in range(16): a(f"ds_read_b64_tr_b16 {vr(GV(j//2)+2*(j%2),2)}, v{VA(j//2)} offset:{k*8192 + (j%2)*4096}")
        a("s_waitcnt lgkmcnt(15)")
        for c in range(4):
            a(f"v_lshlrev_b32 v{OB+c}, v{OH(2*c)}, v29")
            a(f"v_lshl_or_b32 v{OB+c}, v11, v{OH(2*c+1)}, v{OB+c}")
            a(f"v_and_b32 v{OB+c}, 0x40004000, v{OB+c}")
        for j in range(8):
            a(f"s_waitcnt lgkmcnt({14-2*j})")
            a(f"{MF} {vr(AG(j),4)}, {vr(GV(j),4)}, {vr(OB,4)}, {vr(AG(j),4)}")
        a(f"s_add_u32 s{S_I}, s{S_I}, 1")
        a("s_cmp_le_u32 s41, 4")
        a(f"s_cbranch_scc1 L2_nonext_{k}")
        issue(k, (4 + k) * 128)
        a.label(f"L2_nonext_{k}")
    a(f"v_add_u32 v{V_AD}, 512, v{V_AD}")
    a(f"v_add_u32 v{V_OH}, 512, v{V_OH}")
    a("s_branch L2_agg")
    a.label("L2_aggdone")
    a(f"v_cmp_lt_u32 vcc, 16, v{V_TAB}")
    a("s_nop 4")
    a("s_cbranch_vccz L2_aggend")
    a(f"v_subrev_u32 v{V_TAB}, 16, v{V_TAB}")
    a(f"v_max_i32 v{V_TAB}, 0, v{V_TAB}")
    a(f"v_add_u32 v{V_SEG}, 64, v{V_SEG}")
    for j in range(4): a(f"buffer_load_dwordx4 {vr(ENT(4*j),4)}, v{V_SEG}, s[12:15], 0 offen offset:{16*j}")
    a("s_waitcnt vmcnt(0)")
    build_list("b")
    a("s_waitcnt lgkmcnt(0)")
    a("s_branch L2_round")
    a.label("L2_aggend")
    stamp()
    a("s_xor_b32 s41, s2, 1")
    a("s_lshl_b32 s41, s41, 7")
    a(f"s_add_u32 s41, s41, {FLG_OFF}")
    a("s_mov_b32 s49, 0x400000")
    a.label("L2_poll")
    a("buffer_load_dword v1, off, s[12:15], s41 sc1")
    a("s_sub_u32 s49, s49, 1")
    a("s_cbranch_scc1 L2_got")
    a("s_waitcnt vmcnt(0)")
    a("v_readfirstlane_b32 s50, v1")
    a("s_cmp_eq_u32 s50, 1")
    a("s_cbranch_scc0 L2_poll")
    a.label("L2_got")
    a(f"v_lshlrev_b32 v1, 6, v{V_Q}")
    a(f"v_lshl_add_u32 v2, v{V_G}, 4, v1")
    a(f"v_mov_b32 v5, {OOB}")
    a("v_add_u32 v3, 2048, v1")
    a("v_add_u32 v4, 2048, v2")
    a(f"v_cmp_gt_u32 vcc, 8, v{V_Q}")
    a("v_cndmask_b32 v3, v5, v3, vcc")
    a("v_cndmask_b32 v4, v5, v4, vcc")
    PX = lambda b: 128 + 8 * b
    for b in range(3):
        a(f"buffer_load_dword v{152+b}, v{1 if b<2 else 3}, s[12:15], s44 offen offset:{(b%2)*1024} sc1")
    for b in range(3):
        for h in range(2): a(f"buffer_load_dwordx4 {vr(PX(b)+4*h,4)}, v{2 if b<2 else 4}, s[12:15], s43 offen offset:{(b%2)*1024 + h*2560} sc1")
    a(f"v_lshlrev_b32 v{V_DEG}, 16, v{V_DEG}")
    a(f"v_mul_f32 v{V_DEG}, 0.5, v{V_DEG}")
    for s in range(4):
        for i in range(8): a(f"v_mul_f32 v{AG(2*s)+i}, v{V_DEG}, v{AG(2*s)+i}")
        for c in range(4): a(f"v_cvt_pk_bf16_f32 v{AG(2*s)+c}, v{AG(2*s)+2*c}, v{AG(2*s)+2*c+1}")
        a(f"s_add_u32 s41, s{S_W}, {s}")
        a("s_and_b32 s41, s41, 3")
        a("s_lshl_b32 s41, s41, 10")
        a(f"s_add_u32 s41, s41, s{S_RING}")
        a(f"v_add_u32 v5, s41, v{VOFF0}")
        a(f"ds_write_b128 v5, {vr(AG(2*s),4)} offset:4096")
    FD = lambda b, hf: 64 + (b * 2 + hf) * 4
    a("s_mov_b32 s41, 0xffff0000")
    for b in range(3):
        for c in range(4):
            a(f"v_lshlrev_b32 v{FD(b,0)+2*c}, 16, v{XR(b)+c}")
            a(f"v_and_b32 v{FD(b,0)+2*c+1}, s41, v{XR(b)+c}")
    for b in range(3):
        a(f"v_add_u32 v5, {16*b}, v{V_Q}")
        a("v_mul_u32_u24 v6, 26, v5")
        a("v_lshrrev_b32 v6, 8, v6")
        a("v_min_u32 v6, 3, v6")
        a("v_mul_u32_u24 v7, 10, v6")
        a("v_sub_u32 v5, v5, v7")
        a("v_and_b32 v5, 15, v5")
        a(f"v_lshl_add_u32 v5, v{V_G}, 4, v5")
        a("v_lshlrev_b32 v5, 4, v5")
        a(f"v_lshl_add_u32 v{12+b}, v6, 15, v5")
    a(f"v_add_u32 v15, {2*RING}, v{VOFF0}")
    a(f"v_add_u32 v5, s{S_RING}, v{VOFF0}")
    a("s_waitcnt vmcnt(6)")
    for b in range(3): a(f"v_add_f32 v{56+b}, v{56+b}, v{152+b}")
    for b in range(3): a(f"v_rcp_f32 v{56+b}, v{56+b}")
    for b in range(3):
        a(f"s_waitcnt vmcnt({4-2*b})")
        for i in range(8): a(f"v_add_f32 v{R(b)+i}, v{R(b)+i}, v{PX(b)+i}")
        for i in range(8): a(f"v_mul_f32 v{R(b)+i}, v{56+b}, v{R(b)+i}")
        for c in range(4): a(f"v_cvt_pk_bf16_f32 v{R(b)+c}, v{R(b)+2*c}, v{R(b)+2*c+1}")
        a(f"ds_write_b128 v5, {vr(R(b),4)} offset:{b*1024}")
    a("s_waitcnt lgkmcnt(0)")
    a("s_barrier")
    stamp()
    BF = lambda b, m, ks: 96 + ((b * 2 + m) * 4 + ks) * 4
    for b in range(3):
        for ks in range(4): a(f"ds_read_b128 {vr(BF(b,1,ks),4)}, v{12+b} offset:{4096 + ks*1024}")
        for ks in range(4): a(f"ds_read_b128 {vr(BF(b,0,ks),4)}, v{VOFF0 if ks<2 else 15} offset:{(ks%2)*RING + b*1024}")
    a(f"v_add_u32 v7, s37, v{V_ROW}")
    for b in range(3):
        for m in (1, 0):
            n_after = 24 - (b * 8 + (4 if m == 1 else 8))
            a(f"s_waitcnt lgkmcnt({min(15, n_after)})")
            for hf in range(2):
                for ks in range(4): a(f"{MF} {vr(FD(b,hf),4)}, {ar(AM(m,hf,ks),4)}, {vr(BF(b,m,ks),4)}, {vr(FD(b,hf),4)}")
        if b > 0:
            for c in range(4): a(f"v_cvt_pk_bf16_f32 v{R(b-1)+c}, v{FD(b-1,0)+2*c}, v{FD(b-1,0)+2*c+1}")
            a(f"buffer_store_dwordx4 {vr(R(b-1),4)}, v{V_ROW if b==1 else 7}, s[20:23], 0 offen")
    for c in range(4): a(f"v_cvt_pk_bf16_f32 v{R(2)+c}, v{FD(2,0)+2*c}, v{FD(2,0)+2*c+1}")
    a(f"buffer_store_dwordx4 {vr(R(2),4)}, v{V_ROW2}, s[20:23], 0 offen")
    if stamps:
        a("s_waitcnt vmcnt(0)")
        stamp()
        a("s_memrealtime s[60:61]")
        a("s_waitcnt lgkmcnt(0)")
        a("s_lshl_b32 s40, s2, 2")
        a(f"s_add_u32 s40, s40, s{S_W}")
        a("s_lshl_b32 s40, s40, 6")
        srd(a, 8, 4, 1 << 20, ST_OFF)
        a("s_mov_b64 exec, 1")
        for i, r in enumerate([62, 60] + [64 + 2 * k for k in range(nst[0])]):
            a(f"v_mov_b32 v1, s{r}")
            a(f"buffer_store_dword v1, off, s[8:11], s40 offset:{4*i}")
    a.label("L2_end")
    a("s_endpgm")
def desc_k2(a):
    kernel_desc(a, NAME2, 512, 256, 96)
K2_LAUNCH = f"; @launch kernel={NAME2} grid=({NWG},1,1) block=(256,1,1) lds={LDS2}"
```

```python
import math
N, D, E = 10000, 128, 160000
HP_OFF  = 0
HQ_OFF  = 0x280000
MQ_OFF  = 0x500000
MV_OFF  = 0x508000
MM_OFF  = 0x510000
FLG_OFF = 0x518000
TAB_OFF = 0x520000
SEG_OFF = 0x560000
XCH_OFF = 0x600000
XCH_WG  = 4 * 40 * 4 * 16
NPROD, EPP = 64, 2500
CH = 1.0 / (math.sqrt(128.0) - 1.0)
RS128 = 1.0 / math.sqrt(128.0)
QSCALE = math.log2(math.e) / math.sqrt(128.0)
import struct
def f32(x): return "0x%08x" % struct.unpack("<I", struct.pack("<f", x))[0]
A_X, A_SRC, A_DST, A_DEG, A_WMSG, A_WQ, A_WK, A_WV, A_WOUT, A_OUT, A_DBG, A_WS = [8 * i for i in range(12)]
```

```python
import sys
from k1 import *
from k2 import *
import hazard
def build_all(path, stamps=False, verbose=False):
    a = Asm()
    hdr = open("gather_scatter__hybrid_graph_tf_graphgps__graph.s.ref").read().split("\n")
    for l in hdr:
        if l.startswith("; Override") : break
        a.raw(l)
    a.raw(K1_LAUNCH); a.raw(K2_LAUNCH)
    a.raw('.amdgcn_target "amdgcn-amd-amdhsa--gfx950"')
    gen_k1(a, stamps); gen_k2(a, stamps); desc_k1(a); desc_k2(a)
    rep = []
    t = hazard.fix(a.text(), rep)
    if verbose:
        for r in rep: print(r)
    open(path, "w").write(t)
if __name__ == "__main__":
    build_all("gather_scatter__hybrid_graph_tf_graphgps__graph.s", False, True)
    import k2
    k2.SKIP = tuple(int(x) for x in sys.argv[1].split(",")) if len(sys.argv) > 1 else ()
    build_all("full_st.s", True)
```

```python
from asmlib import *
from layout import *
NAME1 = "prep_kernel"
WG_W0, WG_LN0 = 64, 70
LN_WGS = 313
K1_GRID = WG_LN0 + LN_WGS

def dpp(op, d, s0, s1, ctl, rm="0xf", bc=False):
    return f"{op}_dpp v{d}, v{s0}, v{s1} {ctl} row_mask:{rm} bank_mask:0xf" + (" bound_ctrl:1" if bc else "")
def wave_scan(a, v):
    for k in (1, 2, 4, 8): a(dpp("v_add_u32", v, v, v, f"row_shr:{k}", bc=True))
    a(dpp("v_add_u32", v, v, v, "row_bcast:15", "0xa"))
    a(dpp("v_add_u32", v, v, v, "row_bcast:31", "0xc"))
def row_sum(a, vs):
    for k in (8, 4, 2, 1):
        for v in vs: a(dpp("v_add_f32", v, v, v, f"row_ror:{k}"))

def gen_k1(a, stamps=False):
    cnt = [0]
    def stamp(reset=False):
        if reset: cnt[0] = 1
        if not stamps: return
        i = cnt[0]; cnt[0] += 1
        a(f"s_memrealtime s[{64+2*i}:{65+2*i}]")
    def fin():
        if stamps:
            a("s_waitcnt vmcnt(0)")
            stamp()
            a("s_waitcnt lgkmcnt(0)")
            a("s_lshl_b32 s50, s2, 6")
            srd(a, 52, 4, 1 << 20, 0x1100000)
            a("s_mov_b64 exec, 1")
            for i in range(cnt[0]):
                a(f"v_mov_b32 v1, s{64+2*i}")
                a(f"buffer_store_dword v1, off, s[52:55], s50 offset:{4*i}")
        a("s_endpgm")
    kernel_begin(a, NAME1)
    stamp()
    a(f"s_cmp_ge_u32 s2, {K1_GRID}")
    a("s_cbranch_scc1 L1_end")
    a(f"s_load_dwordx2 s[4:5], s[0:1], {A_WS}")
    a(f"s_cmp_ge_u32 s2, {WG_LN0}")
    a("s_cbranch_scc1 L1_ln")
    a(f"s_cmp_ge_u32 s2, {WG_W0}")
    a("s_cbranch_scc1 L1_w")
    a(f"s_load_dwordx4 s[8:11], s[0:1], {A_SRC}")
    a("v_lshlrev_b32 v1, 4, v0")
    for i in range(4): a(f"v_mov_b32 v{4+i}, 0")
    a("ds_write_b128 v1, v[4:7]")
    a(f"s_mul_i32 s3, s2, {EPP*4}")
    a("v_lshlrev_b32 v2, 3, v0")
    a("s_waitcnt lgkmcnt(0)")
    stamp(True)
    srd(a, 12, 8, E * 4); srd(a, 16, 10, E * 4)
    srd(a, 20, 4, NPROD * 4096, TAB_OFF); srd(a, 24, 4, E * 4, SEG_OFF); srd(a, 28, 4, 256 * 128, FLG_OFF)
    DST = lambda i: 10 + i; SRC = lambda i: 20 + i; BK = lambda i: 30 + i; RK = lambda i: 40 + i
    a("s_add_u32 s6, s3, 4096")
    a("s_add_u32 s7, s3, 8192")
    for i in range(5):
        a(f"buffer_load_dwordx2 {vr(DST(2*i),2)}, v2, s[16:19], s{(3,3,6,6,7)[i]} offen offset:{(i%2)*2048}")
    for i in range(5):
        a(f"buffer_load_dwordx2 {vr(SRC(2*i),2)}, v2, s[12:15], s{(3,3,6,6,7)[i]} offen offset:{(i%2)*2048}")
    a("s_cmp_lg_u32 s2, 0")
    a("s_cbranch_scc1 L1_noflag")
    a("v_lshlrev_b32 v3, 7, v0")
    a("buffer_store_dword v4, v3, s[28:31], 0 offen")
    a.label("L1_noflag")
    a("s_barrier")
    a("s_mov_b32 s33, 52429")
    a("v_mov_b32 v8, 1")
    a(f"v_cmp_gt_u32 vcc, {EPP//2 - 4*256}, v0")
    a("s_mov_b64 s[34:35], vcc")
    a("s_waitcnt vmcnt(5)")
    stamp()
    for i in range(10):
        a(f"v_mul_u32_u24 v{BK(i)}, s33, v{DST(i)}")
        a(f"v_lshrrev_b32 v{BK(i)}, 19, v{BK(i)}")
        a(f"v_mul_u32_u24 v9, 10, v{BK(i)}")
        a(f"v_sub_u32 v{DST(i)}, v{DST(i)}, v9")
        a(f"v_lshlrev_b32 v{BK(i)}, 2, v{BK(i)}")
        if i == 8: a("s_mov_b64 exec, s[34:35]")
        a(f"ds_add_rtn_u32 v{RK(i)}, v{BK(i)}, v8")
    a("s_mov_b64 exec, -1")
    a("s_waitcnt vmcnt(0)")
    for i in range(10):
        a(f"v_and_b32 v9, 7, v{SRC(i)}")
        a(f"v_lshl_or_b32 v{DST(i)}, v9, 5, v{DST(i)}")
        a(f"v_lshl_or_b32 v{DST(i)}, v{SRC(i)}, 8, v{DST(i)}")
    a("s_waitcnt lgkmcnt(0)")
    a("s_barrier")
    stamp()
    a("ds_read_b128 v[4:7], v1")
    a("v_lshrrev_b32 v3, 6, v0")
    a("v_lshlrev_b32 v3, 2, v3")
    a("s_waitcnt lgkmcnt(0)")
    a("v_add_u32 v50, v4, v5")
    a("v_add_u32 v51, v50, v6")
    a("v_add_u32 v52, v51, v7")
    a("v_mov_b32 v53, v52")
    wave_scan(a, 53)
    a("v_and_b32 v9, 63, v0")
    a("v_cmp_eq_u32 vcc, 63, v9")
    a("s_and_saveexec_b64 s[36:37], vcc")
    a("ds_write_b32 v3, v53 offset:4096")
    a("s_mov_b64 exec, -1")
    a("v_mov_b32 v9, 0")
    a("s_waitcnt lgkmcnt(0)")
    a("s_barrier")
    a("ds_read_b128 v[56:59], v9 offset:4096")
    a("v_sub_u32 v53, v53, v52")
    a("v_readfirstlane_b32 s38, v3")
    a("s_waitcnt lgkmcnt(0)")
    for w in range(3):
        a(f"s_cmp_gt_u32 s38, {4*w}")
        a("s_cselect_b32 s39, -1, 0")
        a(f"v_and_b32 v9, s39, v{56+w}")
        a("v_add_u32 v53, v53, v9")
    a("v_mov_b32 v56, v53")
    a("v_add_u32 v57, v53, v4")
    a("v_add_u32 v58, v53, v50")
    a("v_add_u32 v59, v53, v51")
    a("ds_write_b128 v1, v[56:59]")
    for i in range(4): a(f"v_lshl_or_b32 v{60+i}, v{4+i}, 16, v{56+i}")
    a("s_lshl_b32 s39, s2, 12")
    a("buffer_store_dwordx4 v[60:63], v1, s[20:23], s39 offen")
    a("s_waitcnt lgkmcnt(0)")
    a("s_barrier")
    stamp()
    for i in range(10):
        if i == 8: a("s_mov_b64 exec, s[34:35]")
        a(f"ds_read_b32 v{BK(i)}, v{BK(i)}")
    a("s_mov_b64 exec, -1")
    for i in range(10):
        a(f"s_waitcnt lgkmcnt({9-i})")
        a(f"v_add_lshl_u32 v{BK(i)}, v{BK(i)}, v{RK(i)}, 2")
        if i == 8: a("s_mov_b64 exec, s[34:35]")
        a(f"buffer_store_dword v{DST(i)}, v{BK(i)}, s[24:27], s3 offen")
    fin()
    a.label("L1_w")
    a(f"s_load_dwordx8 s[8:15], s[0:1], {A_WMSG}")
    a(f"s_load_dwordx2 s[16:17], s[0:1], {A_WOUT}")
    a("v_lshrrev_b32 v1, 6, v0")
    a("v_and_b32 v0, 63, v0")
    a(f"s_sub_u32 s6, s2, {WG_W0}")
    a("v_readfirstlane_b32 s3, v1")
    a("v_and_b32 v2, 15, v0")
    a("v_lshrrev_b32 v3, 4, v0")
    a("s_and_b32 s7, s6, 1")
    a("s_lshl_b32 s7, s7, 2")
    a("s_add_u32 s7, s7, s3")
    a("s_lshr_b32 s6, s6, 1")
    a("v_lshlrev_b32 v4, 8, v2")
    a("v_lshl_add_u32 v4, v3, 4, v4")
    a("v_lshrrev_b32 v5, 3, v2")
    a("v_and_b32 v6, 3, v2")
    a("v_lshl_add_u32 v5, v5, 2, v6")
    a("v_bfe_u32 v6, v2, 2, 1")
    a("v_lshlrev_b32 v6, 12, v6")
    a("v_lshl_add_u32 v5, v5, 4, v6")
    a(f"s_mov_b32 s40, {f32(CH)}")
    a(f"s_mov_b32 s41, {f32(RS128)}")
    a(f"s_mov_b32 s42, {f32(QSCALE)}")
    BIG = lambda blk, ks: 32 + (blk * 4 + ks) * 4
    SM = lambda ks: 16 + ks * 4
    DD = lambda blk: 160 + blk * 4
    a("s_cmp_eq_u32 s6, 0")
    a("s_waitcnt lgkmcnt(0)")
    a("s_cbranch_scc0 L1_wv")
    stamp(True)
    srd(a, 20, 10, 32768); srd(a, 24, 12, 32768); srd(a, 28, 4, 32768, MQ_OFF)
    a("s_lshl_b32 s33, s7, 12")
    for ks in range(4): a(f"buffer_load_dwordx4 {vr(SM(ks),4)}, v4, s[20:23], s33 offen offset:{ks*64}")
    for blk in range(8):
        a(f"s_mov_b32 s34, {blk*4096}")
        for ks in range(4): a(f"buffer_load_dwordx4 {vr(BIG(blk,ks),4)}, v4, s[24:27], s34 offen offset:{ks*64}")
    a("v_lshrrev_b32 v6, 1, v3")
    a("v_lshl_add_u32 v5, v6, 8, v5")
    a("v_and_b32 v6, 1, v3")
    a("v_lshl_add_u32 v5, v6, 3, v5")
    a("s_lshr_b32 s34, s7, 1")
    a("s_lshl_b32 s34, s34, 10")
    a("s_and_b32 s35, s7, 1")
    a("s_lshl_b32 s35, s35, 9")
    a("s_add_u32 s34, s34, s35")
    for blk in range(8):
        a(f"s_waitcnt vmcnt({28-4*blk})")
        for ks in range(4):
            a(f"v_mfma_f32_16x16x32_bf16 {vr(DD(blk),4)}, {vr(SM(ks),4)}, {vr(BIG(blk,ks),4)}, {'0' if ks==0 else vr(DD(blk),4)}")
    stamp()
    for r in range(4): a(f"v_add_f32 v{8+r}, v{DD(0)+r}, v{DD(1)+r}")
    for blk in range(2, 8):
        for r in range(4): a(f"v_add_f32 v{8+r}, v{8+r}, v{DD(blk)+r}")
    row_sum(a, [8, 9, 10, 11])
    for r in range(4): a(f"v_mov_b32_dpp v{12+r}, v{DD(0)+r} row_newbcast:0 row_mask:0xf bank_mask:0xf")
    for r in range(4): a(f"v_fma_f32 v{8+r}, v{8+r}, s41, -v{12+r}")
    for r in range(4): a(f"v_mul_f32 v{8+r}, s40, v{8+r}")
    a("v_cmp_eq_u32 vcc, 0, v2")
    for blk in range(8):
        for r in range(4): a(f"v_sub_f32 v{DD(blk)+r}, v{DD(blk)+r}, v{8+r}")
        for r in range(4): a(f"v_mul_f32 v{DD(blk)+r}, s42, v{DD(blk)+r}")
        if blk == 0:
            for r in range(4): a(f"v_cndmask_b32 v{DD(0)+r}, v{DD(0)+r}, 0, vcc")
        a(f"v_cvt_pk_bf16_f32 v{DD(blk)}, v{DD(blk)}, v{DD(blk)+1}")
        a(f"v_cvt_pk_bf16_f32 v{DD(blk)+1}, v{DD(blk)+2}, v{DD(blk)+3}")
        a(f"s_add_u32 s35, s34, {(blk//2)*8192}")
        a(f"buffer_store_dwordx2 {vr(DD(blk),2)}, v5, s[28:31], s35 offen offset:{(blk%2)*128}")
    fin()
    a.label("L1_wv")
    stamp(True)
    a("s_cmp_eq_u32 s6, 1")
    a("s_cselect_b32 s20, s14, s8")
    a("s_cselect_b32 s21, s15, s9")
    a("s_mov_b32 s22, 32768")
    a("s_mov_b32 s23, 0x00020000")
    a(f"s_mov_b32 s33, {MM_OFF}")
    a(f"s_cselect_b32 s33, {MV_OFF}, s33")
    a("s_add_u32 s28, s4, s33")
    a("s_addc_u32 s29, s5, 0")
    a("s_mov_b32 s30, 32768")
    a("s_mov_b32 s31, 0x00020000")
    srd(a, 24, 16, 32768)
    a("v_lshlrev_b32 v6, 11, v3")
    a("v_lshl_add_u32 v6, v2, 1, v6")
    a("s_lshl_b32 s33, s7, 5")
    T = lambda ks, jj: 192 + ks * 8 + jj
    for ks in range(4):
        for jj in range(8): a(f"buffer_load_ushort v{T(ks,jj)}, v6, s[24:27], s33 offen offset:{jj*256}")
        a("s_add_u32 s33, s33, 8192")
    for blk in range(7):
        a(f"s_mov_b32 s34, {blk*4096}")
        for ks in range(4): a(f"buffer_load_dwordx4 {vr(BIG(blk,ks),4)}, v4, s[20:23], s34 offen offset:{ks*64}")
    a("v_lshl_add_u32 v5, v3, 8, v5")
    a("s_lshr_b32 s35, s7, 1")
    a("s_lshl_b32 s35, s35, 13")
    a("s_and_b32 s36, s7, 1")
    a("s_lshl_b32 s36, s36, 7")
    a("s_add_u32 s35, s35, s36")
    a("s_waitcnt vmcnt(28)")
    a(f"s_mov_b32 s34, {7*4096}")
    for ks in range(4): a(f"buffer_load_dwordx4 {vr(BIG(7,ks),4)}, v4, s[20:23], s34 offen offset:{ks*64}")
    for ks in range(4):
        for c in range(4): a(f"v_lshl_or_b32 v{SM(ks)+c}, v{T(ks,2*c+1)}, 16, v{T(ks,2*c)}")
    for blk in range(8):
        a(f"s_waitcnt vmcnt({28-4*blk})")
        for ks in range(4):
            a(f"v_mfma_f32_16x16x32_bf16 {vr(DD(blk),4)}, {vr(BIG(blk,ks),4)}, {vr(SM(ks),4)}, {'0' if ks==0 else vr(DD(blk),4)}")
    stamp()
    for r in range(4): a(f"v_add_f32 v{8+r}, v{DD(0)+r}, v{DD(1)+r}")
    for blk in range(2, 8):
        for r in range(4): a(f"v_add_f32 v{8+r}, v{8+r}, v{DD(blk)+r}")
    a("v_add_f32 v8, v8, v9")
    a("v_add_f32 v10, v10, v11")
    a("v_add_f32 v8, v8, v10")
    a("v_xor_b32 v9, 16, v0")
    a("v_lshlrev_b32 v9, 2, v9")
    a("ds_bpermute_b32 v10, v9, v8")
    a("v_lshlrev_b32 v11, 2, v2")
    a(f"ds_bpermute_b32 v12, v11, v{DD(0)}")
    a("v_xor_b32 v9, 32, v0")
    a("v_lshlrev_b32 v9, 2, v9")
    a("s_waitcnt lgkmcnt(0)")
    a("v_add_f32 v8, v8, v10")
    a("ds_bpermute_b32 v10, v9, v8")
    a("s_waitcnt lgkmcnt(0)")
    a("v_add_f32 v8, v8, v10")
    a("v_fma_f32 v8, v8, s41, -v12")
    a("v_mul_f32 v8, s40, v8")
    a("v_cmp_eq_u32 vcc, 0, v3")
    for blk in range(8):
        for r in range(4): a(f"v_sub_f32 v{DD(blk)+r}, v{DD(blk)+r}, v8")
    a(f"v_cndmask_b32 v{DD(0)}, v{DD(0)}, 0, vcc")
    for ks in range(4):
        for c in range(4): a(f"v_cvt_pk_bf16_f32 v{32+4*ks+c}, v{DD(2*ks)+2*c}, v{DD(2*ks)+2*c+1}")
        a(f"buffer_store_dwordx4 {vr(32+4*ks,4)}, v5, s[28:31], s35 offen offset:{ks*1024}")
    fin()
    a.label("L1_ln")
    a(f"s_load_dwordx2 s[6:7], s[0:1], {A_X}")
    a(f"s_sub_u32 s3, s2, {WG_LN0}")
    a("s_lshl_b32 s3, s3, 13")
    a("v_lshrrev_b32 v1, 6, v0")
    a("v_and_b32 v2, 63, v0")
    a("v_lshlrev_b32 v3, 4, v2")
    a("v_lshl_add_u32 v3, v1, 11, v3")
    a("v_and_b32 v4, 15, v0")
    a("v_lshrrev_b32 v5, 4, v2")
    a("s_waitcnt lgkmcnt(0)")
    stamp(True)
    srd(a, 8, 6, N * 256); srd(a, 12, 4, N * 256, HP_OFF); srd(a, 16, 4, N * 256, HQ_OFF)
    for i in range(2): a(f"buffer_load_dwordx4 {vr(8+4*i,4)}, v3, s[8:11], s3 offen offset:{i*1024}")
    for i in range(2):
        a(f"v_add_u32 v6, {4*i}, v5")
        a("v_lshlrev_b32 v6, 5, v6")
        a(f"v_xor_b32 v{16+i}, v3, v6")
    a("v_cmp_eq_u32 vcc, 0, v4")
    a(f"s_mov_b32 s20, {f32(1.0/128)}")
    a(f"s_mov_b32 s21, {f32(1e-5)}")
    a(f"s_mov_b32 s22, {f32(CH)}")
    a("s_mov_b32 s23, 0xffff0000")
    X = lambda i, k: 20 + 8 * i + k
    for i in range(2):
        a(f"s_waitcnt vmcnt({1-i})")
        for c in range(4):
            a(f"v_lshlrev_b32 v{X(i,2*c)}, 16, v{8+4*i+c}")
            a(f"v_and_b32 v{X(i,2*c+1)}, s23, v{8+4*i+c}")
    stamp()
    for i in range(2):
        a(f"v_add_f32 v{40+i}, v{X(i,0)}, v{X(i,1)}")
    for k in range(2, 8):
        for i in range(2): a(f"v_add_f32 v{40+i}, v{40+i}, v{X(i,k)}")
    row_sum(a, [40, 41])
    for i in range(2): a(f"v_mul_f32 v{40+i}, s20, v{40+i}")
    for k in range(8):
        for i in range(2): a(f"v_sub_f32 v{X(i,k)}, v{X(i,k)}, v{40+i}")
    for i in range(2): a(f"v_mul_f32 v{42+i}, v{X(i,0)}, v{X(i,0)}")
    for k in range(1, 8):
        for i in range(2): a(f"v_fmac_f32 v{42+i}, v{X(i,k)}, v{X(i,k)}")
    row_sum(a, [42, 43])
    a("v_mov_b32 v44, s21")
    for i in range(2): a(f"v_fma_f32 v{42+i}, v{42+i}, s20, v44")
    for i in range(2): a(f"v_rsq_f32 v{42+i}, v{42+i}")
    for k in range(8):
        for i in range(2): a(f"v_mul_f32 v{X(i,k)}, v{X(i,k)}, v{42+i}")
    a("v_mov_b32 v44, s22")
    for i in range(2): a(f"v_mul_f32_dpp v{40+i}, v{X(i,0)}, v44 row_newbcast:0 row_mask:0xf bank_mask:0xf")
    for i in range(2):
        for c in range(4): a(f"v_cvt_pk_bf16_f32 v{8+4*i+c}, v{X(i,2*c)}, v{X(i,2*c+1)}")
        a(f"buffer_store_dwordx4 {vr(8+4*i,4)}, v3, s[16:19], s3 offen offset:{i*1024}")
    for k in range(8):
        for i in range(2): a(f"v_add_f32 v{X(i,k)}, v{X(i,k)}, v{40+i}")
    for i in range(2): a(f"v_cndmask_b32 v{X(i,0)}, v{X(i,0)}, 1.0, vcc")
    for i in range(2):
        for c in range(4): a(f"v_cvt_pk_bf16_f32 v{48+4*i+c}, v{X(i,2*c)}, v{X(i,2*c+1)}")
        a(f"buffer_store_dwordx4 {vr(48+4*i,4)}, v{16+i}, s[12:15], s3 offen offset:{i*1024}")
    fin()
    a.label("L1_end")
    a("s_endpgm")
def desc_k1(a):
    kernel_desc(a, NAME1, 224, 224, 96)
K1_LAUNCH = f"; @launch kernel={NAME1} grid=({K1_GRID},1,1) block=(256,1,1) lds=4352"
```

```python
from build import *
base = "v_base.s"
build_all(base)
t = open(base).read()
DIAG = 0x1200000
k1_start = "prep_kernel:\n    s_memrealtime s[70:71]\n"
t1 = t.replace("prep_kernel:\n", k1_start)
t1 = t1.replace("    v_lshlrev_b32 v3, 7, v0\n", f"""    v_lshlrev_b32 v3, 7, v0
    s_add_u32 s52, s4, {DIAG}
    s_addc_u32 s53, s5, 0
    s_mov_b32 s54, 64
    s_mov_b32 s55, 0x00020000
    v_mov_b32 v9, s70
    buffer_store_dword v9, off, s[52:55], 0
""")
t1 = t1.replace("attn_kernel:\n", "attn_kernel:\n    s_memrealtime s[70:71]\n")
t1 = t1.replace("    s_mov_b32 s33, 8\n", "    s_memrealtime s[72:73]\n    s_mov_b32 s33, 8\n", 1)
t1 = t1.replace("L2_epi:\n", "L2_epi:\n    s_memrealtime s[74:75]\n")
for nm, lo, hi in (("d1", "s78", "s70"), ("d2", "s70", "s72"), ("d3", "s72", "s74"), ("d4", "s74", "s76"), ("d0", "s70", "s70")):
    fin = f"""    s_waitcnt vmcnt(0)
    s_cmp_lg_u32 s2, 0
    s_cbranch_scc1 L2_end
    s_add_u32 s52, s4, {DIAG}
    s_addc_u32 s53, s5, 0
    s_load_dword s78, s[52:53], 0
    s_memrealtime s[76:77]
    s_waitcnt lgkmcnt(0)
    s_sub_u32 s79, {hi}, {lo}
    s_lshl_b32 s79, s79, 2
    s_min_u32 s79, s79, 40000
L2_spin:
    s_memrealtime s[80:81]
    s_waitcnt lgkmcnt(0)
    s_sub_u32 s80, s80, s76
    s_cmp_lt_u32 s80, s79
    s_cbranch_scc1 L2_spin
L2_end:
"""
    open(f"v_{nm}.s", "w").write(t1.replace("L2_end:\n", fin))
```

```python
from asmlib import *
from layout import *
NAME1 = "prep_kernel"
WG_W0, WG_LN0 = 64, 88
ST1 = ''
LN_WGS = 313
K1_GRID = WG_LN0 + LN_WGS

def dpp(op, d, s0, s1, ctl, rm="0xf", bc=False):
    return f"{op}_dpp v{d}, v{s0}, v{s1} {ctl} row_mask:{rm} bank_mask:0xf" + (" bound_ctrl:1" if bc else "")
def wave_scan(a, v):
    for k in (1, 2, 4, 8): a(dpp("v_add_u32", v, v, v, f"row_shr:{k}", bc=True))
    a(dpp("v_add_u32", v, v, v, "row_bcast:15", "0xa"))
    a(dpp("v_add_u32", v, v, v, "row_bcast:31", "0xc"))
def row_sum(a, vs):
    for k in (8, 4, 2, 1):
        for v in vs: a(dpp("v_add_f32", v, v, v, f"row_ror:{k}"))

def gen_k1(a, stamps=False):
    cnt = [0]
    def stamp(reset=False):
        if reset: cnt[0] = 1
        if not stamps: return
        i = cnt[0]; cnt[0] += 1
        a(f"s_memrealtime s[{64+2*i}:{65+2*i}]")
    def fin():
        if stamps:
            a("s_waitcnt vmcnt(0)")
            stamp()
            a("s_waitcnt lgkmcnt(0)")
            a("s_lshl_b32 s50, s2, 6")
            srd(a, 52, 4, 1 << 20, 0x1100000)
            a("s_mov_b64 exec, 1")
            for i in range(cnt[0]):
                a(f"v_mov_b32 v1, s{64+2*i}")
                a(f"buffer_store_dword v1, off, s[52:55], s50 offset:{4*i}")
        a("s_endpgm")
    kernel_begin(a, NAME1)
    stamp()
    a(f"s_cmp_ge_u32 s2, {K1_GRID}")
    a("s_cbranch_scc1 L1_end")
    a(f"s_load_dwordx2 s[4:5], s[0:1], {A_WS}")
    a(f"s_cmp_ge_u32 s2, {WG_LN0}")
    a("s_cbranch_scc1 L1_ln")
    a(f"s_cmp_ge_u32 s2, {WG_W0}")
    a("s_cbranch_scc1 L1_w")
    a(f"s_load_dwordx4 s[8:11], s[0:1], {A_SRC}")
    a("v_lshlrev_b32 v1, 4, v0")
    for i in range(4): a(f"v_mov_b32 v{4+i}, 0")
    a("ds_write_b128 v1, v[4:7]")
    a(f"s_mul_i32 s3, s2, {EPP*4}")
    a("v_lshlrev_b32 v2, 3, v0")
    a("s_waitcnt lgkmcnt(0)")
    stamp(True)
    srd(a, 12, 8, E * 4); srd(a, 16, 10, E * 4)
    srd(a, 20, 4, NPROD * 4096, TAB_OFF); srd(a, 24, 4, E * 4, SEG_OFF); srd(a, 28, 4, 256 * 128, FLG_OFF)
    DST = lambda i: 10 + i; SRC = lambda i: 20 + i; BK = lambda i: 30 + i; RK = lambda i: 40 + i
    a("s_add_u32 s6, s3, 4096")
    a("s_add_u32 s7, s3, 8192")
    for i in range(5):
        a(f"buffer_load_dwordx2 {vr(DST(2*i),2)}, v2, s[16:19], s{(3,3,6,6,7)[i]} offen offset:{(i%2)*2048}")
    for i in range(5):
        a(f"buffer_load_dwordx2 {vr(SRC(2*i),2)}, v2, s[12:15], s{(3,3,6,6,7)[i]} offen offset:{(i%2)*2048}")
    a("s_cmp_lg_u32 s2, 0")
    a("s_cbranch_scc1 L1_noflag")
    a("v_lshlrev_b32 v3, 7, v0")
    a("buffer_store_dword v4, v3, s[28:31], 0 offen")
    a.label("L1_noflag")
    a("s_barrier")
    a("s_mov_b32 s33, 52429")
    a("v_mov_b32 v8, 1")
    a(f"v_cmp_gt_u32 vcc, {EPP//2 - 4*256}, v0")
    a("s_mov_b64 s[34:35], vcc")
    a("s_waitcnt vmcnt(5)")
    stamp()
    for i in range(10):
        a(f"v_mul_u32_u24 v{BK(i)}, s33, v{DST(i)}")
        a(f"v_lshrrev_b32 v{BK(i)}, 19, v{BK(i)}")
        a(f"v_mul_u32_u24 v9, 10, v{BK(i)}")
        a(f"v_sub_u32 v{DST(i)}, v{DST(i)}, v9")
        a(f"v_lshlrev_b32 v{BK(i)}, 2, v{BK(i)}")
        if i == 8: a("s_mov_b64 exec, s[34:35]")
        a(f"ds_add_rtn_u32 v{RK(i)}, v{BK(i)}, v8")
    a("s_mov_b64 exec, -1")
    a("s_waitcnt vmcnt(0)")
    for i in range(10):
        a(f"v_and_b32 v9, 7, v{SRC(i)}")
        a(f"v_lshl_or_b32 v{DST(i)}, v9, 5, v{DST(i)}")
        a(f"v_lshl_or_b32 v{DST(i)}, v{SRC(i)}, 8, v{DST(i)}")
    a("s_waitcnt lgkmcnt(0)")
    a("s_barrier")
    stamp()
    a("ds_read_b128 v[4:7], v1")
    a("v_lshrrev_b32 v3, 6, v0")
    a("v_lshlrev_b32 v3, 2, v3")
    a("s_waitcnt lgkmcnt(0)")
    a("v_add_u32 v50, v4, v5")
    a("v_add_u32 v51, v50, v6")
    a("v_add_u32 v52, v51, v7")
    a("v_mov_b32 v53, v52")
    wave_scan(a, 53)
    a("v_and_b32 v9, 63, v0")
    a("v_cmp_eq_u32 vcc, 63, v9")
    a("s_and_saveexec_b64 s[36:37], vcc")
    a("ds_write_b32 v3, v53 offset:4096")
    a("s_mov_b64 exec, -1")
    a("v_mov_b32 v9, 0")
    a("s_waitcnt lgkmcnt(0)")
    a("s_barrier")
    a("ds_read_b128 v[56:59], v9 offset:4096")
    a("v_sub_u32 v53, v53, v52")
    a("v_readfirstlane_b32 s38, v3")
    a("s_waitcnt lgkmcnt(0)")
    for w in range(3):
        a(f"s_cmp_gt_u32 s38, {4*w}")
        a("s_cselect_b32 s39, -1, 0")
        a(f"v_and_b32 v9, s39, v{56+w}")
        a("v_add_u32 v53, v53, v9")
    a("v_mov_b32 v56, v53")
    a("v_add_u32 v57, v53, v4")
    a("v_add_u32 v58, v53, v50")
    a("v_add_u32 v59, v53, v51")
    a("ds_write_b128 v1, v[56:59]")
    for i in range(4): a(f"v_lshl_or_b32 v{60+i}, v{4+i}, 16, v{56+i}")
    a("s_lshl_b32 s39, s2, 12")
    a("buffer_store_dwordx4 v[60:63], v1, s[20:23], s39 offen" + ST1)
    a("s_waitcnt lgkmcnt(0)")
    a("s_barrier")
    stamp()
    for i in range(10):
        if i == 8: a("s_mov_b64 exec, s[34:35]")
        a(f"ds_read_b32 v{BK(i)}, v{BK(i)}")
    a("s_mov_b64 exec, -1")
    for i in range(10):
        a(f"s_waitcnt lgkmcnt(9)")
        a(f"v_add_lshl_u32 v{BK(i)}, v{BK(i)}, v{RK(i)}, 2")
        if i == 8: a("s_mov_b64 exec, s[34:35]")
        a(f"ds_write_b32 v{BK(i)}, v{DST(i)} offset:8192")
    a("s_mov_b64 exec, -1")
    a(f"v_cmp_gt_u32 vcc, {EPP//4 - 512}, v0")
    a(f"v_mov_b32 v9, 0x7fffff00")
    a("v_cndmask_b32 v9, v9, v1, vcc")
    a("s_waitcnt lgkmcnt(0)")
    a("s_barrier")
    for i in range(3): a(f"ds_read_b128 {vr(12+4*i,4)}, v1 offset:{8192+4096*i}")
    for i in range(3):
        a(f"s_waitcnt lgkmcnt({2-i})")
        a(f"buffer_store_dwordx4 {vr(12+4*i,4)}, v{1 if i<2 else 9}, s[24:27], s{(3,6,7)[i]} offen{ST1}")
    fin()
    a.label("L1_w")
    a(f"s_load_dwordx8 s[8:15], s[0:1], {A_WMSG}")
    a(f"s_load_dwordx2 s[16:17], s[0:1], {A_WOUT}")
    a("v_readfirstlane_b32 s3, v0")
    a(f"s_sub_u32 s6, s2, {WG_W0}")
    a("s_cmp_lg_u32 s3, 0")
    a("s_cbranch_scc1 L1_end")
    a("v_and_b32 v2, 15, v0")
    a("v_lshrrev_b32 v3, 4, v0")
    a("s_and_b32 s7, s6, 7")
    a("s_lshr_b32 s6, s6, 3")
    a("v_lshlrev_b32 v4, 8, v2")
    a("v_lshl_add_u32 v4, v3, 4, v4")
    a("v_lshrrev_b32 v5, 3, v2")
    a("v_and_b32 v6, 3, v2")
    a("v_lshl_add_u32 v5, v5, 2, v6")
    a("v_bfe_u32 v6, v2, 2, 1")
    a("v_lshlrev_b32 v6, 12, v6")
    a("v_lshl_add_u32 v5, v5, 4, v6")
    a(f"s_mov_b32 s40, {f32(CH)}")
    a(f"s_mov_b32 s41, {f32(RS128)}")
    a(f"s_mov_b32 s42, {f32(QSCALE)}")
    BIG = lambda blk, ks: 32 + (blk * 4 + ks) * 4
    SM = lambda ks: 16 + ks * 4
    DD = lambda blk: 160 + blk * 4
    a("s_cmp_eq_u32 s6, 0")
    a("s_waitcnt lgkmcnt(0)")
    a("s_cbranch_scc0 L1_wv")
    stamp(True)
    srd(a, 20, 10, 32768); srd(a, 24, 12, 32768); srd(a, 28, 4, 32768, MQ_OFF)
    a("s_lshl_b32 s33, s7, 12")
    for ks in range(4): a(f"buffer_load_dwordx4 {vr(SM(ks),4)}, v4, s[20:23], s33 offen offset:{ks*64}")
    for blk in range(8):
        a(f"s_mov_b32 s34, {blk*4096}")
        for ks in range(4): a(f"buffer_load_dwordx4 {vr(BIG(blk,ks),4)}, v4, s[24:27], s34 offen offset:{ks*64}")
    a("v_lshrrev_b32 v6, 1, v3")
    a("v_lshl_add_u32 v5, v6, 8, v5")
    a("v_and_b32 v6, 1, v3")
    a("v_lshl_add_u32 v5, v6, 3, v5")
    a("s_lshr_b32 s34, s7, 1")
    a("s_lshl_b32 s34, s34, 10")
    a("s_and_b32 s35, s7, 1")
    a("s_lshl_b32 s35, s35, 9")
    a("s_add_u32 s34, s34, s35")
    for blk in range(8):
        a(f"s_waitcnt vmcnt({28-4*blk})")
        for ks in range(4):
            a(f"v_mfma_f32_16x16x32_bf16 {vr(DD(blk),4)}, {vr(SM(ks),4)}, {vr(BIG(blk,ks),4)}, {'0' if ks==0 else vr(DD(blk),4)}")
    stamp()
    for r in range(4): a(f"v_add_f32 v{8+r}, v{DD(0)+r}, v{DD(1)+r}")
    for blk in range(2, 8):
        for r in range(4): a(f"v_add_f32 v{8+r}, v{8+r}, v{DD(blk)+r}")
    row_sum(a, [8, 9, 10, 11])
    for r in range(4): a(f"v_mov_b32_dpp v{12+r}, v{DD(0)+r} row_newbcast:0 row_mask:0xf bank_mask:0xf")
    for r in range(4): a(f"v_fma_f32 v{8+r}, v{8+r}, s41, -v{12+r}")
    for r in range(4): a(f"v_mul_f32 v{8+r}, s40, v{8+r}")
    a("v_cmp_eq_u32 vcc, 0, v2")
    for blk in range(8):
        for r in range(4): a(f"v_sub_f32 v{DD(blk)+r}, v{DD(blk)+r}, v{8+r}")
        for r in range(4): a(f"v_mul_f32 v{DD(blk)+r}, s42, v{DD(blk)+r}")
        if blk == 0:
            for r in range(4): a(f"v_cndmask_b32 v{DD(0)+r}, v{DD(0)+r}, 0, vcc")
        a(f"v_cvt_pk_bf16_f32 v{DD(blk)}, v{DD(blk)}, v{DD(blk)+1}")
        a(f"v_cvt_pk_bf16_f32 v{DD(blk)+1}, v{DD(blk)+2}, v{DD(blk)+3}")
        a(f"s_add_u32 s35, s34, {(blk//2)*8192}")
        a(f"buffer_store_dwordx2 {vr(DD(blk),2)}, v5, s[28:31], s35 offen offset:{(blk%2)*128}{ST1}")
    fin()
    a.label("L1_wv")
    stamp(True)
    a("s_cmp_eq_u32 s6, 1")
    a("s_cselect_b32 s20, s14, s8")
    a("s_cselect_b32 s21, s15, s9")
    a("s_mov_b32 s22, 32768")
    a("s_mov_b32 s23, 0x00020000")
    a(f"s_mov_b32 s33, {MM_OFF}")
    a(f"s_cselect_b32 s33, {MV_OFF}, s33")
    a("s_add_u32 s28, s4, s33")
    a("s_addc_u32 s29, s5, 0")
    a("s_mov_b32 s30, 32768")
    a("s_mov_b32 s31, 0x00020000")
    srd(a, 24, 16, 32768)
    a("v_lshlrev_b32 v6, 11, v3")
    a("v_lshl_add_u32 v6, v2, 1, v6")
    a("s_lshl_b32 s33, s7, 5")
    T = lambda ks, jj: 192 + ks * 8 + jj
    for ks in range(4):
        for jj in range(8): a(f"buffer_load_ushort v{T(ks,jj)}, v6, s[24:27], s33 offen offset:{jj*256}")
        a("s_add_u32 s33, s33, 8192")
    for blk in range(7):
        a(f"s_mov_b32 s34, {blk*4096}")
        for ks in range(4): a(f"buffer_load_dwordx4 {vr(BIG(blk,ks),4)}, v4, s[20:23], s34 offen offset:{ks*64}")
    a("v_lshl_add_u32 v5, v3, 8, v5")
    a("s_lshr_b32 s35, s7, 1")
    a("s_lshl_b32 s35, s35, 13")
    a("s_and_b32 s36, s7, 1")
    a("s_lshl_b32 s36, s36, 7")
    a("s_add_u32 s35, s35, s36")
    a("s_waitcnt vmcnt(28)")
    a(f"s_mov_b32 s34, {7*4096}")
    for ks in range(4): a(f"buffer_load_dwordx4 {vr(BIG(7,ks),4)}, v4, s[20:23], s34 offen offset:{ks*64}")
    for ks in range(4):
        for c in range(4): a(f"v_lshl_or_b32 v{SM(ks)+c}, v{T(ks,2*c+1)}, 16, v{T(ks,2*c)}")
    for blk in range(8):
        a(f"s_waitcnt vmcnt({28-4*blk})")
        for ks in range(4):
            a(f"v_mfma_f32_16x16x32_bf16 {vr(DD(blk),4)}, {vr(BIG(blk,ks),4)}, {vr(SM(ks),4)}, {'0' if ks==0 else vr(DD(blk),4)}")
    stamp()
    for r in range(4): a(f"v_add_f32 v{8+r}, v{DD(0)+r}, v{DD(1)+r}")
    for blk in range(2, 8):
        for r in range(4): a(f"v_add_f32 v{8+r}, v{8+r}, v{DD(blk)+r}")
    a("v_add_f32 v8, v8, v9")
    a("v_add_f32 v10, v10, v11")
    a("v_add_f32 v8, v8, v10")
    a("v_xor_b32 v9, 16, v0")
    a("v_lshlrev_b32 v9, 2, v9")
    a("ds_bpermute_b32 v10, v9, v8")
    a("v_lshlrev_b32 v11, 2, v2")
    a(f"ds_bpermute_b32 v12, v11, v{DD(0)}")
    a("v_xor_b32 v9, 32, v0")
    a("v_lshlrev_b32 v9, 2, v9")
    a("s_waitcnt lgkmcnt(0)")
    a("v_add_f32 v8, v8, v10")
    a("ds_bpermute_b32 v10, v9, v8")
    a("s_waitcnt lgkmcnt(0)")
    a("v_add_f32 v8, v8, v10")
    a("v_fma_f32 v8, v8, s41, -v12")
    a("v_mul_f32 v8, s40, v8")
    a("v_cmp_eq_u32 vcc, 0, v3")
    for blk in range(8):
        for r in range(4): a(f"v_sub_f32 v{DD(blk)+r}, v{DD(blk)+r}, v8")
    a(f"v_cndmask_b32 v{DD(0)}, v{DD(0)}, 0, vcc")
    for ks in range(4):
        for c in range(4): a(f"v_cvt_pk_bf16_f32 v{32+4*ks+c}, v{DD(2*ks)+2*c}, v{DD(2*ks)+2*c+1}")
        a(f"buffer_store_dwordx4 {vr(32+4*ks,4)}, v5, s[28:31], s35 offen offset:{ks*1024}{ST1}")
    fin()
    a.label("L1_ln")
    a(f"s_load_dwordx2 s[6:7], s[0:1], {A_X}")
    a(f"s_sub_u32 s3, s2, {WG_LN0}")
    a("s_lshl_b32 s3, s3, 13")
    a("v_lshrrev_b32 v1, 6, v0")
    a("v_and_b32 v2, 63, v0")
    a("v_lshlrev_b32 v3, 4, v2")
    a("v_lshl_add_u32 v3, v1, 11, v3")
    a("v_and_b32 v4, 15, v0")
    a("v_lshrrev_b32 v5, 4, v2")
    a("s_waitcnt lgkmcnt(0)")
    stamp(True)
    srd(a, 8, 6, N * 256); srd(a, 12, 4, N * 256, HP_OFF); srd(a, 16, 4, N * 256, HQ_OFF)
    for i in range(2): a(f"buffer_load_dwordx4 {vr(8+4*i,4)}, v3, s[8:11], s3 offen offset:{i*1024}")
    for i in range(2):
        a(f"v_add_u32 v6, {4*i}, v5")
        a("v_lshlrev_b32 v6, 5, v6")
        a(f"v_xor_b32 v{16+i}, v3, v6")
    a("v_cmp_eq_u32 vcc, 0, v4")
    a(f"s_mov_b32 s20, {f32(1.0/128)}")
    a(f"s_mov_b32 s21, {f32(1e-5)}")
    a(f"s_mov_b32 s22, {f32(CH)}")
    a("s_mov_b32 s23, 0xffff0000")
    X = lambda i, k: 20 + 8 * i + k
    for i in range(2):
        a(f"s_waitcnt vmcnt({1-i})")
        for c in range(4):
            a(f"v_lshlrev_b32 v{X(i,2*c)}, 16, v{8+4*i+c}")
            a(f"v_and_b32 v{X(i,2*c+1)}, s23, v{8+4*i+c}")
    stamp()
    for i in range(2):
        a(f"v_add_f32 v{40+i}, v{X(i,0)}, v{X(i,1)}")
    for k in range(2, 8):
        for i in range(2): a(f"v_add_f32 v{40+i}, v{40+i}, v{X(i,k)}")
    row_sum(a, [40, 41])
    for i in range(2): a(f"v_mul_f32 v{40+i}, s20, v{40+i}")
    for k in range(8):
        for i in range(2): a(f"v_sub_f32 v{X(i,k)}, v{X(i,k)}, v{40+i}")
    for i in range(2): a(f"v_mul_f32 v{42+i}, v{X(i,0)}, v{X(i,0)}")
    for k in range(1, 8):
        for i in range(2): a(f"v_fmac_f32 v{42+i}, v{X(i,k)}, v{X(i,k)}")
    row_sum(a, [42, 43])
    a("v_mov_b32 v44, s21")
    for i in range(2): a(f"v_fma_f32 v{42+i}, v{42+i}, s20, v44")
    for i in range(2): a(f"v_rsq_f32 v{42+i}, v{42+i}")
    for k in range(8):
        for i in range(2): a(f"v_mul_f32 v{X(i,k)}, v{X(i,k)}, v{42+i}")
    a("v_mov_b32 v44, s22")
    for i in range(2): a(f"v_mul_f32_dpp v{40+i}, v{X(i,0)}, v44 row_newbcast:0 row_mask:0xf bank_mask:0xf")
    for i in range(2):
        for c in range(4): a(f"v_cvt_pk_bf16_f32 v{8+4*i+c}, v{X(i,2*c)}, v{X(i,2*c+1)}")
        a(f"buffer_store_dwordx4 {vr(8+4*i,4)}, v{16+i}, s[16:19], s3 offen offset:{i*1024}{ST1}")
    for k in range(8):
        for i in range(2): a(f"v_add_f32 v{X(i,k)}, v{X(i,k)}, v{40+i}")
    for i in range(2): a(f"v_cndmask_b32 v{X(i,0)}, v{X(i,0)}, 1.0, vcc")
    for i in range(2):
        for c in range(4): a(f"v_cvt_pk_bf16_f32 v{48+4*i+c}, v{X(i,2*c)}, v{X(i,2*c+1)}")
        a(f"buffer_store_dwordx4 {vr(48+4*i,4)}, v{16+i}, s[12:15], s3 offen offset:{i*1024}{ST1}")
    fin()
    a.label("L1_end")
    a("s_endpgm")
def desc_k1(a):
    kernel_desc(a, NAME1, 224, 224, 96)
K1_LAUNCH = f"; @launch kernel={NAME1} grid=({K1_GRID},1,1) block=(256,1,1) lds=20480"
```

```python
from asmlib import *
from layout import *
from k1 import wave_scan
NAME2 = "attn_kernel"
NWG = 250
NSTEP = 39
RING = 32768
SPARE = 4 * RING
LIST_B = 1088 * 4
OFR = SPARE + 20480
LDS2 = OFR + 12288
LREG = SPARE + 4 * LIST_B
ST2 = ''
SKIP = ()
WS_BYTES = XCH_OFF + NWG * XCH_WG
MF = "v_mfma_f32_16x16x32_bf16"
OOB = "0x7fffff00"
NORM2_MAX = 49.0
O = lambda j, qb: (qb * 8 + j) * 4
Q = lambda qb, ks: 160 + (qb * 4 + ks) * 4
KF = lambda par, kb, ks: 32 + par * 32 + (kb * 4 + ks) * 4
VF = lambda par, j: 96 + par * 32 + j * 4
S = lambda par, kb: 160 + par * 8 + kb * 4
P = lambda par: 176 + par * 4
KA = lambda ks: 8 + ks
VA = lambda j: 12 + j
VOFF0, VOFF1 = 20, 21
V_TAB, V_SEG, V_Q, V_G = 22, 23, 24, 25
V_DEG, V_ROW = 26, 27
V_ROW2 = 28
ENT = lambda j: 184 + j
CM = lambda qb: 200 + qb * 4
XR = lambda b: 220 + b * 4
S_W, S_TILE, S_SPLIT, S_RING, S_KOFF, S_CNT = 3, 28, 29, 30, 31, 33
ST_OFF = 0x1000000

def gen_k2(a, stamps=False):
    nst = [0]
    seq = [0]
    def stamp():
        seq[0] += 1
        if not stamps or (SKIP and seq[0] in SKIP): return
        i = nst[0]; nst[0] += 1
        a(f"s_memtime s[{64+2*i}:{65+2*i}]")
    kernel_begin(a, NAME2)
    a(f"s_cmp_ge_u32 s2, {NWG}")
    a("s_cbranch_scc1 L2_end")
    a(f"s_load_dwordx2 s[4:5], s[0:1], {A_WS}")
    a(f"s_load_dwordx2 s[16:17], s[0:1], {A_X}")
    a(f"s_load_dwordx2 s[20:21], s[0:1], {A_OUT}")
    a(f"s_load_dwordx2 s[24:25], s[0:1], {A_DEG}")
    if stamps: a("s_memrealtime s[62:63]")
    stamp()
    a("v_lshrrev_b32 v1, 6, v0")
    a("v_and_b32 v0, 63, v0")
    a(f"s_lshr_b32 s{S_TILE}, s2, 1")
    a(f"v_readfirstlane_b32 s{S_W}, v1")
    a("s_lshr_b32 s34, s2, 3")
    a("s_xor_b32 s34, s34, s2")
    a(f"s_and_b32 s{S_SPLIT}, s34, 1")
    a(f"v_and_b32 v{V_Q}, 15, v0")
    a(f"v_lshrrev_b32 v{V_G}, 4, v0")
    a(f"s_lshl_b32 s{S_RING}, s{S_W}, 15")
    a(f"s_lshl_b32 s34, s{S_SPLIT}, 2")
    a(f"s_add_u32 s34, s34, s{S_W}")
    a(f"s_mul_i32 s{S_KOFF}, s34, {NSTEP*8192}")
    a(f"s_mul_i32 s35, s{S_SPLIT}, 15")
    a(f"v_xor_b32 v1, s35, v{V_Q}")
    a(f"s_mul_i32 s36, s{S_TILE}, {80*256}")
    a(f"v_lshlrev_b32 v{VOFF0}, 4, v0")
    a(f"v_add_u32 v{VOFF1}, 4096, v{VOFF0}")
    a(f"s_mul_i32 s42, s{S_W}, 5120")
    a(f"s_add_u32 s43, s42, {SPARE}")
    a("s_add_u32 s42, s42, s36")
    a(f"s_add_u32 s42, s42, {HQ_OFF}")
    a(f"s_lshl_b32 s40, s{S_W}, 13")
    a(f"s_add_u32 s40, s40, {MQ_OFF}")
    a("s_add_u32 s41, s40, 4096")
    a("s_mov_b32 m0, s43")
    a("s_waitcnt lgkmcnt(0)")
    stamp()
    srd(a, 12, 4, WS_BYTES)
    HB = lambda qb, ks: 32 + (qb * 4 + ks) * 4
    MA = lambda hf, ks: 112 + (hf * 4 + ks) * 4
    QD = lambda qb, hf: 144 + (qb * 2 + hf) * 4
    for pc in range(4): a(f"buffer_load_dwordx4 v{VOFF0}, s[12:15], s42 offen offset:{pc*1024} lds")
    a("s_add_u32 m0, s43, 4096")
    srd(a, 8, 4, N * 256, HP_OFF)
    a(f"buffer_load_dwordx4 v{VOFF1}, s[12:15], s42 offen lds")
    for hf in range(2):
        for ks in range(4): a(f"buffer_load_dwordx4 {vr(MA(hf,ks),4)}, v{VOFF0}, s[12:15], s{40+hf} offen offset:{ks*1024}")

    def dma(slot, piece, last=7):
        out = []
        half, sub = piece // 4, piece % 4
        if sub == 0: out.append(f"s_add_u32 m0, s{S_RING}, {slot*8192 + half*4096}")
        out.append(f"buffer_load_dwordx4 v{VOFF0 if half==0 else VOFF1}, s[8:11], s{S_KOFF} offen offset:{sub*1024} lds")
        if piece == last: out.append(f"s_add_u32 s{S_KOFF}, s{S_KOFF}, 8192")
        return out
    for pc in range(8):
        for ins in dma(0, pc): a(ins)
    a(f"s_mul_i32 s38, s{S_SPLIT}, 7")
    a(f"s_xor_b32 s38, s38, s{S_W}")
    a(f"s_lshl_b32 s39, s{S_TILE}, 3")
    a("s_add_u32 s38, s38, s39")
    a("s_lshl_b32 s39, s38, 2")
    a(f"s_add_u32 s39, s39, {TAB_OFF}")
    a("v_lshlrev_b32 v2, 12, v0")
    stamp()
    for s, nb in ((16, N * 256), (20, N * 256), (24, N * 2)):
        a(f"s_mov_b32 s{s+2}, {nb}")
        a(f"s_mov_b32 s{s+3}, 0x00020000")
    a(f"s_mul_i32 s37, s{S_SPLIT}, {4*4096}")
    a("s_add_u32 s36, s36, s37")
    a(f"s_add_u32 s44, s37, {SPARE}")
    a(f"s_lshl_b32 s37, s{S_SPLIT}, 13")
    a("s_sub_u32 s37, 4096, s37")
    a(f"v_lshrrev_b32 v5, 1, v{V_G}")
    a(f"v_and_b32 v6, 1, v{V_G}")
    a("v_lshlrev_b32 v3, 4, v6")
    for row, base, dst in ((f"v{V_Q}", f"s{S_RING}", KA(0)), ("v1", "s44", 232)):
        a(f"v_and_b32 v4, 7, {row}")
        a(f"v_lshl_add_u32 v6, {row}, 8, v3")
        a(f"v_add_u32 v6, {base}, v6")
        for ks in range(4):
            a(f"v_add_u32 v7, {2*ks}, v5")
            a("v_xor_b32 v7, v7, v4")
            a(f"v_lshl_add_u32 v{dst+ks}, v7, 5, v6")
    a(f"v_lshrrev_b32 v4, 2, v{V_Q}")
    a(f"v_lshl_add_u32 v4, v{V_G}, 2, v4")
    a(f"v_and_b32 v5, 3, v{V_Q}")
    a("v_lshlrev_b32 v5, 3, v5")
    a("v_lshl_add_u32 v5, v4, 8, v5")
    a(f"v_add_u32 v5, s{S_RING}, v5")
    a("v_and_b32 v4, 7, v4")
    a(f"s_lshl_b32 s43, s{S_W}, 1")
    for j in range(8):
        a(f"s_add_u32 s44, s43, {j}")
        a("s_and_b32 s44, s44, 7")
        a("v_xor_b32 v7, s44, v4")
        a(f"v_lshl_add_u32 v{VA(j)}, v7, 5, v5")
    a("v_lshlrev_b32 v1, 8, v1")
    a(f"v_lshl_add_u32 v1, v{V_G}, 4, v1")
    a(f"s_lshl_b32 s44, s{S_W}, 6")
    a("s_add_u32 s44, s44, s36")
    a(f"v_add_u32 v{V_ROW}, s44, v1")
    a("s_lshl_b32 s45, s37, 1")
    a(f"v_add_u32 v{V_ROW2}, s45, v{V_ROW}")
    a(f"v_mov_b32 v3, {OOB}")
    a(f"v_cmp_gt_u32 vcc, 8, v{V_Q}")
    a(f"v_cndmask_b32 v{V_ROW2}, v3, v{V_ROW2}, vcc")
    a(f"v_sub_u32 v4, 9, v{V_Q}")
    a(f"s_cmp_eq_u32 s{S_SPLIT}, 0")
    a("s_cselect_b64 vcc, -1, 0")
    a(f"v_cndmask_b32 v29, v4, v{V_Q}, vcc")
    a("s_mul_i32 s45, s38, 10")
    a("v_add_lshl_u32 v4, v29, s45, 1")
    a(f"v_cmp_gt_u32 vcc, 10, v{V_Q}")
    a("v_cndmask_b32 v4, v3, v4, vcc")
    a("v_sub_u32 v5, 14, v29")
    a("v_lshlrev_b32 v5, v5, 1")
    a("v_cndmask_b32 v29, 0, v5, vcc")
    a(f"v_mul_u32_u24 v{V_SEG}, {EPP*4}, v0")
    a(f"v_add_u32 v{V_SEG}, {SEG_OFF}, v{V_SEG}")
    a(f"v_add_u32 v5, s{S_RING}, v{VOFF0}")
    a(f"v_add_u32 v6, {2*RING}, v{VOFF0}")
    a("s_waitcnt vmcnt(16)")
    a("s_barrier")
    stamp()
    def hb_reads(qb):
        for ks in range(4): a(f"ds_read_b128 {vr(HB(qb,ks),4)}, v{232+ks}")
        if qb < 4:
            for ks in range(4): a(f"v_add_u32 v{232+ks}, s37, v{232+ks}")
    hb_reads(0); hb_reads(1); hb_reads(2)
    a("s_waitcnt vmcnt(8)")
    late = [[f"buffer_load_dword v{V_TAB}, v2, s[12:15], s39 offen"]] + [dma(1, pc) for pc in range(8)]
    for qb in range(5):
        if qb + 3 < 5: hb_reads(qb + 3)
        a(f"s_waitcnt lgkmcnt({4*min(3, 4-qb) + (1 if qb >= 3 else 0)})")
        for hf in range(2):
            for ks in range(4):
                a(f"{MF} {vr(QD(qb,hf),4)}, {vr(MA(hf,ks),4)}, {vr(HB(qb,ks),4)}, {'0' if ks==0 else vr(QD(qb,hf),4)}")
                if hf == 0 and ks % 2 == 0 and late:
                    for ins in late.pop(0): a(ins)
                if qb >= 1 and hf == 1: a(f"v_cvt_pk_bf16_f32 v{HB(qb-1,0)+ks}, v{QD(qb-1,0)+2*ks}, v{QD(qb-1,0)+2*ks+1}")
        if qb >= 1: a(f"ds_write_b128 v5, {vr(HB(qb-1,0),4)} offset:{24576 + (qb-1)*1024}")
    stamp()
    assert not late
    for c in range(4): a(f"v_cvt_pk_bf16_f32 v{HB(4,0)+c}, v{QD(4,0)+2*c}, v{QD(4,0)+2*c+1}")
    a(f"ds_write_b128 v5, {vr(HB(4,0),4)} offset:{24576 + 4*1024}")
    a("s_waitcnt lgkmcnt(0)")
    a("s_barrier")
    for qb in range(5):
        for ks in range(4): a(f"ds_read_b128 {ar(Q(qb,ks),4)}, v{VOFF0 if ks<2 else 6} offset:{(ks%2)*RING + 24576 + qb*1024}")

    def kread(par, slot, j):
        kb, ks = j // 4, j % 4
        return f"ds_read_b128 {vr(KF(par,kb,ks),4)}, v{KA(ks)} offset:{slot*8192 + kb*4096}"
    def vread(par, slot, j):
        db, hf = j // 2, j % 2
        return f"ds_read_b64_tr_b16 {vr(VF(par,db)+2*hf,2)}, v{VA(db)} offset:{slot*8192 + hf*4096}"
    a("s_waitcnt vmcnt(8)")
    for j in range(8): a(kread(0, 0, j))
    a(f"v_and_b32 v7, 0xffff, v{V_TAB}")
    a(f"v_lshl_add_u32 v{V_SEG}, v7, 2, v{V_SEG}")
    a(f"v_lshrrev_b32 v{V_TAB}, 16, v{V_TAB}")
    a(f"v_add_u32 v30, s37, v{V_ROW}")
    a("v_mov_b32 v31, v4")
    NX = 8
    xl = [f"buffer_load_dwordx4 {vr(ENT(4*j),4)}, v{V_SEG}, s[12:15], 0 offen offset:{16*j}" for j in range(4)]
    xl += [f"buffer_load_dwordx4 {vr(XR(b),4)}, v{(V_ROW,30,V_ROW2)[b]}, s[16:19], 0 offen" for b in range(3)]
    xl += [f"buffer_load_ushort v{V_DEG}, v31, s[24:27], 0 offen"]
    vl = [vread(0, 0, j) for j in range(16)]
    for qb in range(5):
        a(f"s_waitcnt lgkmcnt({min(15, 8 + 4*(4-qb))})")
        for ks in range(4):
            a(f"{MF} {vr(160+4*qb,4)}, {ar(Q(qb,ks),4)}, {ar(Q(qb,ks),4)}, {'0' if ks==0 else vr(160+4*qb,4)}")
            if qb < 4 and ks % 2 == 0:
                for ins in dma(2, 2 * qb + ks // 2): a(ins)
            if qb == 4:
                for _ in range(2): a(vl.pop(0))
    a("s_barrier")
    for ins in vl: a(ins)
    a("v_max3_f32 v1, v160, v161, v162")
    for i in range(163, 179, 2): a(f"v_max3_f32 v1, v1, v{i}, v{i+1}")
    a("v_max_f32 v1, v1, v179")
    a(f"v_mov_b32 v2, {f32(NORM2_MAX)}")
    a("v_cmp_nle_f32 vcc, v1, v2")
    a("s_nop 4")
    a("s_cbranch_vccnz L2_slow")

    def qk(spar, kpar, qb, j, slow):
        kb, ks = j // 4, j % 4
        c = (vr(CM(qb), 4) if slow else "0") if ks == 0 else vr(S(spar, kb), 4)
        return f"{MF} {vr(S(spar,kb),4)}, {vr(KF(kpar,kb,ks),4)}, {ar(Q(qb,ks),4)}, {c}"
    def pv(ppar, vpar, qb, j, first=False):
        return f"{MF} {ar(O(j,qb),4)}, {vr(VF(vpar,j),4)}, {vr(P(ppar),4)}, {'0' if first else ar(O(j,qb),4)}"

    def step(t, slow, loop_end=False):
        par = t % 2
        nslot = (t + 1) % 4
        sc = [[] for _ in range(80)]; mem = [[] for _ in range(80)]; val = [[] for _ in range(80)]
        last = t == NSTEP - 1
        kl = [kread(1 - par, nslot, j) for j in range(4 if last else 8)]
        vl = [vread(1 - par, nslot, j) for j in range(16) if not (last and j % 2)]
        for j, ins in enumerate(kl): mem[1 + 2 * j].append(ins)
        for j, ins in enumerate(vl): mem[16 + 4 * j + 3].append(ins)
        vm = {0: 8, 2: 16 + NX, NSTEP - 3: 12, NSTEP - 2: 12, NSTEP - 1: 16}.get(t, 16)
        sc[0].append(f"s_waitcnt vmcnt({vm})")
        sc[14].append(f"s_waitcnt lgkmcnt({min(7, len(kl))})")
        if not last: sc[62].append("s_waitcnt lgkmcnt(11)")
        npc = 8 if t + 4 < NSTEP else (4 if t + 4 == NSTEP else 0)
        if npc == 4: sc[2].append(f"s_mov_b32 s{S_KOFF}, {8*NSTEP*8192}")
        groups = [(16 + 8 * pc + 1, dma(t % 4, pc)) for pc in range(npc)]
        if t == 0: groups = [(16 + 4 * pc + 1, dma(3, pc)) for pc in range(8)] + [(48 + 4 * pc + 1, dma(0, pc)) for pc in range(8)]
        if t == 1: groups += [(16 + 8 * i + 5, [x]) for i, x in enumerate(xl)]
        if t in (NSTEP - 3, NSTEP - 2):
            m = t - (NSTEP - 3)
            assert t % 4 == m
            for pc in range(8):
                hf, ks = pc // 4, pc % 4
                g = [f"s_add_u32 m0, s{S_RING}, {m*8192 + hf*4096}"] if ks == 0 else []
                g.append(f"buffer_load_dwordx4 v{VOFF0 if hf==0 else VOFF1}, s[12:15], s40 offen offset:{ks*1024} lds")
                if pc == 7: g.append(f"s_add_u32 s40, s40, {MM_OFF-MV_OFF}")
                groups.append((16 + 8 * pc + 1, g))
        for G, grp in groups:
            for ins in grp:
                if ins.startswith("s_add_u32 m0"): sc[G - 1].append(ins)
                elif ins.startswith("s_"): sc[G + 1].append(ins)
                else: mem[G].append(ins)
        if loop_end:
            sc[76].append(f"s_sub_u32 s{S_CNT}, s{S_CNT}, 1")
            sc[78].append(f"s_cmp_lg_u32 s{S_CNT}, 0")
        for p in range(5):
            u = 5 * t + p
            sp = u % 2
            qks = [qk(1 - sp, (par + (p == 4)) % 2, (p + 1) % 5, j, slow) for j in range(8)]
            pvs = [pv(1 - sp, (par - (p == 0)) % 2, (p + 4) % 5, j, u <= 5) for j in range(8)]
            if u == 0: pvs = [None] * 8
            if last and p == 4: qks = [None] * 8
            mf = qks[:4] + pvs[:4] + qks[4:] + pvs[4:]
            for e in range(8): val[16 * p + 2 * e].append(f"v_exp_f32 v{S(sp,e//4)+e%4}, v{S(sp,e//4)+e%4}")
            for c in range(4): val[16 * p + 4 * c + 3].append(f"v_cvt_pk_bf16_f32 v{P(sp)+c}, v{S(sp,c//2)+2*(c%2)}, v{S(sp,c//2)+2*(c%2)+1}")
            for i in range(16):
                G = 16 * p + i
                if mf[i]: a(mf[i])
                for ins in sc[G] + mem[G] + val[G]: a(ins)

    def main_loop(slow):
        tag = "s" if slow else "f"
        a("s_waitcnt lgkmcnt(0)")
        for j in range(8): a(qk(0, 0, 0, j, slow))
        a(f"s_mov_b32 s{S_CNT}, {(NSTEP-7)//4}")
        a(f"s_add_u32 s40, s40, {MV_OFF-MQ_OFF}")
        if not slow: stamp()
        for t in range(3): step(t, slow)
        a.raw(".p2align 6")
        a.label(f"L2_loop_{tag}")
        for t in range(3, 7): step(t, slow, t == 6)
        a(f"s_cbranch_scc1 L2_loop_{tag}")
        for t in range(NSTEP - 4, NSTEP): step(t, slow)
        ul = 5 * NSTEP - 1
        lp = ul % 2; par = NSTEP % 2
        a(f"s_mul_i32 s34, s{S_SPLIT}, 4")
        a(f"s_mul_i32 s34, s34, s{S_W}")
        a(f"s_add_u32 s34, s34, s{S_W}")
        a(f"v_add_u32 v1, s{S_RING}, v{VOFF0}")
        a("s_waitcnt vmcnt(0) lgkmcnt(0)")
        amr = [f"ds_read_b128 {ar(160+16*i+4*ks,4)}, v1 offset:{i*4096 + ks*1024}" for i in range(4) for ks in range(4)]
        for r in range(4):
            a(f"s_cmp_eq_u32 s34, {r}")
            a(f"s_cbranch_scc1 L2_tail{r}_{tag}")
        for j in range(8):
            a(pv(lp, 1 - par, 4, j)); a(amr[2 * j]); a(amr[2 * j + 1])
        a("s_branch L2_epi")
        for r in range(4):
            a.label(f"L2_tail{r}_{tag}")
            for j in range(4): a(qk(1 - lp, par, r, j, slow))
            for j in range(8):
                a(pv(lp, 1 - par, 4, j))
                if j == 0:
                    a(f"v_mov_b32 v{P(1-lp)+2}, 0"); a(f"v_mov_b32 v{P(1-lp)+3}, 0")
                if 2 <= j < 6: a(f"v_exp_f32 v{S(1-lp,0)+j-2}, v{S(1-lp,0)+j-2}")
                if j == 6:
                    for c in range(2): a(f"v_cvt_pk_bf16_f32 v{P(1-lp)+c}, v{S(1-lp,0)+2*c}, v{S(1-lp,0)+2*c+1}")
            for j in range(8):
                a(pv(1 - lp, par, r, j)); a(amr[2 * j]); a(amr[2 * j + 1])
            a("s_branch L2_epi")
    main_loop(False)

    a.label("L2_slow")
    a("s_waitcnt lgkmcnt(0)")
    for ks in range(4): a(f"v_subrev_u32 v{232+ks}, s{S_RING}, v{KA(ks)}")
    for qb in range(5): a(f"v_mov_b32 v{CM(qb)}, 0xff800000")
    a("s_mov_b32 s34, 0")
    a.label("L2_max")
    for ks in range(4): a(f"buffer_load_dwordx4 {vr(KF(1,0,ks),4)}, v{232+ks}, s[8:11], s34 offen")
    a("s_waitcnt vmcnt(0)")
    for qb in range(5):
        for ks in range(4): a(f"{MF} {vr(160+4*qb,4)}, {vr(KF(1,0,ks),4)}, {ar(Q(qb,ks),4)}, {'0' if ks==0 else vr(160+4*qb,4)}")
    for qb in range(5):
        a(f"v_max3_f32 v{CM(qb)}, v{CM(qb)}, v{160+4*qb}, v{161+4*qb}")
        a(f"v_max3_f32 v{CM(qb)}, v{CM(qb)}, v{162+4*qb}, v{163+4*qb}")
    a("s_add_u32 s34, s34, 4096")
    a(f"s_cmp_lt_u32 s34, {N*256}")
    a("s_cbranch_scc1 L2_max")
    for x in (16, 32):
        a(f"v_xor_b32 v1, {x}, v0")
        a("v_lshlrev_b32 v1, 2, v1")
        for qb in range(5): a(f"ds_bpermute_b32 v{CM(qb)+1}, v1, v{CM(qb)}")
        a("s_waitcnt lgkmcnt(0)")
        for qb in range(5): a(f"v_max_f32 v{CM(qb)}, v{CM(qb)}, v{CM(qb)+1}")
    for qb in range(5):
        a(f"v_sub_f32 v{CM(qb)}, 0, v{CM(qb)}")
        for r in range(1, 4): a(f"v_mov_b32 v{CM(qb)+r}, v{CM(qb)}")
    main_loop(True)

    a.label("L2_epi")
    stamp()
    AM = lambda m, hf, ks: 160 + ((m * 2 + hf) * 4 + ks) * 4
    R = lambda qb: 32 + qb * 8
    T = lambda k: 72 + k * 8
    AG = lambda j: 96 + 4 * j
    GV = lambda j: 128 + 4 * j
    S_NB, S_I = 46, 47
    V_AD, V_OH, V_FLAG, V_RL, V_BA, TMP = 200, 201, 202, 203, 206, 210
    GA = lambda k, i: 160 + 8 * k + i
    OH = lambda i: 84 + i
    OB = 92
    def weave(main, groups, first=0):
        n = len(main) - first
        pos = {first + (k * n) // len(groups): g for k, g in enumerate(groups)} if groups else {}
        assert len(pos) == len(groups)
        for x, ins in enumerate(main):
            a(ins)
            for y in pos.get(x, []): a(y)
    misc = []
    for s in range(1, 4):
        misc += [f"s_sub_u32 s41, s{S_W}, {s}", "s_and_b32 s41, s41, 3", "s_lshl_b32 s41, s41, 15", f"v_add_u32 v{2+s}, s41, v{VOFF0}"]
    misc += ["s_xor_b32 s42, s2, 1", f"s_mul_i32 s42, s42, {XCH_WG}", f"s_mul_i32 s43, s{S_W}, 5120", f"s_add_u32 s43, s43, {XCH_OFF}",
             "s_add_u32 s42, s42, s43",
             f"s_mul_i32 s44, s2, {XCH_WG}", "s_add_u32 s43, s43, s44",
             f"v_sub_u32 v6, 15, v{V_Q}", "v_lshlrev_b32 v6, 6, v6", f"v_lshl_add_u32 v6, v{V_G}, 4, v6",
             "v_add_u32 v7, 2048, v6", f"v_mov_b32 v30, {OOB}", f"v_cmp_lt_u32 vcc, 7, v{V_Q}",
             f"s_mul_i32 s45, s{S_W}, {LIST_B}", f"s_add_u32 s45, s45, {SPARE}", "v_cndmask_b32 v7, v30, v7, vcc",
             f"v_lshrrev_b32 v9, 1, v{V_Q}", f"v_xor_b32 v9, v9, v{V_G}", "v_lshlrev_b32 v9, 5, v9", f"v_and_b32 v10, 1, v{V_Q}",
             "v_lshl_or_b32 v9, v10, 4, v9", "v_xor_b32 v10, 0x80, v9", "v_lshlrev_b32 v11, 16, v29",
             "s_mov_b32 s48, 0xfffffff0", "s_mov_b32 s52, s8", "s_mov_b32 s53, s9", "s_mov_b32 s55, 0x00020000",
             "s_xor_b32 s51, s2, 1", "s_lshl_b32 s51, s51, 7", f"s_add_u32 s51, s51, {FLG_OFF}", "s_mov_b32 s49, 0x400000"]
    def red_write(s, qb, h): return f"ds_write_b128 v1, {ar(O(2*s+h,qb),4)} offset:{(s-1)*10240 + (qb*2+h)*1024}"
    def acc_reads(qb): return [f"v_accvgpr_read_b32 v{R(qb)+4*h+r}, a{O(h,qb)+r}" for h in range(2) for r in range(4)]
    for _ in range(8): a(misc.pop(0))
    fill = misc + acc_reads(2) + acc_reads(3) + acc_reads(4)
    for qb in (2, 3, 4):
        for s in range(1, 4):
            for h in range(2):
                a(red_write(s, qb, h))
                for _ in range(4):
                    if fill: a(fill.pop(0))
    assert not fill
    def build_list(tag):
        t = TMP
        a(f"v_min_u32 v{t}, 16, v{V_TAB}")
        a(f"v_mov_b32 v{t+1}, v{t}")
        wave_scan(a, t + 1)
        a(f"v_readlane_b32 s{S_NB}, v{t+1}, 63")
        a(f"v_sub_u32 v{t+1}, v{t+1}, v{t}")
        a(f"v_lshl_add_u32 v{t+1}, v{t+1}, 2, s45")
        a(f"v_add_u32 v{t+2}, s{S_NB}, v0")
        a(f"v_lshl_add_u32 v{t+2}, v{t+2}, 2, s45")
        a(f"v_mov_b32 v{t+3}, 0x7fffff0f")
        a(f"ds_write_b32 v{t+2}, v{t+3}")
        for j in range(16):
            a(f"v_cmp_lt_u32 vcc, {j}, v{t}")
            a("s_and_b64 exec, exec, vcc")
            a(f"s_cbranch_execz L2_built_{tag}")
            a(f"ds_write_b32 v{t+1}, v{ENT(j)} offset:{4*j}")
        a.label(f"L2_built_{tag}")
        a("s_mov_b64 exec, -1")
        a(f"s_add_u32 s{S_NB}, s{S_NB}, 31")
        a(f"s_lshr_b32 s{S_NB}, s{S_NB}, 5")
        a(f"v_lshl_add_u32 v{V_AD}, v{V_G}, 5, s45")
        a(f"v_lshl_add_u32 v{V_OH}, v{V_G}, 2, s45")
    def addr_reads(k, off):
        return [f"ds_read_b128 {vr(GA(k,0),4)}, v{V_AD} offset:{off}", f"ds_read_b128 {vr(GA(k,4),4)}, v{V_AD} offset:{off+16}"]
    build_list("a")
    for k in range(4):
        for ins in addr_reads(k, k * 128): a(ins)
    a("s_waitcnt lgkmcnt(0)")
    a("s_barrier")
    stamp()
    def red_read(k, s, qb):
        for h in range(2): a(f"ds_read_b128 {vr(T(k)+4*h,4)}, v{3+s} offset:{s*10240 + (qb*2+h)*1024}")
    for n, qb in enumerate((2, 3, 4)):
        for s in range(3): red_read(3 * n + s, s, qb)
    wr = [red_write(s, qb, h) for qb in (0, 1) for s in range(1, 4) for h in range(2)]
    nw = 0
    for n, qb in enumerate((2, 3, 4)):
        for s in range(3):
            k = 3 * n + s
            a(f"s_waitcnt lgkmcnt({min(15, 2*(8-k) + nw)})")
            for i in range(8):
                a(f"v_add_f32 v{R(qb)+i}, v{R(qb)+i}, v{T(k)+i}")
                if i in (3, 7) and wr and k >= 1: a(wr.pop(0)); nw += 1
        for h in range(2):
            va, off = (7, 0) if qb == 2 else (6, (4 - qb) * 1024)
            a(f"buffer_store_dwordx4 {vr(R(qb)+4*h,4)}, v{va}, s[12:15], s42 offen offset:{off + h*2560} sc1")
    assert not wr
    for ins in acc_reads(0) + acc_reads(1): a(ins)
    a("s_waitcnt lgkmcnt(0)")
    a("s_barrier")
    stamp()
    for n, qb in enumerate((0, 1)):
        for s in range(3): red_read(3 * n + s, s, qb)
    a(f"v_lshlrev_b32 v2, 6, v{V_Q}")
    a(f"v_lshl_add_u32 v2, v{V_G}, 4, v2")
    a(f"v_cmp_gt_u32 vcc, 8, v{V_Q}")
    a(f"s_mul_i32 s41, s{S_W}, 3072")
    a(f"s_add_u32 s41, s41, {OFR}")
    a("v_add_u32 v8, 2048, v2")
    a("v_cndmask_b32 v8, v30, v8, vcc")
    for n, qb in enumerate((0, 1)):
        for s in range(3):
            k = 3 * n + s
            a(f"s_waitcnt lgkmcnt({2*(5-k)})")
            for i in range(8): a(f"v_add_f32 v{R(qb)+i}, v{R(qb)+i}, v{T(k)+i}")
    a(f"v_add_u32 v5, s41, v{VOFF0}")
    a(f"v_add_u32 v6, {OFR}, v{VOFF0}")
    a(f"v_lshlrev_b32 v4, 2, v{V_Q}")
    a(f"v_add_u32 v4, {LREG}, v4")
    a(f"v_lshlrev_b32 v3, 2, v0")
    a(f"s_min_u32 s41, s{S_W}, 1")
    a("s_mul_i32 s41, s41, 768")
    a(f"s_add_u32 s41, s41, {LREG}")
    a("v_add_u32 v3, s41, v3")
    a("s_waitcnt vmcnt(0)")
    a("s_barrier")
    stamp()
    a(f"s_cmp_lg_u32 s{S_W}, 0")
    a("s_cbranch_scc1 L2_noflag")
    a("s_lshl_b32 s41, s2, 7")
    a(f"s_add_u32 s41, s41, {FLG_OFF}")
    a("v_mov_b32 v1, 1")
    a("s_mov_b64 exec, 1")
    a("buffer_store_dword v1, off, s[12:15], s41 sc1")
    a("s_mov_b64 exec, -1")
    a.label("L2_noflag")
    def fire(k, regs, slot):
        g = [[f"s_add_u32 m0, s{S_RING}, {slot*8192 + i*1024}",
              f"v_bitop3_b32 v{GA(regs,i)}, v{GA(regs,i)}, v{9 + i%2}, s48 bitop3:0x28",
              f"buffer_load_dwordx4 v{GA(regs,i)}, s[52:55], 0 offen lds"] for i in range(8)]
        g[0] = [f"s_cmp_gt_u32 s{S_NB}, {k}", f"s_cselect_b32 s54, {N*256}, 0"] + g[0]
        return g
    def proc_head(k, extra=()):
        for c in range(4): a(f"ds_read2_b32 {vr(OH(2*c),2)}, v{V_OH} offset0:{32*k + 16*(c%2) + 4*(c//2)} offset1:{32*k + 16*(c%2) + 4*(c//2) + 8}")
        for ins in extra: a(ins)
    def proc_body(slot, first=False):
        m = []
        for j in range(16):
            m.append(f"ds_read_b64_tr_b16 {vr(GV(j//2)+2*(j%2),2)}, v{VA(j//2)} offset:{slot*8192 + (j%2)*4096}")
            if j == 7: m.append("s_waitcnt lgkmcnt(8)")
            if 8 <= j < 12:
                c = j - 8
                m += [f"v_lshlrev_b32 v{OB+c}, v{OH(2*c)}, v29", f"v_lshl_or_b32 v{OB+c}, v11, v{OH(2*c+1)}, v{OB+c}", f"v_and_b32 v{OB+c}, 0x40004000, v{OB+c}"]
        for j in range(8):
            m += [f"s_waitcnt lgkmcnt({14-2*j})", f"{MF} {vr(AG(j),4)}, {vr(GV(j),4)}, {vr(OB,4)}, {'0' if first else vr(AG(j),4)}"]
        return m
    for g in fire(0, 0, 0) + fire(1, 1, 1):
        for ins in g: a(ins)
    a(f"buffer_load_dword v{V_FLAG}, off, s[12:15], s51 sc1")
    for b in range(3):
        t = TMP
        a(f"v_add_u32 v{t}, {16*b}, v{V_Q}")
        a(f"v_mul_u32_u24 v{t+1}, 26, v{t}")
        a(f"v_lshrrev_b32 v{t+1}, 8, v{t+1}")
        a(f"v_min_u32 v{t+1}, 3, v{t+1}")
        a(f"v_mul_u32_u24 v{t+2}, 10, v{t+1}")
        a(f"v_sub_u32 v{t}, v{t}, v{t+2}")
        a(f"v_and_b32 v{t}, 15, v{t}")
        a(f"v_lshl_add_u32 v{t}, v{V_G}, 4, v{t}")
        a(f"v_lshlrev_b32 v{t}, 4, v{t}")
        a(f"v_lshl_add_u32 v{V_BA+b}, v{t+1}, 15, v{t}")
    a(f"v_lshlrev_b32 v{V_DEG}, 16, v{V_DEG}")
    a(f"v_mul_f32 v{V_DEG}, 0.5, v{V_DEG}")
    a(f"v_add_u32 v7, s37, v{V_ROW}")
    proc_head(0, addr_reads(0, 4 * 128) + addr_reads(1, 5 * 128))
    a("s_waitcnt vmcnt(9)")
    weave(proc_body(0, True), fire(2, 2, 2))
    stamp()
    proc_head(1)
    a("s_waitcnt vmcnt(8)")
    a.label("L2_poll")
    a(f"v_readfirstlane_b32 s50, v{V_FLAG}")
    a("s_cmp_eq_u32 s50, 1")
    a("s_cbranch_scc1 L2_got")
    a(f"buffer_load_dword v{V_FLAG}, off, s[12:15], s51 sc1")
    a("s_sub_u32 s49, s49, 1")
    a("s_waitcnt vmcnt(0)")
    a("s_cbranch_scc0 L2_poll")
    a.label("L2_got")
    stamp()
    PX = lambda b: 232 + 8 * b
    pl = [[f"buffer_load_dwordx4 {vr(PX(b)+4*h,4)}, v{2 if b<2 else 8}, s[12:15], s43 offen offset:{(b%2)*1024 + h*2560} sc1"] for b in range(3) for h in range(2)]
    weave(proc_body(1), pl + fire(3, 3, 3))
    stamp()
    proc_head(2)
    a("s_waitcnt vmcnt(14)")
    weave(proc_body(2), fire(4, 0, 0))
    stamp()
    op = []
    for b in range(3):
        op += [f"v_add_f32 v{R(b)+i}, v{R(b)+i}, v{PX(b)+i}" for i in range(8)]
        op += [f"ds_write_b32 v3, v{R(b)} offset:{b*256}"]
        op += [f"v_cvt_pk_bf16_f32 v{64+4*b+c}, v{R(b)+2*c}, v{R(b)+2*c+1}" for c in range(4)]
        op += [f"ds_write_b128 v5, {vr(64+4*b,4)} offset:{b*1024}"]
    a("s_waitcnt vmcnt(16)")
    weave(op, fire(5, 1, 1))
    a("s_waitcnt lgkmcnt(0)")
    a("s_barrier")
    stamp()
    BO = lambda b, ks: 128 + (b * 4 + ks) * 4 if b < 2 else 64 + ks * 4
    FO = lambda b, hf: 160 + (b * 2 + hf) * 4
    FD = lambda b, hf: 32 + (b * 2 + hf) * 4
    for b in range(3): a(f"ds_read_b32 v{V_RL+b}, v4 offset:{b*256}")
    for b in range(3):
        for ks in range(4): a(f"ds_read_b128 {vr(BO(b,ks),4)}, v6 offset:{ks*3072 + b*1024}")
    a("s_mov_b32 s41, 0xffff0000")
    xun = []
    for b in range(3):
        for c in range(4): xun += [f"v_lshlrev_b32 v{FD(b,0)+2*c}, 16, v{XR(b)+c}", f"v_and_b32 v{FD(b,0)+2*c+1}, s41, v{XR(b)+c}"]
    for b in range(3):
        a(f"s_waitcnt lgkmcnt({8-4*b})")
        if b == 0:
            for x in range(3): a(f"v_rcp_f32 v{V_RL+x}, v{V_RL+x}")
        for hf in range(2):
            for ks in range(4):
                a(f"{MF} {vr(FO(b,hf),4)}, {ar(AM(0,hf,ks),4)}, {vr(BO(b,ks),4)}, {'0' if ks==0 else vr(FO(b,hf),4)}")
                a(xun.pop(0))
    stamp()
    fm = [[f"v_fmac_f32 v{FD(b,0)+i}, v{FO(b,0)+i}, v{V_RL+b}" for i in range(i0, i0 + 4)] for b in range(3) for i0 in (0, 4)]
    proc_head(3)
    a("s_waitcnt vmcnt(16)")
    weave(proc_body(3), fm, 4)
    for k, slot, vm in ((4, 0, 8), (5, 1, 0)):
        proc_head(k)
        a(f"s_waitcnt vmcnt({vm})")
        weave(proc_body(slot), [])
    a(f"s_mov_b32 s{S_I}, 6")
    a(f"v_add_u32 v{V_AD}, {6*128}, v{V_AD}")
    a(f"v_add_u32 v{V_OH}, {6*128}, v{V_OH}")
    a(f"v_cmp_lt_u32 vcc, 16, v{V_TAB}")
    a.label("L2_more")
    a(f"s_cmp_ge_u32 s{S_I}, s{S_NB}")
    a("s_cbranch_scc1 L2_aggdone")
    for ins in addr_reads(3, 0): a(ins)
    a("s_waitcnt lgkmcnt(0)")
    for g in fire(0, 3, 0):
        for ins in g: a(ins)
    proc_head(0)
    a("s_waitcnt vmcnt(0)")
    weave(proc_body(0), [])
    a(f"s_add_u32 s{S_I}, s{S_I}, 1")
    a(f"v_add_u32 v{V_AD}, 128, v{V_AD}")
    a(f"v_add_u32 v{V_OH}, 128, v{V_OH}")
    a("s_branch L2_more")
    a.label("L2_aggdone")
    a("s_nop 2")
    a("s_cbranch_vccz L2_aggend")
    a(f"v_subrev_u32 v{V_TAB}, 16, v{V_TAB}")
    a(f"v_max_i32 v{V_TAB}, 0, v{V_TAB}")
    a(f"v_add_u32 v{V_SEG}, 64, v{V_SEG}")
    for j in range(4): a(f"buffer_load_dwordx4 {vr(ENT(4*j),4)}, v{V_SEG}, s[12:15], 0 offen offset:{16*j}")
    a("s_waitcnt vmcnt(0)")
    build_list("b")
    a(f"s_mov_b32 s{S_I}, 0")
    a(f"v_cmp_lt_u32 vcc, 16, v{V_TAB}")
    a("s_branch L2_more")
    a.label("L2_aggend")
    stamp()
    for s in range(4):
        a(f"s_add_u32 s41, s{S_W}, {s}")
        a("s_and_b32 s41, s41, 3")
        a("s_lshl_b32 s41, s41, 10")
        a(f"s_add_u32 s41, s41, s{S_RING}")
        a(f"v_add_u32 v5, s41, v{VOFF0}")
        for i in range(8): a(f"v_mul_f32 v{AG(2*s)+i}, v{V_DEG}, v{AG(2*s)+i}")
        for c in range(4): a(f"v_cvt_pk_bf16_f32 v{AG(2*s)+c}, v{AG(2*s)+2*c}, v{AG(2*s)+2*c+1}")
        a(f"ds_write_b128 v5, {vr(AG(2*s),4)}")
    a("s_waitcnt lgkmcnt(0)")
    a("s_barrier")
    BA = lambda b, ks: 96 + (b * 4 + ks) * 4
    for b in range(3):
        for ks in range(4): a(f"ds_read_b128 {vr(BA(b,ks),4)}, v{V_BA+b} offset:{ks*1024}")
    for b in range(3):
        a(f"s_waitcnt lgkmcnt({8-4*b})")
        for hf in range(2):
            for ks in range(4): a(f"{MF} {vr(FD(b,hf),4)}, {ar(AM(1,hf,ks),4)}, {vr(BA(b,ks),4)}, {vr(FD(b,hf),4)}")
        if b > 0:
            for c in range(4): a(f"v_cvt_pk_bf16_f32 v{160+4*b+c}, v{FD(b-1,0)+2*c}, v{FD(b-1,0)+2*c+1}")
            a(f"buffer_store_dwordx4 {vr(160+4*b,4)}, v{V_ROW if b==1 else 7}, s[20:23], 0 offen{ST2}")
    for c in range(4): a(f"v_cvt_pk_bf16_f32 v{160+c}, v{FD(2,0)+2*c}, v{FD(2,0)+2*c+1}")
    a(f"buffer_store_dwordx4 {vr(160,4)}, v{V_ROW2}, s[20:23], 0 offen{ST2}")
    if stamps:
        a("s_waitcnt vmcnt(0)")
        stamp()
        a("s_memrealtime s[60:61]")
        a("s_waitcnt lgkmcnt(0)")
        a("s_lshl_b32 s40, s2, 2")
        a(f"s_add_u32 s40, s40, s{S_W}")
        a("s_lshl_b32 s40, s40, 6")
        srd(a, 8, 4, 1 << 20, ST_OFF)
        a("s_mov_b64 exec, 1")
        for i, r in enumerate([62, 60] + [64 + 2 * k for k in range(nst[0])]):
            a(f"v_mov_b32 v1, s{r}")
            a(f"buffer_store_dword v1, off, s[8:11], s40 offset:{4*i}")
    a.label("L2_end")
    a("s_endpgm")
def desc_k2(a):
    kernel_desc(a, NAME2, 512, 256, 96)
K2_LAUNCH = f"; @launch kernel={NAME2} grid=({NWG},1,1) block=(256,1,1) lds={LDS2}"
```

```python
import k1, k2
from build import *
build_all("v_base.s")
k1.ST1 = " sc1"; build_all("v_k1sc1.s")
k1.ST1 = " sc0 sc1"; build_all("v_k1sc01.s")
k1.ST1 = " nt"; build_all("v_k1nt.s")
k1.ST1 = ""; k2.ST2 = " sc1"; build_all("v_k2sc1.s")
k2.ST2 = " nt"; build_all("v_k2nt.s")
```

```python
from asmlib import *
from layout import *
NAME1 = "prep_kernel"
WG_W0, WG_LN0 = 64, 88
LN_WGS = 125
K1_GRID = WG_LN0 + LN_WGS
ST1 = ''
MF = "v_mfma_f32_16x16x32_bf16"

def dpp(op, d, s0, s1, ctl, rm="0xf", bc=False):
    return f"{op}_dpp v{d}, v{s0}, v{s1} {ctl} row_mask:{rm} bank_mask:0xf" + (" bound_ctrl:1" if bc else "")
def wave_scan(a, v):
    for k in (1, 2, 4, 8): a(dpp("v_add_u32", v, v, v, f"row_shr:{k}", bc=True))
    a(dpp("v_add_u32", v, v, v, "row_bcast:15", "0xa"))
    a(dpp("v_add_u32", v, v, v, "row_bcast:31", "0xc"))
def row_sum(a, vs):
    for k in (8, 4, 2, 1):
        for v in vs: a(dpp("v_add_f32", v, v, v, f"row_ror:{k}"))

def gen_k1(a, stamps=False):
    cnt = [0]
    def stamp(reset=False):
        if reset: cnt[0] = 1
        if not stamps: return
        i = cnt[0]; cnt[0] += 1
        a(f"s_memrealtime s[{64+2*i}:{65+2*i}]")
    def fin():
        if stamps:
            a("s_waitcnt vmcnt(0)")
            stamp()
            a("s_waitcnt lgkmcnt(0)")
            a("s_lshl_b32 s50, s2, 6")
            srd(a, 52, 4, 1 << 20, 0x1100000)
            a("s_mov_b64 exec, 1")
            for i in range(cnt[0]):
                a(f"v_mov_b32 v1, s{64+2*i}")
                a(f"buffer_store_dword v1, off, s[52:55], s50 offset:{4*i}")
        a("s_endpgm")
    kernel_begin(a, NAME1)
    stamp()
    a(f"s_load_dwordx2 s[4:5], s[0:1], {A_WS}")
    a(f"s_cmp_ge_u32 s2, {WG_LN0}")
    a("s_cbranch_scc1 L1_ln")
    a(f"s_cmp_ge_u32 s2, {WG_W0}")
    a("s_cbranch_scc1 L1_w")
    a(f"s_load_dwordx4 s[8:11], s[0:1], {A_SRC}")
    a("v_lshlrev_b32 v1, 3, v0")
    a("v_mov_b32 v4, 0")
    a("v_mov_b32 v5, 0")
    a("ds_write_b64 v1, v[4:5]")
    a(f"s_mul_i32 s3, s2, {EPP*4}")
    a("v_lshlrev_b32 v2, 2, v0")
    a("s_add_u32 s6, s3, 4096")
    a("s_add_u32 s7, s3, 8192")
    a("s_waitcnt lgkmcnt(0)")
    stamp(True)
    NE = 5
    DST = lambda i: 10 + i; SRC = lambda i: 16 + i; BK = lambda i: 22 + i; RK = lambda i: 28 + i
    srd(a, 16, 10, E * 4)
    for i in range(NE): a(f"buffer_load_dword v{DST(i)}, v2, s[16:19], s{(3,3,6,6,7)[i]} offen offset:{(i%2)*2048}")
    srd(a, 12, 8, E * 4)
    for i in range(NE): a(f"buffer_load_dword v{SRC(i)}, v2, s[12:15], s{(3,3,6,6,7)[i]} offen offset:{(i%2)*2048}")
    srd(a, 20, 4, NPROD * 4096, TAB_OFF); srd(a, 24, 4, E * 4, SEG_OFF); srd(a, 28, 4, 256 * 128, FLG_OFF)
    a("s_cmp_lg_u32 s2, 0")
    a("s_cbranch_scc1 L1_noflag")
    a("v_lshlrev_b32 v3, 7, v0")
    a("v_mov_b32 v6, 0")
    a("v_mov_b32 v7, 0")
    a("buffer_store_dwordx4 v[4:7], v3, s[28:31], 0 offen")
    a.label("L1_noflag")
    a("s_barrier")
    a("s_mov_b32 s33, 52429")
    a("v_mov_b32 v8, 1")
    a(f"v_cmp_gt_u32 vcc, {EPP - 4*512}, v0")
    a("v_lshrrev_b32 v3, 6, v0")
    a("v_lshlrev_b32 v3, 2, v3")
    a("s_mov_b64 s[34:35], vcc")
    a("v_lshlrev_b32 v6, 4, v0")
    a(f"v_cmp_gt_u32 vcc, {EPP//4 - 512}, v0")
    a("v_mov_b32 v7, 0x7fffff00")
    a("v_readfirstlane_b32 s38, v3")
    a("v_cndmask_b32 v7, v7, v6, vcc")
    a("s_waitcnt vmcnt(5)")
    stamp()
    for i in range(NE):
        a(f"v_mul_u32_u24 v{BK(i)}, s33, v{DST(i)}")
        a(f"v_lshrrev_b32 v{BK(i)}, 19, v{BK(i)}")
        a(f"v_mul_u32_u24 v9, 10, v{BK(i)}")
        a(f"v_lshlrev_b32 v{BK(i)}, 2, v{BK(i)}")
        if i == NE - 1: a("s_mov_b64 exec, s[34:35]")
        a(f"ds_add_rtn_u32 v{RK(i)}, v{BK(i)}, v8")
        a(f"v_sub_u32 v{DST(i)}, v{DST(i)}, v9")
    a("s_mov_b64 exec, -1")
    a("s_waitcnt lgkmcnt(0)")
    a("s_barrier")
    stamp()
    a("ds_read_b64 v[4:5], v1")
    a("s_waitcnt lgkmcnt(0)")
    a("v_add_u32 v36, v4, v5")
    a("v_mov_b32 v37, v36")
    wave_scan(a, 37)
    a("v_and_b32 v9, 63, v0")
    a("v_cmp_eq_u32 vcc, 63, v9")
    a("s_and_saveexec_b64 s[36:37], vcc")
    a("ds_write_b32 v3, v37 offset:4096")
    a("s_mov_b64 exec, -1")
    a("v_mov_b32 v9, 0")
    a("v_sub_u32 v37, v37, v36")
    a("s_waitcnt lgkmcnt(0)")
    a("s_barrier")
    a("ds_read_b128 v[40:43], v9 offset:4096")
    a("ds_read_b128 v[44:47], v9 offset:4112")
    a("s_waitcnt vmcnt(0)")
    for i in range(NE):
        a(f"v_and_b32 v9, 7, v{SRC(i)}")
        a(f"v_lshl_or_b32 v{DST(i)}, v9, 5, v{DST(i)}")
        a(f"v_lshl_or_b32 v{DST(i)}, v{SRC(i)}, 8, v{DST(i)}")
    a("s_waitcnt lgkmcnt(0)")
    for w in range(7):
        a(f"s_cmp_gt_u32 s38, {4*w}")
        a("s_cselect_b32 s39, 1, 0")
        a(f"v_mad_u32_u24 v37, v{40+w}, s39, v37")
    a("v_mov_b32 v38, v37")
    a("v_add_u32 v39, v37, v4")
    a("ds_write_b64 v1, v[38:39]")
    for i in range(2): a(f"v_lshl_or_b32 v{40+i}, v{4+i}, 16, v{38+i}")
    a("s_lshl_b32 s39, s2, 12")
    a("buffer_store_dwordx2 v[40:41], v1, s[20:23], s39 offen" + ST1)
    a("s_waitcnt lgkmcnt(0)")
    a("s_barrier")
    stamp()
    for i in range(NE):
        if i == NE - 1: a("s_mov_b64 exec, s[34:35]")
        a(f"ds_read_b32 v{BK(i)}, v{BK(i)}")
    a("s_mov_b64 exec, -1")
    for i in range(NE):
        a(f"s_waitcnt lgkmcnt({NE-1})")
        a(f"v_add_lshl_u32 v{BK(i)}, v{BK(i)}, v{RK(i)}, 2")
        if i == NE - 1: a("s_mov_b64 exec, s[34:35]")
        a(f"ds_write_b32 v{BK(i)}, v{DST(i)} offset:8192")
    a("s_mov_b64 exec, -1")
    a("s_waitcnt lgkmcnt(0)")
    a("s_barrier")
    for i in range(2): a(f"ds_read_b128 {vr(12+4*i,4)}, v6 offset:{8192+8192*i}")
    for i in range(2):
        a(f"s_waitcnt lgkmcnt({1-i})")
        a(f"buffer_store_dwordx4 {vr(12+4*i,4)}, v{6+i}, s[24:27], s{(3,7)[i]} offen{ST1}")
    fin()
    a.label("L1_w")
    a(f"s_load_dwordx8 s[8:15], s[0:1], {A_WMSG}")
    a(f"s_load_dwordx2 s[16:17], s[0:1], {A_WOUT}")
    a("v_lshrrev_b32 v1, 6, v0")
    a("v_and_b32 v0, 63, v0")
    a(f"s_sub_u32 s6, s2, {WG_W0}")
    a("v_readfirstlane_b32 s3, v1")
    a("v_and_b32 v2, 15, v0")
    a("v_lshrrev_b32 v3, 4, v0")
    a("s_and_b32 s7, s6, 7")
    a("s_lshr_b32 s6, s6, 3")
    a("v_lshrrev_b32 v6, 1, v2")
    a("v_xor_b32 v6, v6, v3")
    a("v_lshlrev_b32 v6, 5, v6")
    a("v_and_b32 v7, 1, v2")
    a("v_lshl_or_b32 v6, v7, 4, v6")
    a("v_lshl_or_b32 v56, v3, 8, v6")
    a("v_xor_b32 v57, 0x80, v56")
    a("v_lshrrev_b32 v6, 1, v3")
    a("v_and_b32 v7, 1, v3")
    a("v_lshlrev_b32 v7, 4, v7")
    a("v_lshl_add_u32 v7, v2, 8, v7")
    a("v_and_b32 v4, 7, v2")
    for ks in range(4):
        a(f"v_add_u32 v5, {2*ks}, v6")
        a("v_xor_b32 v5, v5, v4")
        a(f"v_lshl_add_u32 v{52+ks}, v5, 5, v7")
    a("v_lshrrev_b32 v5, 3, v2")
    a("v_and_b32 v6, 3, v2")
    a("v_lshl_add_u32 v5, v5, 2, v6")
    a("v_bfe_u32 v6, v2, 2, 1")
    a("v_lshlrev_b32 v6, 12, v6")
    a("v_lshl_add_u32 v5, v5, 4, v6")
    a(f"s_mov_b32 s40, {f32(CH)}")
    a(f"s_mov_b32 s41, {f32(RS128)}")
    a(f"s_mov_b32 s42, {f32(QSCALE)}")
    a("s_lshl_b32 s34, s3, 12")
    a("s_add_u32 s43, s34, 8192")
    def big_dma(srd_):
        a("s_mov_b32 m0, s43")
        for pc in range(4): a(f"buffer_load_dwordx4 v{56+pc%2}, s[{srd_}:{srd_+3}], s34 offen offset:{pc*1024} lds")
    def big_addr():
        for ks in range(4): a(f"v_add_u32 v{58+ks}, s43, v{52+ks}")
    def big_read():
        for ks in range(4): a(f"ds_read_b128 {vr(BIG(ks),4)}, v{58+ks}")
    BIG = lambda ks: 32 + ks * 4
    SM = lambda ks: 16 + ks * 4
    DD = 48
    a("s_cmp_eq_u32 s6, 0")
    a("s_waitcnt lgkmcnt(0)")
    a("s_cbranch_scc0 L1_wv")
    stamp(True)
    srd(a, 24, 12, 32768)
    big_dma(24)
    srd(a, 20, 10, 32768)
    a("s_and_b32 s33, s3, 3")
    a("s_lshl_b32 s33, s33, 10")
    a("s_add_u32 m0, s33, 4096")
    a("s_lshl_b32 s35, s7, 12")
    a("s_add_u32 s33, s33, s35")
    a("s_and_b32 s35, s3, 1")
    a("s_lshl_b32 s35, s35, 7")
    a("v_xor_b32 v4, s35, v56")
    a("buffer_load_dwordx4 v4, s[20:23], s33 offen lds")
    big_addr()
    srd(a, 28, 4, 32768, MQ_OFF)
    a("v_lshrrev_b32 v6, 1, v3")
    a("v_lshl_add_u32 v5, v6, 8, v5")
    a("v_and_b32 v6, 1, v3")
    a("v_lshl_add_u32 v5, v6, 3, v5")
    a("s_lshr_b32 s34, s7, 1")
    a("s_lshl_b32 s34, s34, 10")
    a("s_and_b32 s35, s7, 1")
    a("s_lshl_b32 s35, s35, 9")
    a("s_add_u32 s34, s34, s35")
    a("s_lshr_b32 s35, s3, 1")
    a("s_lshl_b32 s35, s35, 13")
    a("s_add_u32 s34, s34, s35")
    a("s_and_b32 s35, s3, 1")
    a("s_lshl_b32 s35, s35, 7")
    a("s_add_u32 s34, s34, s35")
    a("v_lshlrev_b32 v7, 4, v3")
    a("s_lshl_b32 s35, s3, 6")
    a("v_add_u32 v6, s35, v7")
    a("s_cmp_eq_u32 s3, 0")
    a("s_cselect_b64 s[36:37], -1, 0")
    a("v_cmp_eq_u32 vcc, 0, v2")
    a("s_and_b64 s[36:37], s[36:37], vcc")
    a("s_waitcnt vmcnt(0)")
    big_read()
    a("s_barrier")
    for ks in range(4): a(f"ds_read_b128 {vr(SM(ks),4)}, v{52+ks} offset:4096")
    for ks in range(4):
        a(f"s_waitcnt lgkmcnt({3-ks})")
        a(f"{MF} {vr(DD,4)}, {vr(SM(ks),4)}, {vr(BIG(ks),4)}, {'0' if ks==0 else vr(DD,4)}")
    stamp()
    for r in range(4): a(f"v_mul_f32 v{8+r}, s41, v{DD+r}")
    for r in range(4): a(f"v_sub_f32 v{12+r}, v{8+r}, v{DD+r}")
    for r in range(4): a(f"v_cndmask_b32 v{8+r}, v{8+r}, v{12+r}, s[36:37]")
    row_sum(a, [8, 9, 10, 11])
    a("ds_write_b128 v6, v[8:11]")
    a("s_waitcnt lgkmcnt(0)")
    a("s_barrier")
    for w in range(8): a(f"ds_read_b128 {vr(16+4*w,4)}, v7 offset:{64*w}")
    for w in range(1, 8):
        a(f"s_waitcnt lgkmcnt({7-w})")
        for r in range(4): a(f"v_add_f32 v{16+r}, v{16+r}, v{16+4*w+r}")
    for r in range(4): a(f"v_fma_f32 v{DD+r}, -v{16+r}, s40, v{DD+r}")
    for r in range(4): a(f"v_mul_f32 v{DD+r}, s42, v{DD+r}")
    for r in range(4): a(f"v_cndmask_b32 v{DD+r}, v{DD+r}, 0, s[36:37]")
    a(f"v_cvt_pk_bf16_f32 v{DD}, v{DD}, v{DD+1}")
    a(f"v_cvt_pk_bf16_f32 v{DD+1}, v{DD+2}, v{DD+3}")
    a(f"buffer_store_dwordx2 {vr(DD,2)}, v5, s[28:31], s34 offen{ST1}")
    fin()
    a.label("L1_wv")
    stamp(True)
    srd(a, 24, 16, 32768)
    a("v_lshrrev_b32 v6, 2, v0")
    a("v_lshlrev_b32 v6, 8, v6")
    a("v_and_b32 v7, 3, v0")
    a("v_lshl_add_u32 v6, v7, 3, v6")
    a("s_lshl_b32 s33, s7, 5")
    a("s_add_u32 s33, s33, s34")
    a("buffer_load_dwordx2 v[8:9], v6, s[24:27], s33 offen")
    a("s_cmp_eq_u32 s6, 1")
    a("s_cselect_b32 s20, s14, s8")
    a("s_cselect_b32 s21, s15, s9")
    a("s_mov_b32 s22, 32768")
    a("s_mov_b32 s23, 0x00020000")
    big_dma(20)
    big_addr()
    a(f"s_mov_b32 s33, {MM_OFF}")
    a(f"s_cselect_b32 s33, {MV_OFF}, s33")
    a("s_add_u32 s28, s4, s33")
    a("s_addc_u32 s29, s5, 0")
    a("s_mov_b32 s30, 32768")
    a("s_mov_b32 s31, 0x00020000")
    a("s_lshl_b32 s35, s3, 9")
    a("v_lshl_add_u32 v6, v0, 3, s35")
    a("v_lshlrev_b32 v7, 8, v3")
    a("v_lshl_add_u32 v7, v2, 3, v7")
    a("v_lshl_add_u32 v5, v3, 8, v5")
    a("s_lshr_b32 s35, s7, 1")
    a("s_lshl_b32 s35, s35, 13")
    a("s_and_b32 s36, s7, 1")
    a("s_lshl_b32 s36, s36, 7")
    a("s_add_u32 s35, s35, s36")
    a("s_lshr_b32 s36, s3, 1")
    a("s_lshl_b32 s36, s36, 10")
    a("s_add_u32 s35, s35, s36")
    a("s_and_b32 s36, s3, 1")
    a("s_lshl_b32 s36, s36, 3")
    a("s_add_u32 s35, s35, s36")
    a("s_cmp_eq_u32 s3, 0")
    a("s_cselect_b64 s[36:37], -1, 0")
    a("v_cmp_eq_u32 vcc, 0, v3")
    a("s_and_b64 s[36:37], s[36:37], vcc")
    a("v_lshlrev_b32 v10, 2, v0")
    a("s_lshl_b32 s33, s3, 8")
    a("v_add_u32 v10, s33, v10")
    a("v_lshlrev_b32 v11, 2, v2")
    a("v_add_u32 v12, 5120, v11")
    a("v_add_u32 v11, 4096, v11")
    a("s_waitcnt vmcnt(4)")
    a("ds_write_b64 v6, v[8:9]")
    a("s_waitcnt vmcnt(0) lgkmcnt(0)")
    big_read()
    a("s_barrier")
    for ks in range(4):
        for h in range(2): a(f"ds_read_b64_tr_b16 {vr(SM(ks)+2*h,2)}, v7 offset:{ks*1024 + h*128}")
    for ks in range(4):
        a(f"s_waitcnt lgkmcnt({6-2*ks})")
        a(f"{MF} {vr(DD,4)}, {vr(BIG(ks),4)}, {vr(SM(ks),4)}, {'0' if ks==0 else vr(DD,4)}")
    stamp()
    a(f"v_add_f32 v8, v{DD}, v{DD+1}")
    a(f"v_add_f32 v9, v{DD+2}, v{DD+3}")
    a("v_add_f32 v8, v8, v9")
    a("v_mul_f32 v8, s41, v8")
    a(f"v_sub_f32 v9, v8, v{DD}")
    a("v_cndmask_b32 v8, v8, v9, s[36:37]")
    a("ds_write_b32 v10, v8 offset:4096")
    a("s_waitcnt lgkmcnt(0)")
    a("s_barrier")
    for i in range(16): a(f"ds_read2_b32 {vr(16+2*i,2)}, v{11+i//8} offset0:{32*(i%8)} offset1:{32*(i%8)+16}")
    for i in range(1, 32):
        if i % 2 == 0 or i == 1: a(f"s_waitcnt lgkmcnt({15 - i//2})")
        a(f"v_add_f32 v16, v16, v{16+i}")
    for r in range(4): a(f"v_fma_f32 v{DD+r}, -v16, s40, v{DD+r}")
    a(f"v_cndmask_b32 v{DD}, v{DD}, 0, s[36:37]")
    a(f"v_cvt_pk_bf16_f32 v{DD}, v{DD}, v{DD+1}")
    a(f"v_cvt_pk_bf16_f32 v{DD+1}, v{DD+2}, v{DD+3}")
    a(f"buffer_store_dwordx2 {vr(DD,2)}, v5, s[28:31], s35 offen{ST1}")
    fin()
    a.label("L1_ln")
    a(f"s_load_dwordx2 s[6:7], s[0:1], {A_X}")
    a(f"s_cmp_ge_u32 s2, {K1_GRID}")
    a("s_cbranch_scc1 L1_end")
    a(f"s_sub_u32 s3, s2, {WG_LN0}")
    a(f"s_mul_i32 s3, s3, {80*256}")
    a("v_lshrrev_b32 v1, 6, v0")
    a("v_lshlrev_b32 v3, 4, v0")
    a("v_readfirstlane_b32 s24, v1")
    a("v_and_b32 v4, 15, v0")
    a("v_bfe_u32 v5, v0, 4, 3")
    a("v_lshlrev_b32 v5, 5, v5")
    a("v_xor_b32 v6, v3, v5")
    a("v_cmp_eq_u32 vcc, 0, v4")
    a(f"s_mov_b32 s20, {f32(1.0/128)}")
    a(f"v_mov_b32 v4, {f32(1e-5)}")
    a(f"v_mov_b32 v5, {f32(CH)}")
    a("s_mov_b32 s23, 0xffff0000")
    a("s_add_u32 s21, s3, 8192")
    a("s_add_u32 s22, s3, 16384")
    a("s_cmp_ge_u32 s24, 4")
    a("s_waitcnt lgkmcnt(0)")
    stamp(True)
    a("s_mov_b32 s8, s6")
    a("s_mov_b32 s9, s7")
    a(f"s_mov_b32 s10, {N*256}")
    a("s_mov_b32 s11, 0x00020000")
    a("s_cbranch_scc1 L1_ln2")
    c0 = cnt[0]
    for NI in (3, 2):
        cnt[0] = c0
        if NI == 2: a.label("L1_ln2")
        so = (3, 21, 22)
        I = range(NI)
        W = lambda i: 8 + 4 * i
        X = lambda i, k: 24 + 8 * i + k
        A, B = (lambda i: 48 + i), (lambda i: 52 + i)
        for i in I: a(f"buffer_load_dwordx4 {vr(W(i),4)}, v3, s[8:11], s{so[i]} offen")
        srd(a, 12, 4, N * 256, HP_OFF); srd(a, 16, 4, N * 256, HQ_OFF)
        for i in I:
            a(f"s_waitcnt vmcnt({NI-1-i})")
            for c in range(4):
                a(f"v_lshlrev_b32 v{X(i,2*c)}, 16, v{W(i)+c}")
                a(f"v_and_b32 v{X(i,2*c+1)}, s23, v{W(i)+c}")
        stamp()
        for i in I: a(f"v_add_f32 v{A(i)}, v{X(i,0)}, v{X(i,1)}")
        for k in range(2, 8):
            for i in I: a(f"v_add_f32 v{A(i)}, v{A(i)}, v{X(i,k)}")
        row_sum(a, [A(i) for i in I])
        for i in I: a(f"v_mul_f32 v{A(i)}, s20, v{A(i)}")
        for k in range(8):
            for i in I: a(f"v_sub_f32 v{X(i,k)}, v{X(i,k)}, v{A(i)}")
        for i in I: a(f"v_mul_f32 v{B(i)}, v{X(i,0)}, v{X(i,0)}")
        for k in range(1, 8):
            for i in I: a(f"v_fmac_f32 v{B(i)}, v{X(i,k)}, v{X(i,k)}")
        row_sum(a, [B(i) for i in I])
        for i in I: a(f"v_fma_f32 v{B(i)}, v{B(i)}, s20, v4")
        for i in I: a(f"v_rsq_f32 v{B(i)}, v{B(i)}")
        for k in range(8):
            for i in I: a(f"v_mul_f32 v{X(i,k)}, v{X(i,k)}, v{B(i)}")
        for i in I: a(f"v_mul_f32_dpp v{A(i)}, v{X(i,0)}, v5 row_newbcast:0 row_mask:0xf bank_mask:0xf")
        for i in I:
            for c in range(4): a(f"v_cvt_pk_bf16_f32 v{W(i)+c}, v{X(i,2*c)}, v{X(i,2*c+1)}")
            a(f"buffer_store_dwordx4 {vr(W(i),4)}, v6, s[16:19], s{so[i]} offen{ST1}")
        for i in I:
            for k in range(8): a(f"v_add_f32 v{X(i,k)}, v{X(i,k)}, v{A(i)}")
            a(f"v_cndmask_b32 v{X(i,0)}, v{X(i,0)}, 1.0, vcc")
            for c in range(4): a(f"v_cvt_pk_bf16_f32 v{X(i,c)}, v{X(i,2*c)}, v{X(i,2*c+1)}")
            a(f"buffer_store_dwordx4 {vr(X(i,0),4)}, v6, s[12:15], s{so[i]} offen{ST1}")
        fin()
    a.label("L1_end")
    a("s_endpgm")
def desc_k1(a):
    kernel_desc(a, NAME1, 64, 64, 96)
K1_LAUNCH = f"; @launch kernel={NAME1} grid=({K1_GRID},1,1) block=(512,1,1) lds=40960"
```

```python
from asmlib import *
from layout import *
from k1 import wave_scan
NAME2 = "attn_kernel"
NWG = 253
NSTEP = 39
RING = 32768
SPARE = 4 * RING
LIST_B = 1088 * 4
LREG = SPARE + 4 * LIST_B
OFR = SPARE + 20480
LDS2 = OFR + 12288
ST2 = ' nt'
SKIP = ()
NEARLY = 8
WS_BYTES = XCH_OFF + NWG * XCH_WG
MF = "v_mfma_f32_16x16x32_bf16"
MF16 = "v_mfma_f32_16x16x16_bf16"
OOB = "0x7fffff00"
NORM2_MAX = 48.0
O = lambda j, qb: (qb * 8 + j) * 4
Q = lambda qb, ks: 160 + (qb * 4 + ks) * 4
AM = lambda m, hf, ks: 160 + ((m * 2 + hf) * 4 + ks) * 4
KF = lambda par, kb, ks: 32 + par * 32 + (kb * 4 + ks) * 4
VF = lambda par, j: 96 + par * 32 + j * 4
S = lambda par, kb: 160 + par * 8 + kb * 4
P = lambda par: 176 + par * 4
KA = lambda ks: 8 + ks
VA = lambda j: 12 + j
VOFF0, VOFF1 = 20, 21
V_TAB, V_SEG, V_Q, V_G = 22, 23, 24, 25
V_DEG, V_HOT, V_RED = 26, 27, 1
V_ROW = lambda b: 28 + b
ENT = lambda j: 184 + j
CM = lambda qb: 200 + qb * 4
XR = lambda b: 220 + b * 4
LK = lambda ks: 184 + 4 * ks
LV = lambda j: 240 + 2 * j
LS, LP, LA = 236, 240, 244
U = 246
S_W, S_TILE, S_SPLIT, S_RING, S_KOFF, S_CNT, S_LEFT = 3, 28, 29, 30, 31, 33, 34
S_AM, S_LIST, S_NB, S_I = 40, 45, 46, 47
ST_OFF = 0x1000000
def red_off(s, qb, h):
    k = qb * 6 + (s - 1) * 2 + h
    return ((8 + k) % 32) * 1024

def gen_k2(a, stamps=False):
    nst = [0]
    seq = [0]
    def stamp():
        seq[0] += 1
        if not stamps or (SKIP and seq[0] in SKIP): return
        i = nst[0]; nst[0] += 1
        a(f"s_memtime s[{64+2*i}:{65+2*i}]")
    def emit(xs):
        for x in xs: a(x)
    kernel_begin(a, NAME2)
    a(f"s_lshr_b32 s{S_TILE}, s2, 4")
    a(f"s_lshl_b32 s{S_TILE}, s{S_TILE}, 3")
    a("s_and_b32 s34, s2, 7")
    a(f"s_add_u32 s{S_TILE}, s{S_TILE}, s34")
    a(f"s_cmp_ge_u32 s{S_TILE}, 125")
    a("s_cbranch_scc1 L2_end")
    a(f"s_load_dwordx2 s[4:5], s[0:1], {A_WS}")
    a(f"s_load_dwordx2 s[16:17], s[0:1], {A_X}")
    a(f"s_load_dwordx2 s[20:21], s[0:1], {A_OUT}")
    a(f"s_load_dwordx2 s[24:25], s[0:1], {A_DEG}")
    if stamps: a("s_memrealtime s[62:63]")
    stamp()
    a("v_lshrrev_b32 v1, 6, v0")
    a("v_and_b32 v0, 63, v0")
    a(f"s_bfe_u32 s{S_SPLIT}, s2, 0x10003")
    a(f"v_readfirstlane_b32 s{S_W}, v1")
    a(f"v_and_b32 v{V_Q}, 15, v0")
    a(f"v_lshrrev_b32 v{V_G}, 4, v0")
    a(f"v_lshlrev_b32 v{VOFF0}, 4, v0")
    a(f"v_add_u32 v{VOFF1}, 4096, v{VOFF0}")
    a(f"s_lshl_b32 s{S_RING}, s{S_W}, 15")
    a(f"s_lshl_b32 s35, s{S_SPLIT}, 2")
    a(f"s_add_u32 s38, s35, s{S_W}")
    a(f"s_mul_i32 s{S_KOFF}, s38, {NSTEP*8192}")
    a(f"s_mul_i32 s36, s{S_TILE}, {80*256}")
    a(f"s_mul_i32 s42, s{S_W}, 5120")
    a(f"s_add_u32 s43, s42, {SPARE}")
    a("s_add_u32 s42, s42, s36")
    a(f"s_add_u32 s42, s42, {HQ_OFF}")
    a(f"s_lshl_b32 s{S_AM}, s{S_W}, 13")
    a(f"s_add_u32 s41, s{S_AM}, {MQ_OFF}")
    a(f"s_add_u32 s{S_AM}, s{S_AM}, {MM_OFF}")
    a("s_mov_b32 m0, s43")
    a(f"s_lshl_b32 s39, s{S_TILE}, 3")
    a("s_add_u32 s39, s39, s35")
    a(f"s_lshl_b32 s44, s{S_W}, 16")
    a("s_lshl_b32 s35, s39, 2")
    a("s_add_u32 s44, s44, s35")
    a(f"s_add_u32 s44, s44, {TAB_OFF}")
    a(f"v_lshlrev_b32 v2, 12, v{V_Q}")
    a(f"v_lshl_add_u32 v2, v{V_G}, 2, v2")
    a(f"s_xor_b32 s35, s{S_SPLIT}, 1")
    a("s_mul_i32 s37, s35, 15")
    a(f"v_xor_b32 v3, s37, v{V_Q}")
    a("s_mul_i32 s37, s35, 3")
    a(f"s_xor_b32 s48, s37, s{S_W}")
    a("s_add_u32 s39, s39, s48")
    a(f"s_mul_i32 s49, s35, {4*4096}")
    a("s_add_u32 s36, s36, s49")
    a(f"s_add_u32 s49, s49, {SPARE}")
    a("s_lshl_b32 s37, s35, 13")
    a("s_sub_u32 s37, 4096, s37")
    a(f"s_mul_i32 s{S_LEFT}, s35, 4")
    a(f"s_mul_i32 s{S_LEFT}, s{S_LEFT}, s{S_W}")
    a(f"s_add_u32 s{S_LEFT}, s{S_LEFT}, s{S_W}")
    a(f"s_mul_i32 s{S_LIST}, s{S_W}, {LIST_B}")
    a(f"s_add_u32 s{S_LIST}, s{S_LIST}, {SPARE}")
    a(f"v_lshrrev_b32 v5, 1, v{V_G}")
    a(f"v_and_b32 v6, 1, v{V_G}")
    a("v_lshlrev_b32 v31, 4, v6")
    for row, base, dst in (("v3", "s49", 232), (f"v{V_Q}", f"s{S_RING}", KA(0))):
        a(f"v_and_b32 v4, 7, {row}")
        a(f"v_lshl_add_u32 v6, {row}, 8, v31")
        a(f"v_add_u32 v6, {base}, v6")
        for ks in range(4):
            a(f"v_add_u32 v7, {2*ks}, v5")
            a("v_xor_b32 v7, v7, v4")
            a(f"v_lshl_add_u32 v{dst+ks}, v7, 5, v6")
    a("s_waitcnt lgkmcnt(0)")
    stamp()
    srd(a, 12, 4, WS_BYTES)
    HB = lambda qb, ks: 32 + (qb * 4 + ks) * 4
    MA = lambda hf, ks: 112 + (hf * 4 + ks) * 4
    QD = lambda qb, hf: 144 + (qb * 2 + hf) * 4
    for pc in range(4): a(f"buffer_load_dwordx4 v{VOFF0}, s[12:15], s42 offen offset:{pc*1024} lds")
    a("s_add_u32 m0, s43, 4096")
    srd(a, 8, 4, N * 256, HP_OFF)
    a(f"buffer_load_dwordx4 v{VOFF1}, s[12:15], s42 offen lds ; #hq")
    for hf in range(2):
        for ks in range(4): a(f"buffer_load_dwordx4 {vr(MA(hf,ks),4)}, v{VOFF0+hf}, s[12:15], s41 offen offset:{ks*1024} ; #mq")
    a(f"buffer_load_dword v{V_TAB}, v2, s[12:15], s44 offen ; #tab")
    def dma(slot, piece, last=7):
        out = []
        half, sub = piece // 4, piece % 4
        if sub == 0: out.append(f"s_add_u32 m0, s{S_RING}, {slot*8192 + half*4096}")
        out.append(f"buffer_load_dwordx4 v{VOFF0+half}, s[8:11], s{S_KOFF} offen offset:{sub*1024} lds")
        if piece == last: out.append(f"s_add_u32 s{S_KOFF}, s{S_KOFF}, 8192")
        return out
    tagged = lambda grp, tag: [x + f" ; #{tag}" if x.startswith("buffer_") else x for x in grp]
    stamp()
    for s, nb in ((16, N * 256), (20, N * 256), (24, N * 2)):
        a(f"s_mov_b32 s{s+2}, {nb}")
        a(f"s_mov_b32 s{s+3}, 0x00020000")
    a(f"v_lshrrev_b32 v4, 2, v{V_Q}")
    a(f"v_lshl_add_u32 v4, v{V_G}, 2, v4")
    a(f"v_and_b32 v5, 3, v{V_Q}")
    a("v_lshlrev_b32 v5, 3, v5")
    a("v_lshl_add_u32 v5, v4, 8, v5")
    a(f"v_add_u32 v5, s{S_RING}, v5")
    a("v_and_b32 v4, 7, v4")
    a(f"s_lshl_b32 s43, s{S_W}, 1")
    for j in range(8):
        a(f"s_add_u32 s44, s43, {j}")
        a("s_and_b32 s44, s44, 7")
        a("v_xor_b32 v7, s44, v4")
        a(f"v_lshl_add_u32 v{VA(j)}, v7, 5, v5")
    a("v_lshlrev_b32 v3, 8, v3")
    a(f"v_lshl_add_u32 v3, v{V_G}, 4, v3")
    a(f"s_lshl_b32 s44, s{S_W}, 6")
    a("s_add_u32 s44, s44, s36")
    a("s_mul_i32 s43, s37, 3")
    a("s_add_u32 s44, s44, s43")
    a(f"v_add_u32 v{V_ROW(1)}, s44, v3")
    a(f"v_mov_b32 v3, {OOB}")
    a(f"v_cmp_lt_u32 vcc, 7, v{V_Q}")
    a(f"v_add_u32 v{V_ROW(2)}, s37, v{V_ROW(1)}")
    a(f"v_subrev_u32 v{V_ROW(0)}, s37, v{V_ROW(1)}")
    a(f"v_cndmask_b32 v{V_ROW(0)}, v3, v{V_ROW(0)}, vcc")
    a(f"v_sub_u32 v4, 9, v{V_Q}")
    a(f"s_cmp_eq_u32 s{S_SPLIT}, 1")
    a("s_cselect_b64 vcc, -1, 0")
    a("s_mul_i32 s44, s39, 10")
    a(f"v_cndmask_b32 v5, v4, v{V_Q}, vcc")
    a(f"v_cmp_gt_u32 vcc, 10, v{V_Q}")
    a("v_add_lshl_u32 v4, v5, s44, 1")
    a("v_sub_u32 v5, 14, v5")
    a("v_lshlrev_b32 v5, v5, 1")
    a(f"v_cndmask_b32 v{V_DEG}, v3, v4, vcc")
    a(f"v_cndmask_b32 v{V_HOT}, 0, v5, vcc")
    a(f"v_mul_u32_u24 v{V_SEG}, {EPP*4}, v0")
    a(f"v_add_u32 v{V_SEG}, {SEG_OFF}, v{V_SEG}")
    a(f"v_add_u32 v{V_RED}, s{S_RING}, v{VOFF0}")
    a(f"v_add_u32 v6, {2*RING}, v{VOFF0}")
    a(f"v_lshlrev_b32 v2, 2, v{V_Q}")
    a(f"v_lshl_add_u32 v2, v{V_G}, 8, v2")
    a(f"s_lshl_b32 s44, s{S_W}, 6")
    a(f"s_add_u32 s44, s44, {OFR}")
    a("v_add_u32 v2, s44, v2")
    a(f"s_lshl_b32 s44, s{S_W}, 2")
    a(f"v_add_u32 v5, {OFR+1024}, v{VOFF0}")
    a("v_add_u32 v4, s44, v5")
    a("s_lshl_b32 s48, s48, 8")
    a(f"s_add_u32 s48, s48, {OFR}")
    a("v_lshl_add_u32 v3, v0, 2, s48")
    for pc in range(NEARLY): emit(tagged(dma(pc // 8, pc % 8), f"t{pc//8}"))
    a("@wait vm hq")
    a("s_barrier")
    stamp()

    def hb_reads(qb):
        for ks in range(4): a(f"ds_read_b128 {vr(HB(qb,ks),4)}, v{232+ks}")
        if qb < 4:
            for ks in range(4): a(f"v_add_u32 v{232+ks}, s37, v{232+ks}")
    hb_reads(0); hb_reads(1); hb_reads(2)
    late = [tagged(dma(pc // 8, pc % 8), f"t{pc//8}") for pc in range(NEARLY, 16)]
    a("@wait vm mq")
    NQ = lambda qb: 184 + qb
    def post(qb):
        sq = [f"v_mul_f32 v{NQ(qb)}, v{QD(qb,0)}, v{QD(qb,0)}"] + [f"v_fmac_f32 v{NQ(qb)}, v{QD(qb,0)+i}, v{QD(qb,0)+i}" for i in range(1, 8)]
        if qb: sq.append(f"v_max_f32 v{NQ(0)}, v{NQ(0)}, v{NQ(qb)}")
        cv = [f"v_cvt_pk_bf16_f32 v{HB(qb,0)+c}, v{QD(qb,0)+2*c}, v{QD(qb,0)+2*c+1}" for c in range(4)]
        return cv[:2] + sq[:4] + cv[2:] + sq[4:]
    for qb in range(5):
        if qb + 3 < 5: hb_reads(qb + 3)
        a(f"s_waitcnt lgkmcnt({4*min(3, 4-qb) + (1 if qb >= 3 else 0)})")
        po = post(qb - 1) if qb else []
        for hf in range(2):
            for ks in range(4):
                a(f"{MF} {vr(QD(qb,hf),4)}, {vr(MA(hf,ks),4)}, {vr(HB(qb,ks),4)}, {'0' if ks==0 else vr(QD(qb,hf),4)}")
                if hf * 4 + ks == 0 and qb >= 3: emit(late.pop(0))
                elif hf * 4 + ks >= 1:
                    for _ in range(2):
                        if po: a(po.pop(0))
        assert not po
        if qb >= 1: a(f"ds_write_b128 v{V_RED}, {vr(HB(qb-1,0),4)} offset:{24576 + (qb-1)*1024}")
    stamp()
    for _ in range(2): emit(late.pop(0))
    a("@wait vm tab")
    a(f"ds_write_b32 v2, v{V_TAB}")
    po = post(4)
    emit(po[:8])
    a(f"ds_write_b128 v{V_RED}, {vr(HB(4,0),4)} offset:{24576 + 4*1024}")
    emit(po[8:])
    a(f"ds_write_b32 v4, v{NQ(0)}")
    for g in late: emit(g)
    a("@wait vm t0")
    a("s_waitcnt lgkmcnt(0)")
    a("s_barrier")
    stamp()

    def kread(par, slot, j):
        kb, ks = j // 4, j % 4
        return f"ds_read_b128 {vr(KF(par,kb,ks),4)}, v{KA(ks)} offset:{slot*8192 + kb*4096}"
    def vread(par, slot, j):
        db, hf = j // 2, j % 2
        return f"ds_read_b64_tr_b16 {vr(VF(par,db)+2*hf,2)}, v{VA(db)} offset:{slot*8192 + hf*4096}"
    def qk(spar, kpar, qb, j, slow):
        kb, ks = j // 4, j % 4
        c = (vr(CM(qb), 4) if slow else "0") if ks == 0 else vr(S(spar, kb), 4)
        return f"{MF} {vr(S(spar,kb),4)}, {vr(KF(kpar,kb,ks),4)}, {ar(Q(qb,ks),4)}, {c}"
    def pv(ppar, vpar, qb, j, first=False):
        return f"{MF} {ar(O(j,qb),4)}, {vr(VF(vpar,j),4)}, {vr(P(ppar),4)}, {'0' if first else ar(O(j,qb),4)}"
    def qread(qb): return [f"ds_read_b128 {ar(Q(qb,ks),4)}, v{VOFF0 if ks<2 else 6} offset:{(ks%2)*RING + 24576 + qb*1024}" for ks in range(4)]
    emit(qread(0))
    for j in range(4): a(kread(0, 0, j))
    a(f"ds_read_b128 v[188:191], v5 ; #nq")
    for j in range(4, 8): a(kread(0, 0, j) + " ; #k0")
    rd = qread(1) + qread(2) + qread(3) + qread(4) + [f"ds_read_b32 v{V_TAB}, v3 ; #q"]
    emit(rd[:3]); rd = rd[3:]
    a("@wait lg nq")
    for j in range(8):
        if j == 4: a("@wait lg k0")
        a(qk(0, 0, 0, j, False))
        for _ in range(2):
            if rd: a(rd.pop(0))
    emit(["v_add_f32 v188, v188, v189", "v_add_f32 v190, v190, v191", "v_add_f32 v188, v188, v190", "v_mov_b32 v189, v188"])
    emit(tagged(dma(2, 0), "t2"))
    emit(["v_permlane32_swap_b32 v188, v189", "v_add_f32 v188, v188, v189", "v_mov_b32 v189, v188"])
    emit(tagged(dma(2, 1), "t2"))
    emit(["v_permlane16_swap_b32 v188, v189", "v_add_f32 v188, v188, v189", f"v_mov_b32 v189, {f32(NORM2_MAX)}", "v_cmp_nle_f32 vcc, v188, v189"])
    stamp()
    vl = [vread(0, 0, j) + " ; #v0" for j in range(16)]
    for pc in range(2, 8):
        emit(vl[2*pc-4:2*pc-2])
        emit(tagged(dma(2, pc), "t2"))
    a("@wait lg q")
    a("s_barrier")
    stamp()
    emit(vl[12:])
    a(f"v_and_b32 v7, 0xffff, v{V_TAB}")
    a(f"v_lshl_add_u32 v{V_SEG}, v7, 2, v{V_SEG}")
    a(f"v_lshrrev_b32 v{V_TAB}, 16, v{V_TAB}")
    a(f"s_mov_b32 s{S_CNT}, {(NSTEP-7)//4}")
    a("s_cbranch_vccnz L2_slow")

    def red_write(s, qb, h): return f"ds_write_b128 v{V_RED}, {ar(O(2*s+h,qb),4)} offset:{red_off(s,qb,h)}"
    def step(t, slow, loop_end=False):
        par = t % 2
        nslot = (t + 1) % 4
        sc = [[] for _ in range(80)]; mem = [[] for _ in range(80)]; val = [[] for _ in range(80)]
        last = t == NSTEP - 1
        in_loop = 3 <= t < 7
        adj = NSTEP - 11 if in_loop else 0
        used = [8 if G % 2 == 0 else (4 if G % 4 == 3 else 0) for G in range(80)]
        def cost(x): return 8 if x.startswith(("buffer_", "v_exp", "ds_write_b128")) else 4
        def put(G, x):
            (val if x.startswith("v_") else mem)[G].append(x); used[G] += cost(x)
        def place(items, G, sep=0):
            prev = None
            for x in items:
                grp = x if isinstance(x, list) else [x]
                y = next(z for z in grp if not z.startswith("s_"))
                if prev is not None: G += sep if sep else (1 if prev.startswith("v_") and not y.startswith("v_") else 0)
                while used[G] + cost(y) > 8: G += 1
                put(G, y)
                k = grp.index(y)
                sc[G - 1] += grp[:k]; sc[G + 1] += grp[k + 1:]
                prev = y
            return G
        if not last:
            for j in range(8): put(1 + 2 * j, kread(1 - par, nslot, j) + f" ; #k{t+1+adj}")
            for j in range(16): put(16 + 4 * j + 3, vread(1 - par, nslot, j) + f" ; #v{t+1+adj}")
            sc[0].append("s_waitcnt vmcnt(16)" if in_loop else f"@wait vm t{t+1}")
            sc[62].append("s_waitcnt lgkmcnt(11)" if in_loop else f"@wait lg k{t+1}")
        sc[14].append("s_waitcnt lgkmcnt(7)" if in_loop else f"@wait lg v{t}")
        tg = lambda grp, tag: [x + f" ; #{tag}" if x.startswith("buffer_") else x for x in grp]
        if t == 0:
            place([tg(dma(3, pc), "t3") for pc in range(8)] + [tg(dma(0, pc), "t4") for pc in range(8)], 17, 4)
        elif t + 4 < NSTEP:
            place([tg(dma(t % 4, pc), f"t{t+4+adj}") for pc in range(8)], 17, 8)
        def am_stage(slot):
            out = []
            for pc in range(8):
                hf, ks = pc // 4, pc % 4
                g = [f"s_add_u32 m0, s{S_RING}, {slot*8192 + hf*4096}"] if ks == 0 else []
                g.append(f"buffer_load_dwordx4 v{VOFF0+hf}, s[12:15], s{S_AM} offen offset:{ks*1024} lds ; #am")
                if pc == 7: g.append(f"s_sub_u32 s{S_AM}, s{S_AM}, {MM_OFF-MV_OFF}")
                out.append(g)
            return out
        if t == 2:
            sc[2].append(f"s_mov_b32 s35, {8*NSTEP*8192}")
            for pc, G in enumerate((21, 29, 37, 53)):
                half = 0 if G < 49 else 1
                sc[G - 1].append(f"s_mov_b32 m0, s{S_LIST}")
                put(G, f"buffer_load_dwordx4 v{VOFF0}, s[8:11], s35 offen offset:{pc*1024} lds ; #left")
                sc[G + 1].append(f"s_add_u32 m0, s{S_RING}, {(t%4)*8192 + half*4096}")
        if t == NSTEP - 4:
            place(am_stage(3), 17, 8)
            sc[2].append(f"s_sub_u32 s35, s{S_LIST}, s{S_RING}")
            G = place([f"v_add_u32 v{LA+i}, s35, v{KA(0)+i}" for i in range(12)], 5)
            rl = [f"ds_read_b128 {vr(LK(ks),4)}, v{LA+ks} ; #lk" for ks in range(4)] + [f"ds_read_b64_tr_b16 {ar(LV(j),2)}, v{LA+4+j} ; #lv" for j in range(8)]
            place(rl[:6], G + 1)
            step.rest = rl[6:]
        if t == NSTEP - 3:
            ops = []
            for k in range(4):
                ops += [f"v_sub_u32 v{U+k}, {4*k+1}, v{V_TAB} clamp", f"v_lshl_add_u32 v{U+k}, v{U+k}, 26, v{V_SEG}"]
            step.ent = [f"buffer_load_dwordx4 {vr(ENT(4*k),4)}, v{U+k}, s[12:15], 0 offen offset:{16*k} ; #ent" for k in range(4)]
            G = place(step.rest, 1)
            xl = [f"buffer_load_dwordx4 {vr(XR(b),4)}, v{V_ROW(b)}, s[16:19], 0 offen" for b in range(3)] + [f"buffer_load_ushort v{V_DEG}, v{V_DEG}, s[24:27], 0 offen"]
            G = place(xl + ops[:2] + [step.ent[0]], G + 1)
            G = place([f"v_exp_f32 v{LS+e}, v{LS+e}" for e in range(4)] + [f"v_cvt_pk_bf16_f32 v{LP+c}, v{LS+2*c}, v{LS+2*c+1}" for c in range(2)], G)
            G = place(ops[2:], G)
            tmp = Asm(); wave_scan(tmp, U + 5)
            ops = [f"v_min_u32 v{U+4}, 16, v{V_TAB}", f"v_mov_b32 v{U+5}, v{U+4}"]
            place(ops, G)
            step.scan = [x.strip() for x in tmp.lines]
        if t == NSTEP - 2:
            G = place(step.scan[:4], 1, 4)
            G = place(step.ent[1:], 17)
            G = place(step.scan[4:], G, 4)
            G = place([f"v_readlane_b32 s{S_NB}, v{U+5}, 63", f"v_sub_u32 v{U+5}, v{U+5}, v{U+4}"], G + 1)
            G = place(am_stage(0), G)
            G = place([f"v_add_u32 v{U+6}, s{S_NB}, v0", f"v_lshl_add_u32 v{U+5}, v{U+5}, 2, s{S_LIST}"], G)
        if last:
            G = place([f"v_lshl_add_u32 v{U+6}, v{U+6}, 2, s{S_LIST}", f"v_mov_b32 v{U+7}, 0x7fffff0f", f"ds_write_b32 v{U+6}, v{U+7}"], 1)
            sc[4].append("@wait vm ent")
            for j in range(8):
                r = U + j % 4
                G = place([f"v_sub_u32 v{r}, {j+1}, v{U+4} clamp", f"v_lshl_add_u32 v{r}, v{r}, 18, v{U+5}", f"ds_write_b32 v{r}, v{ENT(j)} offset:{4*j}"], max(G, 5))
            for qb, gaps in ((0, [37, 39, 41, 43, 45, 47]), (1, [49, 51, 53, 55, 57, 61])):
                for G, (s, h) in zip(gaps, [(s, h) for s in range(1, 4) for h in range(2)]): mem[G].append(red_write(s, qb, h))
            sc[62].append("@wait vm am")
            amr = [f"ds_read_b128 {ar(AM(m,hf,ks),4)}, v{V_RED} offset:{(0,24576)[m] + hf*4096 + ks*1024}" for m in (1, 0) for hf in range(2) for ks in range(4)]
            for i in range(8): mem[63 + 2 * i] += amr[2 * i:2 * i + 2]
        if loop_end:
            sc[76].append(f"s_sub_u32 s{S_CNT}, s{S_CNT}, 1")
            sc[78].append(f"s_cmp_lg_u32 s{S_CNT}, 0")
        for p in range(5):
            u = 5 * t + p
            sp = u % 2
            qks = [qk(1 - sp, (par + (p == 4)) % 2, (p + 1) % 5, j, slow) for j in range(8)]
            pvs = [pv(1 - sp, (par - (p == 0)) % 2, (p + 4) % 5, j, u <= 5) for j in range(8)]
            if u == 0: pvs = [None] * 8
            if last and p == 4: qks = [None] * 8
            mf = qks[:4] + pvs[:4] + qks[4:] + pvs[4:]
            for e in range(8): val[16 * p + 2 * e].append(f"v_exp_f32 v{S(sp,e//4)+e%4}, v{S(sp,e//4)+e%4}")
            for c in range(4): val[16 * p + 4 * c + 3].append(f"v_cvt_pk_bf16_f32 v{P(sp)+c}, v{S(sp,c//2)+2*(c%2)}, v{S(sp,c//2)+2*(c%2)+1}")
            for i in range(16):
                G = 16 * p + i
                if mf[i]: a(mf[i])
                emit(sc[G] + mem[G] + val[G])

    def variants(tag, body, pre=()):
        emit(pre)
        a(f"s_cmp_ge_u32 s{S_LEFT}, 4")
        a(f"s_cbranch_scc1 {tag}_x")
        for r in range(3):
            a(f"s_cmp_eq_u32 s{S_LEFT}, {r}")
            a(f"s_cbranch_scc1 {tag}_{r}")
        for r in (3, 2, 1, 0):
            if r < 3: a.label(f"{tag}_{r}")
            emit(body(r))
            if r: a(f"s_branch {tag}_x")
        a.label(f"{tag}_x")
    def main_loop(slow):
        tag = "s" if slow else "f"
        if not slow: stamp()
        for t in range(3): step(t, slow)
        a.raw(".p2align 6")
        a.label(f"L2_loop_{tag}")
        for t in range(3, 7): step(t, slow, t == 6)
        a(f"s_cbranch_scc1 L2_loop_{tag}")
        step(NSTEP - 4, slow)
        variants(f"L2_lq{tag}", lambda r: [f"{MF} {vr(LS,4)}, {vr(LK(ks),4)}, {ar(Q(r,ks),4)}, {(vr(CM(r),4) if slow else '0') if ks==0 else vr(LS,4)}" for ks in range(4)],
                 ["@wait lg lk"])
        step(NSTEP - 3, slow)
        variants(f"L2_lv{tag}", lambda r: [f"{MF16} {ar(O(j,r),4)}, {ar(LV(j),2)}, {vr(LP,2)}, {ar(O(j,r),4)}" for j in range(8)], ["@wait lg lv"])
        step(NSTEP - 2, slow)
        step(NSTEP - 1, slow)
        wr = [red_write(s, 2, h) for s in range(1, 4) for h in range(2)]
        for j in range(8):
            a(pv((5 * NSTEP - 1) % 2, (NSTEP - 1) % 2, 4, j))
            if wr: a(wr.pop(0))
        if not slow: a("s_branch L2_epi")
    main_loop(False)

    a.label("L2_slow")
    a("s_waitcnt lgkmcnt(0)")
    for ks in range(4): a(f"v_subrev_u32 v{232+ks}, s{S_RING}, v{KA(ks)}")
    for qb in range(5): a(f"v_mov_b32 v{CM(qb)}, 0xff800000")
    a("s_mov_b32 s35, 0")
    a.label("L2_max")
    for ks in range(4): a(f"buffer_load_dwordx4 {vr(KF(1,0,ks),4)}, v{232+ks}, s[8:11], s35 offen")
    a("s_waitcnt vmcnt(0)")
    for qb in range(5):
        for ks in range(4): a(f"{MF} {vr(160+4*qb,4)}, {vr(KF(1,0,ks),4)}, {ar(Q(qb,ks),4)}, {'0' if ks==0 else vr(160+4*qb,4)}")
    for qb in range(5):
        a(f"v_max3_f32 v{CM(qb)}, v{CM(qb)}, v{160+4*qb}, v{161+4*qb}")
        a(f"v_max3_f32 v{CM(qb)}, v{CM(qb)}, v{162+4*qb}, v{163+4*qb}")
    a("s_add_u32 s35, s35, 4096")
    a(f"s_cmp_lt_u32 s35, {N*256}")
    a("s_cbranch_scc1 L2_max")
    for x in (16, 32):
        a(f"v_xor_b32 v2, {x}, v0")
        a("v_lshlrev_b32 v2, 2, v2")
        for qb in range(5): a(f"ds_bpermute_b32 v{CM(qb)+1}, v2, v{CM(qb)}")
        a("s_waitcnt lgkmcnt(0)")
        for qb in range(5): a(f"v_max_f32 v{CM(qb)}, v{CM(qb)}, v{CM(qb)+1}")
    for qb in range(5):
        a(f"v_sub_f32 v{CM(qb)}, 0, v{CM(qb)}")
        for r in range(1, 4): a(f"v_mov_b32 v{CM(qb)+r}, v{CM(qb)}")
    for j in range(8): a(qk(0, 0, 0, j, True))
    a("s_nop 7")
    main_loop(True)

    a.label("L2_epi")
    stamp()
    R = lambda qb: 32 + qb * 8
    T = lambda k: 72 + k * 8
    AG = lambda j: 96 + 4 * j
    GV = lambda j: 128 + 4 * j
    V_AD, V_OH, V_FLAG, V_RL, V_BA, TMP = 200, 201, 202, 203, 206, 210
    V_OW, V_OR, V_LW, V_LR, V_P0, V_P1 = 214, 215, 216, 217, 218, 219
    GA = lambda k, i: 160 + 8 * k + i
    OH = lambda i: 84 + i
    OB = 92
    def weave(main, groups, first=0):
        n = len(main) - first
        pos = {first + (k * n) // len(groups): g for k, g in enumerate(groups)} if groups else {}
        assert len(pos) == len(groups)
        for x, ins in enumerate(main):
            a(ins)
            emit(pos.get(x, []))
    def acc_reads(qb): return [f"v_accvgpr_read_b32 v{R(qb)+4*h+r}, a{O(h,qb)+r}" for h in range(2) for r in range(4)]
    for s in range(1, 4):
        emit([f"s_sub_u32 s41, s{S_W}, {s}", "s_and_b32 s41, s41, 3", "s_lshl_b32 s41, s41, 15", f"v_add_u32 v{2+s}, s41, v{VOFF0}"])
    emit(acc_reads(0))
    a("s_waitcnt lgkmcnt(0)")
    a("s_barrier")
    stamp()
    def red_read(k, s, qb):
        for h in range(2): a(f"ds_read_b128 {vr(T(k)+4*h,4)}, v{3+s} offset:{red_off(s+1,qb,h)}")
    for qb in range(3):
        for s in range(3): red_read(3 * qb + s, s, qb)
    emit(["s_xor_b32 s42, s2, 8", f"s_mul_i32 s42, s42, {XCH_WG}", f"s_mul_i32 s43, s{S_W}, 5120", f"s_add_u32 s43, s43, {XCH_OFF}",
          "s_add_u32 s42, s42, s43",
          f"s_mul_i32 s44, s2, {XCH_WG}", "s_add_u32 s43, s43, s44",
          f"v_sub_u32 v6, 23, v{V_Q}", "v_lshlrev_b32 v6, 6, v6", f"v_lshl_add_u32 v6, v{V_G}, 4, v6",
          f"v_cmp_gt_u32 vcc, 8, v{V_Q}", "v_subrev_u32 v7, 1024, v6", f"v_mov_b32 v31, {OOB}", "v_cndmask_b32 v7, v31, v7, vcc"])
    emit(acc_reads(1) + acc_reads(2))
    wr = [red_write(s, qb, h) for qb in (3, 4) for s in range(1, 4) for h in range(2)]
    nw = 0
    for qb in range(3):
        for s in range(3):
            k = 3 * qb + s
            a(f"s_waitcnt lgkmcnt({min(15, 2*(8-k) + nw)})")
            for i in range(8):
                a(f"v_add_f32 v{R(qb)+i}, v{R(qb)+i}, v{T(k)+i}")
                if i in (3, 7) and wr: a(wr.pop(0)); nw += 1
        for h in range(2):
            va, off = (7, 0) if qb == 2 else (6, (1 - qb) * 1024)
            a(f"buffer_store_dwordx4 {vr(R(qb)+4*h,4)}, v{va}, s[12:15], s42 offen offset:{off + h*2560} sc1")
    assert not wr
    emit(acc_reads(3) + acc_reads(4))
    def build_list(tag):
        t = U + 4 if tag == "a" else 36
        if tag == "b":
            a(f"v_min_u32 v{t}, 16, v{V_TAB}")
            a(f"v_mov_b32 v{t+1}, v{t}")
            wave_scan(a, t + 1)
            a(f"v_readlane_b32 s{S_NB}, v{t+1}, 63")
            a(f"v_sub_u32 v{t+1}, v{t+1}, v{t}")
            a(f"v_lshl_add_u32 v{t+1}, v{t+1}, 2, s{S_LIST}")
            a(f"v_add_u32 v{t+2}, s{S_NB}, v0")
            a(f"v_lshl_add_u32 v{t+2}, v{t+2}, 2, s{S_LIST}")
            a(f"v_mov_b32 v{t+3}, 0x7fffff0f")
            a(f"ds_write_b32 v{t+2}, v{t+3}")
        for j in range(8 if tag == "a" else 0, 16):
            a(f"v_cmp_lt_u32 vcc, {j}, v{t}")
            a("s_and_b64 exec, exec, vcc")
            a(f"s_cbranch_execz L2_built_{tag}")
            a(f"ds_write_b32 v{t+1}, v{ENT(j)} offset:{4*j}")
        a.label(f"L2_built_{tag}")
        a("s_mov_b64 exec, -1")
        a(f"s_add_u32 s{S_NB}, s{S_NB}, 31")
        a(f"s_lshr_b32 s{S_NB}, s{S_NB}, 5")
        a(f"v_lshl_add_u32 v{V_AD}, v{V_G}, 5, s{S_LIST}")
        a(f"v_lshl_add_u32 v{V_OH}, v{V_G}, 2, s{S_LIST}")
    def addr_reads(k, off):
        return [f"ds_read_b128 {vr(GA(k,0),4)}, v{V_AD} offset:{off}", f"ds_read_b128 {vr(GA(k,4),4)}, v{V_AD} offset:{off+16}"]
    build_list("a")
    for k in range(4): emit(addr_reads(k, k * 128))
    a("s_waitcnt lgkmcnt(8)")
    a("s_barrier")
    stamp()
    for n, qb in enumerate((3, 4)):
        for s in range(3): red_read(3 * n + s, s, qb)
    emit([f"v_lshrrev_b32 v9, 1, v{V_Q}", f"v_xor_b32 v9, v9, v{V_G}", "v_lshlrev_b32 v9, 5, v9", f"v_and_b32 v10, 1, v{V_Q}",
          "v_lshl_or_b32 v9, v10, 4, v9", "v_xor_b32 v10, 0x80, v9", f"v_lshlrev_b32 v11, 16, v{V_HOT}",
          "s_mov_b32 s48, 0xfffffff0", "s_mov_b32 s52, s8", "s_mov_b32 s53, s9", "s_mov_b32 s55, 0x00020000",
          f"s_lshl_b32 s50, s{S_W}, 2", f"s_add_u32 s50, s50, {FLG_OFF}", "s_lshl_b32 s57, s2, 7", "s_xor_b32 s51, s57, 1024",
          "s_add_u32 s51, s51, s50", "s_add_u32 s57, s57, s50", "s_mov_b32 s49, 0x400000"])
    for n, qb in enumerate((3, 4)):
        for s in range(3):
            k = 3 * n + s
            a(f"s_waitcnt lgkmcnt({2*(5-k)})")
            for i in range(8): a(f"v_add_f32 v{R(qb)+i}, v{R(qb)+i}, v{T(k)+i}")
    a("s_barrier")
    stamp()
    def fire(k, regs, slot):
        g = [[f"s_add_u32 m0, s{S_RING}, {slot*8192 + i*1024}",
              f"v_bitop3_b32 v{GA(regs,i)}, v{GA(regs,i)}, v{9 + i%2}, s48 bitop3:0x28",
              f"buffer_load_dwordx4 v{GA(regs,i)}, s[52:55], 0 offen lds"] for i in range(8)]
        g[0] = [f"s_cmp_gt_u32 s{S_NB}, {k}", f"s_cselect_b32 s54, {N*256}, 0"] + g[0]
        return g
    def proc_head(k, extra=()):
        for c in range(4): a(f"ds_read2_b32 {vr(OH(2*c),2)}, v{V_OH} offset0:{32*k + 16*(c%2) + 4*(c//2)} offset1:{32*k + 16*(c%2) + 4*(c//2) + 8}")
        emit(extra)
    def proc_body(slot, first=False):
        m = []
        for j in range(16):
            m.append(f"ds_read_b64_tr_b16 {vr(GV(j//2)+2*(j%2),2)}, v{VA(j//2)} offset:{slot*8192 + (j%2)*4096}")
            if j == 7: m.append("s_waitcnt lgkmcnt(8)")
            if 8 <= j < 12:
                c = j - 8
                m += [f"v_lshlrev_b32 v{OB+c}, v{OH(2*c)}, v{V_HOT}", f"v_lshl_or_b32 v{OB+c}, v11, v{OH(2*c+1)}, v{OB+c}", f"v_and_b32 v{OB+c}, 0x40004000, v{OB+c}"]
        for j in range(8):
            m += [f"s_waitcnt lgkmcnt({14-2*j})", f"{MF} {vr(AG(j),4)}, {vr(GV(j),4)}, {vr(OB,4)}, {'0' if first else vr(AG(j),4)}"]
        return m
    pre = []
    for b in range(3):
        t = TMP
        pre += [f"v_add_u32 v{t}, {16*b-8}, v{V_Q}"] + ([f"v_max_i32 v{t}, 0, v{t}"] if b == 0 else [])
        pre += [f"v_mul_u32_u24 v{t+1}, 26, v{t}", f"v_lshrrev_b32 v{t+1}, 8, v{t+1}",
                f"v_mul_u32_u24 v{t+2}, 10, v{t+1}", f"v_sub_u32 v{t}, v{t}, v{t+2}",
                f"v_lshl_add_u32 v{t}, v{V_G}, 4, v{t}", f"v_lshlrev_b32 v{t}, 4, v{t}",
                f"v_lshl_add_u32 v{V_BA+b}, v{t+1}, 15, v{t}"]
    pre += [f"v_lshlrev_b32 v{V_DEG}, 16, v{V_DEG}", f"v_mul_f32 v{V_DEG}, 0.5, v{V_DEG}",
            f"v_add_u32 v{V_P1}, 8, v{V_Q}", f"v_lshlrev_b32 v{V_P1}, 6, v{V_P1}", f"v_lshl_add_u32 v{V_P1}, v{V_G}, 4, v{V_P1}",
            f"v_cmp_lt_u32 vcc, 7, v{V_Q}", f"v_subrev_u32 v{V_P0}, 1024, v{V_P1}", f"s_mul_i32 s41, s{S_W}, 3072",
            f"v_cndmask_b32 v{V_P0}, v31, v{V_P0}, vcc",
            f"s_add_u32 s41, s41, {OFR}", f"v_add_u32 v{V_OW}, s41, v{VOFF0}", f"v_add_u32 v{V_OR}, {OFR}, v{VOFF0}",
            f"v_lshlrev_b32 v{V_LR}, 2, v{V_Q}", f"v_add_u32 v{V_LR}, {LREG}, v{V_LR}",
            f"s_min_u32 s41, s{S_W}, 1", "s_mul_i32 s41, s41, 768", f"s_add_u32 s41, s41, {LREG}", f"v_lshl_add_u32 v{V_LW}, v0, 2, s41"]
    for g in fire(0, 0, 0): emit(g)
    a("v_mov_b32 v2, 1")
    a("s_waitcnt vmcnt(8)")
    a("s_mov_b64 exec, 1")
    a("buffer_store_dword v2, off, s[12:15], s57 sc1")
    a("s_mov_b64 exec, -1")
    weave(pre, fire(1, 1, 1))
    stamp()
    proc_head(0, addr_reads(0, 4 * 128) + addr_reads(1, 5 * 128))
    a("s_waitcnt vmcnt(9)")
    weave(proc_body(0, True), fire(2, 2, 2))
    proc_head(1)
    a("s_waitcnt vmcnt(8)")
    weave(proc_body(1), fire(3, 3, 3))
    a(f"buffer_load_dword v{V_FLAG}, off, s[12:15], s51 sc1")
    proc_head(2)
    a("s_waitcnt vmcnt(9)")
    weave(proc_body(2), fire(4, 0, 0))
    proc_head(3)
    a("s_waitcnt vmcnt(9)")
    weave(proc_body(3), fire(5, 1, 1))
    stamp()
    proc_head(4)
    a("s_waitcnt vmcnt(8)")
    a.label("L2_poll")
    a(f"v_readfirstlane_b32 s50, v{V_FLAG}")
    a("s_cmp_eq_u32 s50, 1")
    a("s_cbranch_scc1 L2_got")
    a(f"buffer_load_dword v{V_FLAG}, off, s[12:15], s51 sc1")
    a("s_sub_u32 s49, s49, 1")
    a("s_waitcnt vmcnt(0)")
    a("s_cbranch_scc0 L2_poll")
    a.label("L2_got")
    stamp()
    PX = lambda b: 232 + 8 * b
    pl = [[f"buffer_load_dwordx4 {vr(PX(b)+4*h,4)}, v{V_P0 if b==0 else V_P1}, s[12:15], s43 offen offset:{(b//2)*1024 + h*2560} sc1"] for b in range(3) for h in range(2)]
    weave(proc_body(0), pl)
    proc_head(5)
    a("s_waitcnt vmcnt(6)")
    weave(proc_body(1), [])
    a(f"s_mov_b32 s{S_I}, 6")
    a(f"v_add_u32 v{V_AD}, {6*128}, v{V_AD}")
    a(f"v_add_u32 v{V_OH}, {6*128}, v{V_OH}")
    a(f"v_cmp_lt_u32 vcc, 16, v{V_TAB}")
    a.label("L2_more")
    a(f"s_cmp_ge_u32 s{S_I}, s{S_NB}")
    a("s_cbranch_scc1 L2_aggdone")
    emit(addr_reads(3, 0))
    a("s_waitcnt lgkmcnt(0)")
    for g in fire(0, 3, 0): emit(g)
    proc_head(0)
    a("s_waitcnt vmcnt(0)")
    weave(proc_body(0), [])
    a(f"s_add_u32 s{S_I}, s{S_I}, 1")
    a(f"v_add_u32 v{V_AD}, 128, v{V_AD}")
    a(f"v_add_u32 v{V_OH}, 128, v{V_OH}")
    a("s_branch L2_more")
    a.label("L2_aggdone")
    a("s_nop 2")
    a("s_cbranch_vccz L2_aggend")
    a(f"v_subrev_u32 v{V_TAB}, 16, v{V_TAB}")
    a(f"v_max_i32 v{V_TAB}, 0, v{V_TAB}")
    a(f"v_add_u32 v{V_SEG}, 64, v{V_SEG}")
    for j in range(4): a(f"buffer_load_dwordx4 {vr(ENT(4*j),4)}, v{V_SEG}, s[12:15], 0 offen offset:{16*j}")
    a("s_waitcnt vmcnt(0)")
    build_list("b")
    a(f"s_mov_b32 s{S_I}, 0")
    a(f"v_cmp_lt_u32 vcc, 16, v{V_TAB}")
    a("s_branch L2_more")
    a.label("L2_aggend")
    stamp()
    for s in range(4):
        a(f"s_add_u32 s41, s{S_W}, {s}")
        a("s_and_b32 s41, s41, 3")
        a("s_lshl_b32 s41, s41, 10")
        a(f"v_add_u32 v5, s41, v{V_RED}")
        for i in range(8): a(f"v_mul_f32 v{AG(2*s)+i}, v{V_DEG}, v{AG(2*s)+i}")
        for c in range(4): a(f"v_cvt_pk_bf16_f32 v{AG(2*s)+c}, v{AG(2*s)+2*c}, v{AG(2*s)+2*c+1}")
        a(f"ds_write_b128 v5, {vr(AG(2*s),4)}")
    a("s_waitcnt lgkmcnt(0)")
    a("s_barrier")
    BA = lambda b, ks: 96 + (b * 4 + ks) * 4
    FD = lambda b, hf: 160 + (b * 2 + hf) * 4
    FO = lambda b, hf: 48 + (b * 2 + hf) * 4
    PK = lambda b: 32 + 4 * b
    for b in range(3):
        for ks in range(4): a(f"ds_read_b128 {vr(BA(b,ks),4)}, v{V_BA+b} offset:{ks*1024}")
    a("s_mov_b32 s41, 0xffff0000")
    for b in range(3):
        for c in range(4):
            a(f"v_lshlrev_b32 v{FD(b,0)+2*c}, 16, v{XR(b)+c}")
            a(f"v_and_b32 v{FD(b,0)+2*c+1}, s41, v{XR(b)+c}")
    for b in range(3):
        a(f"s_waitcnt lgkmcnt({8-4*b})")
        for hf in range(2):
            for ks in range(4): a(f"{MF} {vr(FD(b,hf),4)}, {ar(AM(1,hf,ks),4)}, {vr(BA(b,ks),4)}, {vr(FD(b,hf),4)}")
    stamp()
    for b in range(3):
        a(f"s_waitcnt vmcnt({4-2*b})")
        for i in range(8): a(f"v_add_f32 v{R(2+b)+i}, v{R(2+b)+i}, v{PX(b)+i}")
        for c in range(4): a(f"v_cvt_pk_bf16_f32 v{PK(b)+c}, v{R(2+b)+2*c}, v{R(2+b)+2*c+1}")
        a(f"ds_write_b32 v{V_LW}, v{R(2+b)} offset:{b*256}")
        a(f"ds_write_b128 v{V_OW}, {vr(PK(b),4)} offset:{b*1024}")
    a("s_waitcnt lgkmcnt(0)")
    a("s_barrier")
    stamp()
    for b in range(3): a(f"ds_read_b32 v{V_RL+b}, v{V_LR} offset:{b*256}")
    for b in range(3):
        for ks in range(4): a(f"ds_read_b128 {vr(BA(b,ks),4)}, v{V_OR} offset:{ks*3072 + b*1024}")
    def finish(b):
        out = [f"v_fmac_f32 v{FD(b,0)+i}, v{FO(b,0)+i}, v{V_RL+b}" for i in range(8)]
        out += [f"v_cvt_pk_bf16_f32 v{PK(b)+c}, v{FD(b,0)+2*c}, v{FD(b,0)+2*c+1}" for c in range(4)]
        out += [f"buffer_store_dwordx4 {vr(PK(b),4)}, v{V_ROW(b)}, s[20:23], 0 offen{ST2}"]
        return out
    for b in range(3):
        a(f"s_waitcnt lgkmcnt({8-4*b})")
        if b == 0:
            for x in range(3): a(f"v_rcp_f32 v{V_RL+x}, v{V_RL+x}")
        fz = finish(b - 1) if b else []
        for hf in range(2):
            for ks in range(4):
                a(f"{MF} {vr(FO(b,hf),4)}, {ar(AM(0,hf,ks),4)}, {vr(BA(b,ks),4)}, {'0' if ks==0 else vr(FO(b,hf),4)}")
                if hf * 4 + ks >= 2:
                    for _ in range(2):
                        if fz: a(fz.pop(0))
        emit(fz)
    emit(finish(2))
    if stamps:
        a("s_waitcnt vmcnt(0)")
        stamp()
        a("s_memrealtime s[60:61]")
        a("s_waitcnt lgkmcnt(0)")
        a(f"s_lshl_b32 s40, s{S_TILE}, 1")
        a(f"s_add_u32 s40, s40, s{S_SPLIT}")
        a("s_lshl_b32 s40, s40, 2")
        a(f"s_add_u32 s40, s40, s{S_W}")
        a("s_lshl_b32 s40, s40, 6")
        srd(a, 8, 4, 1 << 20, ST_OFF)
        a("s_mov_b64 exec, 1")
        for i, r in enumerate([62, 60] + [64 + 2 * k for k in range(nst[0])]):
            a(f"v_mov_b32 v1, s{r}")
            a(f"buffer_store_dword v1, off, s[8:11], s40 offset:{4*i}")
    a.label("L2_end")
    a("s_endpgm")
def desc_k2(a):
    kernel_desc(a, NAME2, 512, 256, 96)
K2_LAUNCH = f"; @launch kernel={NAME2} grid=({NWG},1,1) block=(256,1,1) lds={LDS2}"
```

```python
import sys
from k1 import *
from k2 import *
import hazard
import re
def resolve_waits(text):
    lines = text.split("\n")
    for i, l in enumerate(lines):
        m = re.match(r"\s*@wait (vm|lg) (\S+)", l)
        if not m: continue
        pre = ("buffer_", "global_") if m.group(1) == "vm" else ("ds_",)
        n = 0
        for k in range(i - 1, -1, -1):
            x = lines[k].strip()
            if x.startswith(pre):
                if x.endswith("#" + m.group(2)): break
                if not x.endswith("#offpath"): n += 1
        else: raise Exception("tag not found: " + l)
        lines[i] = f"    s_waitcnt vmcnt({min(n,63)})" if m.group(1) == "vm" else f"    s_waitcnt lgkmcnt({min(n,15)})"
    return "\n".join(re.sub(r"\s*; #\S+$", "", l) for l in lines)
def build_all(path, stamps=False, verbose=False):
    a = Asm()
    hdr = open("gather_scatter__hybrid_graph_tf_graphgps__graph.s.ref").read().split("\n")
    for l in hdr:
        if l.startswith("; Override") : break
        a.raw(l)
    a.raw(K1_LAUNCH); a.raw(K2_LAUNCH)
    a.raw('.amdgcn_target "amdgcn-amd-amdhsa--gfx950"')
    gen_k1(a, stamps); gen_k2(a, stamps); desc_k1(a); desc_k2(a)
    rep = []
    t = hazard.fix(resolve_waits(a.text()), rep)
    if verbose:
        for r in rep: print(r)
    open(path, "w").write(t)
if __name__ == "__main__":
    build_all("gather_scatter__hybrid_graph_tf_graphgps__graph.s", False, True)
    import k2
    k2.SKIP = tuple(int(x) for x in sys.argv[1].split(",")) if len(sys.argv) > 1 else ()
    build_all("full_st.s", True)
```

```python
from asmlib import *
from layout import *
NAME1 = "prep_kernel"
WG_W0, WG_LN0 = 64, 88
LN_WGS = 125
K1_GRID = WG_LN0 + LN_WGS
PREFETCH = 1
ST1 = ''
MF = "v_mfma_f32_16x16x32_bf16"

def dpp(op, d, s0, s1, ctl, rm="0xf", bc=False):
    return f"{op}_dpp v{d}, v{s0}, v{s1} {ctl} row_mask:{rm} bank_mask:0xf" + (" bound_ctrl:1" if bc else "")
def wave_scan(a, v):
    for k in (1, 2, 4, 8): a(dpp("v_add_u32", v, v, v, f"row_shr:{k}", bc=True))
    a(dpp("v_add_u32", v, v, v, "row_bcast:15", "0xa"))
    a(dpp("v_add_u32", v, v, v, "row_bcast:31", "0xc"))
def row_sum(a, vs):
    for k in (8, 4, 2, 1):
        for v in vs: a(dpp("v_add_f32", v, v, v, f"row_ror:{k}"))

def gen_k1(a, stamps=False):
    cnt = [0]
    def stamp(reset=False):
        if reset: cnt[0] = 1
        if not stamps: return
        i = cnt[0]; cnt[0] += 1
        a(f"s_memrealtime s[{64+2*i}:{65+2*i}]")
    def fin():
        if stamps:
            a("s_waitcnt vmcnt(0)")
            stamp()
            a("s_waitcnt lgkmcnt(0)")
            a("s_lshl_b32 s50, s2, 6")
            srd(a, 52, 4, 1 << 20, 0x1100000)
            a("s_mov_b64 exec, 1")
            for i in range(cnt[0]):
                a(f"v_mov_b32 v1, s{64+2*i}")
                a(f"buffer_store_dword v1, off, s[52:55], s50 offset:{4*i}")
        a("s_endpgm")
    kernel_begin(a, NAME1)
    stamp()
    a(f"s_load_dwordx2 s[4:5], s[0:1], {A_WS}")
    a(f"s_cmp_ge_u32 s2, {WG_LN0}")
    a("s_cbranch_scc1 L1_ln")
    a(f"s_cmp_ge_u32 s2, {WG_W0}")
    a("s_cbranch_scc1 L1_w")
    a(f"s_load_dwordx4 s[8:11], s[0:1], {A_SRC}")
    a("v_lshlrev_b32 v1, 3, v0")
    a("v_mov_b32 v4, 0")
    a("v_mov_b32 v5, 0")
    a("ds_write_b64 v1, v[4:5]")
    a(f"s_mul_i32 s3, s2, {EPP*4}")
    a("v_lshlrev_b32 v2, 2, v0")
    a("s_add_u32 s6, s3, 4096")
    a("s_add_u32 s7, s3, 8192")
    a("s_waitcnt lgkmcnt(0)")
    stamp(True)
    NE = 5
    DST = lambda i: 10 + i; SRC = lambda i: 16 + i; BK = lambda i: 22 + i; RK = lambda i: 28 + i
    srd(a, 16, 10, E * 4)
    for i in range(NE): a(f"buffer_load_dword v{DST(i)}, v2, s[16:19], s{(3,3,6,6,7)[i]} offen offset:{(i%2)*2048}")
    srd(a, 12, 8, E * 4)
    for i in range(NE): a(f"buffer_load_dword v{SRC(i)}, v2, s[12:15], s{(3,3,6,6,7)[i]} offen offset:{(i%2)*2048}")
    srd(a, 20, 4, NPROD * 4096, TAB_OFF); srd(a, 24, 4, E * 4, SEG_OFF); srd(a, 28, 4, 256 * 128, FLG_OFF)
    if PREFETCH:
        a("s_cmp_ge_u32 s2, 8")
        a("s_cbranch_scc1 L1_nopf")
        a("s_getpc_b64 s[40:41]")
        a.label("L1_pc")
        a("v_lshlrev_b32 v40, 7, v0")
        a("v_mov_b32 v41, L2_slow-attn_kernel")
        a("v_cmp_gt_u32 vcc, v41, v40")
        a("v_add_u32 v41, L2_epi-L2_slow, v40")
        a("v_cndmask_b32 v40, v41, v40, vcc")
        a("v_min_u32 v40, L2_end-attn_kernel, v40")
        a("s_add_u32 s40, s40, attn_kernel-L1_pc")
        a("s_addc_u32 s41, s41, 0")
        a("v_mov_b32 v41, s41")
        a("v_add_co_u32 v40, vcc, s40, v40")
        a("v_addc_co_u32 v41, vcc, 0, v41, vcc")
        a("global_load_dword v42, v[40:41], off")
        a.label("L1_nopf")
    a("s_cmp_lg_u32 s2, 0")
    a("s_cbranch_scc1 L1_noflag")
    a("v_lshlrev_b32 v3, 7, v0")
    a("v_mov_b32 v6, 0")
    a("v_mov_b32 v7, 0")
    a("buffer_store_dwordx4 v[4:7], v3, s[28:31], 0 offen")
    a.label("L1_noflag")
    a("s_barrier")
    a("s_mov_b32 s33, 52429")
    a("v_mov_b32 v8, 1")
    a(f"v_cmp_gt_u32 vcc, {EPP - 4*512}, v0")
    a("v_lshrrev_b32 v3, 6, v0")
    a("v_lshlrev_b32 v3, 2, v3")
    a("s_mov_b64 s[34:35], vcc")
    a("v_lshlrev_b32 v6, 4, v0")
    a(f"v_cmp_gt_u32 vcc, {EPP//4 - 512}, v0")
    a("v_mov_b32 v7, 0x7fffff00")
    a("v_readfirstlane_b32 s38, v3")
    a("v_cndmask_b32 v7, v7, v6, vcc")
    a("s_waitcnt vmcnt(5)")
    stamp()
    for i in range(NE):
        a(f"v_mul_u32_u24 v{BK(i)}, s33, v{DST(i)}")
        a(f"v_lshrrev_b32 v{BK(i)}, 19, v{BK(i)}")
        a(f"v_mul_u32_u24 v9, 10, v{BK(i)}")
        a(f"v_lshlrev_b32 v{BK(i)}, 2, v{BK(i)}")
        if i == NE - 1: a("s_mov_b64 exec, s[34:35]")
        a(f"ds_add_rtn_u32 v{RK(i)}, v{BK(i)}, v8")
        a(f"v_sub_u32 v{DST(i)}, v{DST(i)}, v9")
    a("s_mov_b64 exec, -1")
    a("s_waitcnt lgkmcnt(0)")
    a("s_barrier")
    stamp()
    a("ds_read_b64 v[4:5], v1")
    a("s_waitcnt lgkmcnt(0)")
    a("v_add_u32 v36, v4, v5")
    a("v_mov_b32 v37, v36")
    wave_scan(a, 37)
    a("v_and_b32 v9, 63, v0")
    a("v_cmp_eq_u32 vcc, 63, v9")
    a("s_and_saveexec_b64 s[36:37], vcc")
    a("ds_write_b32 v3, v37 offset:4096")
    a("s_mov_b64 exec, -1")
    a("v_mov_b32 v9, 0")
    a("v_sub_u32 v37, v37, v36")
    a("s_waitcnt lgkmcnt(0)")
    a("s_barrier")
    a("ds_read_b128 v[40:43], v9 offset:4096")
    a("ds_read_b128 v[44:47], v9 offset:4112")
    a("s_waitcnt vmcnt(0)")
    for i in range(NE):
        a(f"v_and_b32 v9, 7, v{SRC(i)}")
        a(f"v_lshl_or_b32 v{DST(i)}, v9, 5, v{DST(i)}")
        a(f"v_lshl_or_b32 v{DST(i)}, v{SRC(i)}, 8, v{DST(i)}")
    a("s_waitcnt lgkmcnt(0)")
    for w in range(7):
        a(f"s_cmp_gt_u32 s38, {4*w}")
        a("s_cselect_b32 s39, 1, 0")
        a(f"v_mad_u32_u24 v37, v{40+w}, s39, v37")
    a("v_mov_b32 v38, v37")
    a("v_add_u32 v39, v37, v4")
    a("ds_write_b64 v1, v[38:39]")
    for i in range(2): a(f"v_lshl_or_b32 v{40+i}, v{4+i}, 16, v{38+i}")
    a("s_lshl_b32 s39, s2, 12")
    a("buffer_store_dwordx2 v[40:41], v1, s[20:23], s39 offen" + ST1)
    a("s_waitcnt lgkmcnt(0)")
    a("s_barrier")
    stamp()
    for i in range(NE):
        if i == NE - 1: a("s_mov_b64 exec, s[34:35]")
        a(f"ds_read_b32 v{BK(i)}, v{BK(i)}")
    a("s_mov_b64 exec, -1")
    for i in range(NE):
        a(f"s_waitcnt lgkmcnt({NE-1})")
        a(f"v_add_lshl_u32 v{BK(i)}, v{BK(i)}, v{RK(i)}, 2")
        if i == NE - 1: a("s_mov_b64 exec, s[34:35]")
        a(f"ds_write_b32 v{BK(i)}, v{DST(i)} offset:8192")
    a("s_mov_b64 exec, -1")
    a("s_waitcnt lgkmcnt(0)")
    a("s_barrier")
    for i in range(2): a(f"ds_read_b128 {vr(12+4*i,4)}, v6 offset:{8192+8192*i}")
    for i in range(2):
        a(f"s_waitcnt lgkmcnt({1-i})")
        a(f"buffer_store_dwordx4 {vr(12+4*i,4)}, v{6+i}, s[24:27], s{(3,7)[i]} offen{ST1}")
    fin()
    a.label("L1_w")
    a(f"s_load_dwordx8 s[8:15], s[0:1], {A_WMSG}")
    a(f"s_load_dwordx2 s[16:17], s[0:1], {A_WOUT}")
    a("v_lshrrev_b32 v1, 6, v0")
    a("v_and_b32 v0, 63, v0")
    a(f"s_sub_u32 s6, s2, {WG_W0}")
    a("v_readfirstlane_b32 s3, v1")
    a("v_and_b32 v2, 15, v0")
    a("v_lshrrev_b32 v3, 4, v0")
    a("s_and_b32 s7, s6, 7")
    a("s_lshr_b32 s6, s6, 3")
    a("v_lshrrev_b32 v6, 1, v2")
    a("v_xor_b32 v6, v6, v3")
    a("v_lshlrev_b32 v6, 5, v6")
    a("v_and_b32 v7, 1, v2")
    a("v_lshl_or_b32 v6, v7, 4, v6")
    a("v_lshl_or_b32 v56, v3, 8, v6")
    a("v_xor_b32 v57, 0x80, v56")
    a("v_lshrrev_b32 v6, 1, v3")
    a("v_and_b32 v7, 1, v3")
    a("v_lshlrev_b32 v7, 4, v7")
    a("v_lshl_add_u32 v7, v2, 8, v7")
    a("v_and_b32 v4, 7, v2")
    for ks in range(4):
        a(f"v_add_u32 v5, {2*ks}, v6")
        a("v_xor_b32 v5, v5, v4")
        a(f"v_lshl_add_u32 v{52+ks}, v5, 5, v7")
    a("v_lshrrev_b32 v5, 3, v2")
    a("v_and_b32 v6, 3, v2")
    a("v_lshl_add_u32 v5, v5, 2, v6")
    a("v_bfe_u32 v6, v2, 2, 1")
    a("v_lshlrev_b32 v6, 12, v6")
    a("v_lshl_add_u32 v5, v5, 4, v6")
    a(f"s_mov_b32 s40, {f32(CH)}")
    a(f"s_mov_b32 s41, {f32(RS128)}")
    a(f"s_mov_b32 s42, {f32(QSCALE)}")
    a("s_lshl_b32 s34, s3, 12")
    a("s_add_u32 s43, s34, 8192")
    def big_dma(srd_):
        a("s_mov_b32 m0, s43")
        for pc in range(4): a(f"buffer_load_dwordx4 v{56+pc%2}, s[{srd_}:{srd_+3}], s34 offen offset:{pc*1024} lds")
    def big_addr():
        for ks in range(4): a(f"v_add_u32 v{58+ks}, s43, v{52+ks}")
    def big_read():
        for ks in range(4): a(f"ds_read_b128 {vr(BIG(ks),4)}, v{58+ks}")
    BIG = lambda ks: 32 + ks * 4
    SM = lambda ks: 16 + ks * 4
    DD = 48
    a("s_cmp_eq_u32 s6, 0")
    a("s_waitcnt lgkmcnt(0)")
    a("s_cbranch_scc0 L1_wv")
    stamp(True)
    srd(a, 24, 12, 32768)
    big_dma(24)
    srd(a, 20, 10, 32768)
    a("s_and_b32 s33, s3, 3")
    a("s_lshl_b32 s33, s33, 10")
    a("s_add_u32 m0, s33, 4096")
    a("s_lshl_b32 s35, s7, 12")
    a("s_add_u32 s33, s33, s35")
    a("s_and_b32 s35, s3, 1")
    a("s_lshl_b32 s35, s35, 7")
    a("v_xor_b32 v4, s35, v56")
    a("buffer_load_dwordx4 v4, s[20:23], s33 offen lds")
    big_addr()
    srd(a, 28, 4, 32768, MQ_OFF)
    a("v_lshrrev_b32 v6, 1, v3")
    a("v_lshl_add_u32 v5, v6, 8, v5")
    a("v_and_b32 v6, 1, v3")
    a("v_lshl_add_u32 v5, v6, 3, v5")
    a("s_lshr_b32 s34, s7, 1")
    a("s_lshl_b32 s34, s34, 10")
    a("s_and_b32 s35, s7, 1")
    a("s_lshl_b32 s35, s35, 9")
    a("s_add_u32 s34, s34, s35")
    a("s_lshr_b32 s35, s3, 1")
    a("s_lshl_b32 s35, s35, 13")
    a("s_add_u32 s34, s34, s35")
    a("s_and_b32 s35, s3, 1")
    a("s_lshl_b32 s35, s35, 7")
    a("s_add_u32 s34, s34, s35")
    a("v_lshlrev_b32 v7, 4, v3")
    a("s_lshl_b32 s35, s3, 6")
    a("v_add_u32 v6, s35, v7")
    a("s_cmp_eq_u32 s3, 0")
    a("s_cselect_b64 s[36:37], -1, 0")
    a("v_cmp_eq_u32 vcc, 0, v2")
    a("s_and_b64 s[36:37], s[36:37], vcc")
    a("s_waitcnt vmcnt(0)")
    big_read()
    a("s_barrier")
    for ks in range(4): a(f"ds_read_b128 {vr(SM(ks),4)}, v{52+ks} offset:4096")
    for ks in range(4):
        a(f"s_waitcnt lgkmcnt({3-ks})")
        a(f"{MF} {vr(DD,4)}, {vr(SM(ks),4)}, {vr(BIG(ks),4)}, {'0' if ks==0 else vr(DD,4)}")
    stamp()
    for r in range(4): a(f"v_mul_f32 v{8+r}, s41, v{DD+r}")
    for r in range(4): a(f"v_sub_f32 v{12+r}, v{8+r}, v{DD+r}")
    for r in range(4): a(f"v_cndmask_b32 v{8+r}, v{8+r}, v{12+r}, s[36:37]")
    row_sum(a, [8, 9, 10, 11])
    a("ds_write_b128 v6, v[8:11]")
    a("s_waitcnt lgkmcnt(0)")
    a("s_barrier")
    for w in range(8): a(f"ds_read_b128 {vr(16+4*w,4)}, v7 offset:{64*w}")
    for w in range(1, 8):
        a(f"s_waitcnt lgkmcnt({7-w})")
        for r in range(4): a(f"v_add_f32 v{16+r}, v{16+r}, v{16+4*w+r}")
    for r in range(4): a(f"v_fma_f32 v{DD+r}, -v{16+r}, s40, v{DD+r}")
    for r in range(4): a(f"v_mul_f32 v{DD+r}, s42, v{DD+r}")
    for r in range(4): a(f"v_cndmask_b32 v{DD+r}, v{DD+r}, 0, s[36:37]")
    a(f"v_cvt_pk_bf16_f32 v{DD}, v{DD}, v{DD+1}")
    a(f"v_cvt_pk_bf16_f32 v{DD+1}, v{DD+2}, v{DD+3}")
    a(f"buffer_store_dwordx2 {vr(DD,2)}, v5, s[28:31], s34 offen{ST1}")
    fin()
    a.label("L1_wv")
    stamp(True)
    srd(a, 24, 16, 32768)
    a("v_lshrrev_b32 v6, 2, v0")
    a("v_lshlrev_b32 v6, 8, v6")
    a("v_and_b32 v7, 3, v0")
    a("v_lshl_add_u32 v6, v7, 3, v6")
    a("s_lshl_b32 s33, s7, 5")
    a("s_add_u32 s33, s33, s34")
    a("buffer_load_dwordx2 v[8:9], v6, s[24:27], s33 offen")
    a("s_cmp_eq_u32 s6, 1")
    a("s_cselect_b32 s20, s14, s8")
    a("s_cselect_b32 s21, s15, s9")
    a("s_mov_b32 s22, 32768")
    a("s_mov_b32 s23, 0x00020000")
    big_dma(20)
    big_addr()
    a(f"s_mov_b32 s33, {MM_OFF}")
    a(f"s_cselect_b32 s33, {MV_OFF}, s33")
    a("s_add_u32 s28, s4, s33")
    a("s_addc_u32 s29, s5, 0")
    a("s_mov_b32 s30, 32768")
    a("s_mov_b32 s31, 0x00020000")
    a("s_lshl_b32 s35, s3, 9")
    a("v_lshl_add_u32 v6, v0, 3, s35")
    a("v_lshlrev_b32 v7, 8, v3")
    a("v_lshl_add_u32 v7, v2, 3, v7")
    a("v_lshl_add_u32 v5, v3, 8, v5")
    a("s_lshr_b32 s35, s7, 1")
    a("s_lshl_b32 s35, s35, 13")
    a("s_and_b32 s36, s7, 1")
    a("s_lshl_b32 s36, s36, 7")
    a("s_add_u32 s35, s35, s36")
    a("s_lshr_b32 s36, s3, 1")
    a("s_lshl_b32 s36, s36, 10")
    a("s_add_u32 s35, s35, s36")
    a("s_and_b32 s36, s3, 1")
    a("s_lshl_b32 s36, s36, 3")
    a("s_add_u32 s35, s35, s36")
    a("s_cmp_eq_u32 s3, 0")
    a("s_cselect_b64 s[36:37], -1, 0")
    a("v_cmp_eq_u32 vcc, 0, v3")
    a("s_and_b64 s[36:37], s[36:37], vcc")
    a("v_lshlrev_b32 v10, 2, v0")
    a("s_lshl_b32 s33, s3, 8")
    a("v_add_u32 v10, s33, v10")
    a("v_lshlrev_b32 v11, 2, v2")
    a("v_add_u32 v12, 5120, v11")
    a("v_add_u32 v11, 4096, v11")
    a("s_waitcnt vmcnt(4)")
    a("ds_write_b64 v6, v[8:9]")
    a("s_waitcnt vmcnt(0) lgkmcnt(0)")
    big_read()
    a("s_barrier")
    for ks in range(4):
        for h in range(2): a(f"ds_read_b64_tr_b16 {vr(SM(ks)+2*h,2)}, v7 offset:{ks*1024 + h*128}")
    for ks in range(4):
        a(f"s_waitcnt lgkmcnt({6-2*ks})")
        a(f"{MF} {vr(DD,4)}, {vr(BIG(ks),4)}, {vr(SM(ks),4)}, {'0' if ks==0 else vr(DD,4)}")
    stamp()
    a(f"v_add_f32 v8, v{DD}, v{DD+1}")
    a(f"v_add_f32 v9, v{DD+2}, v{DD+3}")
    a("v_add_f32 v8, v8, v9")
    a("v_mul_f32 v8, s41, v8")
    a(f"v_sub_f32 v9, v8, v{DD}")
    a("v_cndmask_b32 v8, v8, v9, s[36:37]")
    a("ds_write_b32 v10, v8 offset:4096")
    a("s_waitcnt lgkmcnt(0)")
    a("s_barrier")
    for i in range(16): a(f"ds_read2_b32 {vr(16+2*i,2)}, v{11+i//8} offset0:{32*(i%8)} offset1:{32*(i%8)+16}")
    for i in range(1, 32):
        if i % 2 == 0 or i == 1: a(f"s_waitcnt lgkmcnt({15 - i//2})")
        a(f"v_add_f32 v16, v16, v{16+i}")
    for r in range(4): a(f"v_fma_f32 v{DD+r}, -v16, s40, v{DD+r}")
    a(f"v_cndmask_b32 v{DD}, v{DD}, 0, s[36:37]")
    a(f"v_cvt_pk_bf16_f32 v{DD}, v{DD}, v{DD+1}")
    a(f"v_cvt_pk_bf16_f32 v{DD+1}, v{DD+2}, v{DD+3}")
    a(f"buffer_store_dwordx2 {vr(DD,2)}, v5, s[28:31], s35 offen{ST1}")
    fin()
    a.label("L1_ln")
    a(f"s_load_dwordx2 s[6:7], s[0:1], {A_X}")
    a(f"s_cmp_ge_u32 s2, {K1_GRID}")
    a("s_cbranch_scc1 L1_end")
    a(f"s_sub_u32 s3, s2, {WG_LN0}")
    a(f"s_mul_i32 s3, s3, {80*256}")
    a("v_lshrrev_b32 v1, 6, v0")
    a("v_lshlrev_b32 v3, 4, v0")
    a("v_readfirstlane_b32 s24, v1")
    a("v_and_b32 v4, 15, v0")
    a("v_bfe_u32 v5, v0, 4, 3")
    a("v_lshlrev_b32 v5, 5, v5")
    a("v_xor_b32 v6, v3, v5")
    a("v_cmp_eq_u32 vcc, 0, v4")
    a(f"s_mov_b32 s20, {f32(1.0/128)}")
    a(f"v_mov_b32 v4, {f32(1e-5)}")
    a(f"v_mov_b32 v5, {f32(CH)}")
    a("s_mov_b32 s23, 0xffff0000")
    a("s_add_u32 s21, s3, 8192")
    a("s_add_u32 s22, s3, 16384")
    a("s_cmp_ge_u32 s24, 4")
    a("s_waitcnt lgkmcnt(0)")
    stamp(True)
    a("s_mov_b32 s8, s6")
    a("s_mov_b32 s9, s7")
    a(f"s_mov_b32 s10, {N*256}")
    a("s_mov_b32 s11, 0x00020000")
    a("s_cbranch_scc1 L1_ln2")
    c0 = cnt[0]
    for NI in (3, 2):
        cnt[0] = c0
        if NI == 2: a.label("L1_ln2")
        so = (3, 21, 22)
        I = range(NI)
        W = lambda i: 8 + 4 * i
        X = lambda i, k: 24 + 8 * i + k
        A, B = (lambda i: 48 + i), (lambda i: 52 + i)
        for i in I: a(f"buffer_load_dwordx4 {vr(W(i),4)}, v3, s[8:11], s{so[i]} offen")
        srd(a, 12, 4, N * 256, HP_OFF); srd(a, 16, 4, N * 256, HQ_OFF)
        for i in I:
            a(f"s_waitcnt vmcnt({NI-1-i})")
            for c in range(4):
                a(f"v_lshlrev_b32 v{X(i,2*c)}, 16, v{W(i)+c}")
                a(f"v_and_b32 v{X(i,2*c+1)}, s23, v{W(i)+c}")
        stamp()
        for i in I: a(f"v_add_f32 v{A(i)}, v{X(i,0)}, v{X(i,1)}")
        for k in range(2, 8):
            for i in I: a(f"v_add_f32 v{A(i)}, v{A(i)}, v{X(i,k)}")
        row_sum(a, [A(i) for i in I])
        for i in I: a(f"v_mul_f32 v{A(i)}, s20, v{A(i)}")
        for k in range(8):
            for i in I: a(f"v_sub_f32 v{X(i,k)}, v{X(i,k)}, v{A(i)}")
        for i in I: a(f"v_mul_f32 v{B(i)}, v{X(i,0)}, v{X(i,0)}")
        for k in range(1, 8):
            for i in I: a(f"v_fmac_f32 v{B(i)}, v{X(i,k)}, v{X(i,k)}")
        row_sum(a, [B(i) for i in I])
        for i in I: a(f"v_fma_f32 v{B(i)}, v{B(i)}, s20, v4")
        for i in I: a(f"v_rsq_f32 v{B(i)}, v{B(i)}")
        for k in range(8):
            for i in I: a(f"v_mul_f32 v{X(i,k)}, v{X(i,k)}, v{B(i)}")
        for i in I: a(f"v_mul_f32_dpp v{A(i)}, v{X(i,0)}, v5 row_newbcast:0 row_mask:0xf bank_mask:0xf")
        for i in I:
            for c in range(4): a(f"v_cvt_pk_bf16_f32 v{W(i)+c}, v{X(i,2*c)}, v{X(i,2*c+1)}")
            a(f"buffer_store_dwordx4 {vr(W(i),4)}, v6, s[16:19], s{so[i]} offen{ST1}")
        for i in I:
            for k in range(8): a(f"v_add_f32 v{X(i,k)}, v{X(i,k)}, v{A(i)}")
            a(f"v_cndmask_b32 v{X(i,0)}, v{X(i,0)}, 1.0, vcc")
            for c in range(4): a(f"v_cvt_pk_bf16_f32 v{X(i,c)}, v{X(i,2*c)}, v{X(i,2*c+1)}")
            a(f"buffer_store_dwordx4 {vr(X(i,0),4)}, v6, s[12:15], s{so[i]} offen{ST1}")
        fin()
    a.label("L1_end")
    a("s_endpgm")
def desc_k1(a):
    kernel_desc(a, NAME1, 64, 64, 96)
K1_LAUNCH = f"; @launch kernel={NAME1} grid=({K1_GRID},1,1) block=(512,1,1) lds=40960"
```

```python
from asmlib import *
from layout import *
NAME1 = "prep_kernel"
WG_W0, WG_LN0 = 64, 88
LN_WGS = 125
K1_GRID = WG_LN0 + LN_WGS
PREFETCH = 1
ST1 = ''
MF = "v_mfma_f32_16x16x32_bf16"

def dpp(op, d, s0, s1, ctl, rm="0xf", bc=False):
    return f"{op}_dpp v{d}, v{s0}, v{s1} {ctl} row_mask:{rm} bank_mask:0xf" + (" bound_ctrl:1" if bc else "")
def wave_scan(a, v):
    for k in (1, 2, 4, 8): a(dpp("v_add_u32", v, v, v, f"row_shr:{k}", bc=True))
    a(dpp("v_add_u32", v, v, v, "row_bcast:15", "0xa"))
    a(dpp("v_add_u32", v, v, v, "row_bcast:31", "0xc"))
def row_sum(a, vs):
    for k in (8, 4, 2, 1):
        for v in vs: a(dpp("v_add_f32", v, v, v, f"row_ror:{k}"))

def gen_k1(a, stamps=False):
    cnt = [0]
    def stamp(reset=False):
        if reset: cnt[0] = 1
        if not stamps: return
        i = cnt[0]; cnt[0] += 1
        a(f"s_memrealtime s[{64+2*i}:{65+2*i}]")
    def fin():
        if stamps:
            a("s_waitcnt vmcnt(0)")
            stamp()
            a("s_waitcnt lgkmcnt(0)")
            a("s_lshl_b32 s50, s2, 6")
            srd(a, 52, 4, 1 << 20, 0x1100000)
            a("s_mov_b64 exec, 1")
            for i in range(cnt[0]):
                a(f"v_mov_b32 v1, s{64+2*i}")
                a(f"buffer_store_dword v1, off, s[52:55], s50 offset:{4*i}")
        a("s_endpgm")
    kernel_begin(a, NAME1)
    stamp()
    a(f"s_load_dwordx2 s[4:5], s[0:1], {A_WS}")
    a(f"s_cmp_ge_u32 s2, {WG_LN0}")
    a("s_cbranch_scc1 L1_ln")
    a(f"s_cmp_ge_u32 s2, {WG_W0}")
    a("s_cbranch_scc1 L1_w")
    a(f"s_load_dwordx4 s[8:11], s[0:1], {A_SRC}")
    if PREFETCH:
        a("s_cmp_ge_u32 s2, 8")
        a("s_cbranch_scc1 L1_nopf")
        a("s_getpc_b64 s[40:41]")
        a.label("L1_pc")
        a("v_lshlrev_b32 v60, 7, v0")
        a("v_mov_b32 v61, L2_slow-L1_pc")
        a("v_cmp_gt_u32 vcc, v61, v60")
        a("v_add_u32 v61, L2_epi-L2_slow, v60")
        a("v_cndmask_b32 v60, v61, v60, vcc")
        a("v_min_u32 v60, L2_end-L1_pc, v60")
        a("v_mov_b32 v61, s41")
        a("v_add_co_u32 v60, vcc, s40, v60")
        a("v_addc_co_u32 v61, vcc, 0, v61, vcc")
        a("global_load_dword v62, v[60:61], off")
        a.label("L1_nopf")
    a("v_lshlrev_b32 v1, 3, v0")
    a("v_mov_b32 v4, 0")
    a("v_mov_b32 v5, 0")
    a("ds_write_b64 v1, v[4:5]")
    a(f"s_mul_i32 s3, s2, {EPP*4}")
    a("v_lshlrev_b32 v2, 2, v0")
    a("s_add_u32 s6, s3, 4096")
    a("s_add_u32 s7, s3, 8192")
    a("s_waitcnt lgkmcnt(0)")
    stamp(True)
    NE = 5
    DST = lambda i: 10 + i; SRC = lambda i: 16 + i; BK = lambda i: 22 + i; RK = lambda i: 28 + i
    srd(a, 16, 10, E * 4)
    for i in range(NE): a(f"buffer_load_dword v{DST(i)}, v2, s[16:19], s{(3,3,6,6,7)[i]} offen offset:{(i%2)*2048}")
    srd(a, 12, 8, E * 4)
    for i in range(NE): a(f"buffer_load_dword v{SRC(i)}, v2, s[12:15], s{(3,3,6,6,7)[i]} offen offset:{(i%2)*2048}")
    srd(a, 20, 4, NPROD * 4096, TAB_OFF); srd(a, 24, 4, E * 4, SEG_OFF); srd(a, 28, 4, 256 * 128, FLG_OFF)
    a("s_cmp_lg_u32 s2, 0")
    a("s_cbranch_scc1 L1_noflag")
    a("v_lshlrev_b32 v3, 7, v0")
    a("v_mov_b32 v6, 0")
    a("v_mov_b32 v7, 0")
    a("buffer_store_dwordx4 v[4:7], v3, s[28:31], 0 offen")
    a.label("L1_noflag")
    a("s_barrier")
    a("s_mov_b32 s33, 52429")
    a("v_mov_b32 v8, 1")
    a(f"v_cmp_gt_u32 vcc, {EPP - 4*512}, v0")
    a("v_lshrrev_b32 v3, 6, v0")
    a("v_lshlrev_b32 v3, 2, v3")
    a("s_mov_b64 s[34:35], vcc")
    a("v_lshlrev_b32 v6, 4, v0")
    a(f"v_cmp_gt_u32 vcc, {EPP//4 - 512}, v0")
    a("v_mov_b32 v7, 0x7fffff00")
    a("v_readfirstlane_b32 s38, v3")
    a("v_cndmask_b32 v7, v7, v6, vcc")
    a("s_waitcnt vmcnt(5)")
    stamp()
    for i in range(NE):
        a(f"v_mul_u32_u24 v{BK(i)}, s33, v{DST(i)}")
        a(f"v_lshrrev_b32 v{BK(i)}, 19, v{BK(i)}")
        a(f"v_mul_u32_u24 v9, 10, v{BK(i)}")
        a(f"v_lshlrev_b32 v{BK(i)}, 2, v{BK(i)}")
        if i == NE - 1: a("s_mov_b64 exec, s[34:35]")
        a(f"ds_add_rtn_u32 v{RK(i)}, v{BK(i)}, v8")
        a(f"v_sub_u32 v{DST(i)}, v{DST(i)}, v9")
    a("s_mov_b64 exec, -1")
    a("s_waitcnt lgkmcnt(0)")
    a("s_barrier")
    stamp()
    a("ds_read_b64 v[4:5], v1")
    a("s_waitcnt lgkmcnt(0)")
    a("v_add_u32 v36, v4, v5")
    a("v_mov_b32 v37, v36")
    wave_scan(a, 37)
    a("v_and_b32 v9, 63, v0")
    a("v_cmp_eq_u32 vcc, 63, v9")
    a("s_and_saveexec_b64 s[36:37], vcc")
    a("ds_write_b32 v3, v37 offset:4096")
    a("s_mov_b64 exec, -1")
    a("v_mov_b32 v9, 0")
    a("v_sub_u32 v37, v37, v36")
    a("s_waitcnt lgkmcnt(0)")
    a("s_barrier")
    a("ds_read_b128 v[40:43], v9 offset:4096")
    a("ds_read_b128 v[44:47], v9 offset:4112")
    a("s_waitcnt vmcnt(0)")
    for i in range(NE):
        a(f"v_and_b32 v9, 7, v{SRC(i)}")
        a(f"v_lshl_or_b32 v{DST(i)}, v9, 5, v{DST(i)}")
        a(f"v_lshl_or_b32 v{DST(i)}, v{SRC(i)}, 8, v{DST(i)}")
    a("s_waitcnt lgkmcnt(0)")
    for w in range(7):
        a(f"s_cmp_gt_u32 s38, {4*w}")
        a("s_cselect_b32 s39, 1, 0")
        a(f"v_mad_u32_u24 v37, v{40+w}, s39, v37")
    a("v_mov_b32 v38, v37")
    a("v_add_u32 v39, v37, v4")
    a("ds_write_b64 v1, v[38:39]")
    for i in range(2): a(f"v_lshl_or_b32 v{40+i}, v{4+i}, 16, v{38+i}")
    a("s_lshl_b32 s39, s2, 12")
    a("buffer_store_dwordx2 v[40:41], v1, s[20:23], s39 offen" + ST1)
    a("s_waitcnt lgkmcnt(0)")
    a("s_barrier")
    stamp()
    for i in range(NE):
        if i == NE - 1: a("s_mov_b64 exec, s[34:35]")
        a(f"ds_read_b32 v{BK(i)}, v{BK(i)}")
    a("s_mov_b64 exec, -1")
    for i in range(NE):
        a(f"s_waitcnt lgkmcnt({NE-1})")
        a(f"v_add_lshl_u32 v{BK(i)}, v{BK(i)}, v{RK(i)}, 2")
        if i == NE - 1: a("s_mov_b64 exec, s[34:35]")
        a(f"ds_write_b32 v{BK(i)}, v{DST(i)} offset:8192")
    a("s_mov_b64 exec, -1")
    a("s_waitcnt lgkmcnt(0)")
    a("s_barrier")
    for i in range(2): a(f"ds_read_b128 {vr(12+4*i,4)}, v6 offset:{8192+8192*i}")
    for i in range(2):
        a(f"s_waitcnt lgkmcnt({1-i})")
        a(f"buffer_store_dwordx4 {vr(12+4*i,4)}, v{6+i}, s[24:27], s{(3,7)[i]} offen{ST1}")
    fin()
    a.label("L1_w")
    a(f"s_load_dwordx8 s[8:15], s[0:1], {A_WMSG}")
    a(f"s_load_dwordx2 s[16:17], s[0:1], {A_WOUT}")
    a("v_lshrrev_b32 v1, 6, v0")
    a("v_and_b32 v0, 63, v0")
    a(f"s_sub_u32 s6, s2, {WG_W0}")
    a("v_readfirstlane_b32 s3, v1")
    a("v_and_b32 v2, 15, v0")
    a("v_lshrrev_b32 v3, 4, v0")
    a("s_and_b32 s7, s6, 7")
    a("s_lshr_b32 s6, s6, 3")
    a("v_lshrrev_b32 v6, 1, v2")
    a("v_xor_b32 v6, v6, v3")
    a("v_lshlrev_b32 v6, 5, v6")
    a("v_and_b32 v7, 1, v2")
    a("v_lshl_or_b32 v6, v7, 4, v6")
    a("v_lshl_or_b32 v56, v3, 8, v6")
    a("v_xor_b32 v57, 0x80, v56")
    a("v_lshrrev_b32 v6, 1, v3")
    a("v_and_b32 v7, 1, v3")
    a("v_lshlrev_b32 v7, 4, v7")
    a("v_lshl_add_u32 v7, v2, 8, v7")
    a("v_and_b32 v4, 7, v2")
    for ks in range(4):
        a(f"v_add_u32 v5, {2*ks}, v6")
        a("v_xor_b32 v5, v5, v4")
        a(f"v_lshl_add_u32 v{52+ks}, v5, 5, v7")
    a("v_lshrrev_b32 v5, 3, v2")
    a("v_and_b32 v6, 3, v2")
    a("v_lshl_add_u32 v5, v5, 2, v6")
    a("v_bfe_u32 v6, v2, 2, 1")
    a("v_lshlrev_b32 v6, 12, v6")
    a("v_lshl_add_u32 v5, v5, 4, v6")
    a(f"s_mov_b32 s40, {f32(CH)}")
    a(f"s_mov_b32 s41, {f32(RS128)}")
    a(f"s_mov_b32 s42, {f32(QSCALE)}")
    a("s_lshl_b32 s34, s3, 12")
    a("s_add_u32 s43, s34, 8192")
    def big_dma(srd_):
        a("s_mov_b32 m0, s43")
        for pc in range(4): a(f"buffer_load_dwordx4 v{56+pc%2}, s[{srd_}:{srd_+3}], s34 offen offset:{pc*1024} lds")
    def big_addr():
        for ks in range(4): a(f"v_add_u32 v{58+ks}, s43, v{52+ks}")
    def big_read():
        for ks in range(4): a(f"ds_read_b128 {vr(BIG(ks),4)}, v{58+ks}")
    BIG = lambda ks: 32 + ks * 4
    SM = lambda ks: 16 + ks * 4
    DD = 48
    a("s_cmp_eq_u32 s6, 0")
    a("s_waitcnt lgkmcnt(0)")
    a("s_cbranch_scc0 L1_wv")
    stamp(True)
    srd(a, 24, 12, 32768)
    big_dma(24)
    srd(a, 20, 10, 32768)
    a("s_and_b32 s33, s3, 3")
    a("s_lshl_b32 s33, s33, 10")
    a("s_add_u32 m0, s33, 4096")
    a("s_lshl_b32 s35, s7, 12")
    a("s_add_u32 s33, s33, s35")
    a("s_and_b32 s35, s3, 1")
    a("s_lshl_b32 s35, s35, 7")
    a("v_xor_b32 v4, s35, v56")
    a("buffer_load_dwordx4 v4, s[20:23], s33 offen lds")
    big_addr()
    srd(a, 28, 4, 32768, MQ_OFF)
    a("v_lshrrev_b32 v6, 1, v3")
    a("v_lshl_add_u32 v5, v6, 8, v5")
    a("v_and_b32 v6, 1, v3")
    a("v_lshl_add_u32 v5, v6, 3, v5")
    a("s_lshr_b32 s34, s7, 1")
    a("s_lshl_b32 s34, s34, 10")
    a("s_and_b32 s35, s7, 1")
    a("s_lshl_b32 s35, s35, 9")
    a("s_add_u32 s34, s34, s35")
    a("s_lshr_b32 s35, s3, 1")
    a("s_lshl_b32 s35, s35, 13")
    a("s_add_u32 s34, s34, s35")
    a("s_and_b32 s35, s3, 1")
    a("s_lshl_b32 s35, s35, 7")
    a("s_add_u32 s34, s34, s35")
    a("v_lshlrev_b32 v7, 4, v3")
    a("s_lshl_b32 s35, s3, 6")
    a("v_add_u32 v6, s35, v7")
    a("s_cmp_eq_u32 s3, 0")
    a("s_cselect_b64 s[36:37], -1, 0")
    a("v_cmp_eq_u32 vcc, 0, v2")
    a("s_and_b64 s[36:37], s[36:37], vcc")
    a("s_waitcnt vmcnt(0)")
    big_read()
    a("s_barrier")
    for ks in range(4): a(f"ds_read_b128 {vr(SM(ks),4)}, v{52+ks} offset:4096")
    for ks in range(4):
        a(f"s_waitcnt lgkmcnt({3-ks})")
        a(f"{MF} {vr(DD,4)}, {vr(SM(ks),4)}, {vr(BIG(ks),4)}, {'0' if ks==0 else vr(DD,4)}")
    stamp()
    for r in range(4): a(f"v_mul_f32 v{8+r}, s41, v{DD+r}")
    for r in range(4): a(f"v_sub_f32 v{12+r}, v{8+r}, v{DD+r}")
    for r in range(4): a(f"v_cndmask_b32 v{8+r}, v{8+r}, v{12+r}, s[36:37]")
    row_sum(a, [8, 9, 10, 11])
    a("ds_write_b128 v6, v[8:11]")
    a("s_waitcnt lgkmcnt(0)")
    a("s_barrier")
    for w in range(8): a(f"ds_read_b128 {vr(16+4*w,4)}, v7 offset:{64*w}")
    for w in range(1, 8):
        a(f"s_waitcnt lgkmcnt({7-w})")
        for r in range(4): a(f"v_add_f32 v{16+r}, v{16+r}, v{16+4*w+r}")
    for r in range(4): a(f"v_fma_f32 v{DD+r}, -v{16+r}, s40, v{DD+r}")
    for r in range(4): a(f"v_mul_f32 v{DD+r}, s42, v{DD+r}")
    for r in range(4): a(f"v_cndmask_b32 v{DD+r}, v{DD+r}, 0, s[36:37]")
    a(f"v_cvt_pk_bf16_f32 v{DD}, v{DD}, v{DD+1}")
    a(f"v_cvt_pk_bf16_f32 v{DD+1}, v{DD+2}, v{DD+3}")
    a(f"buffer_store_dwordx2 {vr(DD,2)}, v5, s[28:31], s34 offen{ST1}")
    fin()
    a.label("L1_wv")
    stamp(True)
    srd(a, 24, 16, 32768)
    a("v_lshrrev_b32 v6, 2, v0")
    a("v_lshlrev_b32 v6, 8, v6")
    a("v_and_b32 v7, 3, v0")
    a("v_lshl_add_u32 v6, v7, 3, v6")
    a("s_lshl_b32 s33, s7, 5")
    a("s_add_u32 s33, s33, s34")
    a("buffer_load_dwordx2 v[8:9], v6, s[24:27], s33 offen")
    a("s_cmp_eq_u32 s6, 1")
    a("s_cselect_b32 s20, s14, s8")
    a("s_cselect_b32 s21, s15, s9")
    a("s_mov_b32 s22, 32768")
    a("s_mov_b32 s23, 0x00020000")
    big_dma(20)
    big_addr()
    a(f"s_mov_b32 s33, {MM_OFF}")
    a(f"s_cselect_b32 s33, {MV_OFF}, s33")
    a("s_add_u32 s28, s4, s33")
    a("s_addc_u32 s29, s5, 0")
    a("s_mov_b32 s30, 32768")
    a("s_mov_b32 s31, 0x00020000")
    a("s_lshl_b32 s35, s3, 9")
    a("v_lshl_add_u32 v6, v0, 3, s35")
    a("v_lshlrev_b32 v7, 8, v3")
    a("v_lshl_add_u32 v7, v2, 3, v7")
    a("v_lshl_add_u32 v5, v3, 8, v5")
    a("s_lshr_b32 s35, s7, 1")
    a("s_lshl_b32 s35, s35, 13")
    a("s_and_b32 s36, s7, 1")
    a("s_lshl_b32 s36, s36, 7")
    a("s_add_u32 s35, s35, s36")
    a("s_lshr_b32 s36, s3, 1")
    a("s_lshl_b32 s36, s36, 10")
    a("s_add_u32 s35, s35, s36")
    a("s_and_b32 s36, s3, 1")
    a("s_lshl_b32 s36, s36, 3")
    a("s_add_u32 s35, s35, s36")
    a("s_cmp_eq_u32 s3, 0")
    a("s_cselect_b64 s[36:37], -1, 0")
    a("v_cmp_eq_u32 vcc, 0, v3")
    a("s_and_b64 s[36:37], s[36:37], vcc")
    a("v_lshlrev_b32 v10, 2, v0")
    a("s_lshl_b32 s33, s3, 8")
    a("v_add_u32 v10, s33, v10")
    a("v_lshlrev_b32 v11, 2, v2")
    a("v_add_u32 v12, 5120, v11")
    a("v_add_u32 v11, 4096, v11")
    a("s_waitcnt vmcnt(4)")
    a("ds_write_b64 v6, v[8:9]")
    a("s_waitcnt vmcnt(0) lgkmcnt(0)")
    big_read()
    a("s_barrier")
    for ks in range(4):
        for h in range(2): a(f"ds_read_b64_tr_b16 {vr(SM(ks)+2*h,2)}, v7 offset:{ks*1024 + h*128}")
    for ks in range(4):
        a(f"s_waitcnt lgkmcnt({6-2*ks})")
        a(f"{MF} {vr(DD,4)}, {vr(BIG(ks),4)}, {vr(SM(ks),4)}, {'0' if ks==0 else vr(DD,4)}")
    stamp()
    a(f"v_add_f32 v8, v{DD}, v{DD+1}")
    a(f"v_add_f32 v9, v{DD+2}, v{DD+3}")
    a("v_add_f32 v8, v8, v9")
    a("v_mul_f32 v8, s41, v8")
    a(f"v_sub_f32 v9, v8, v{DD}")
    a("v_cndmask_b32 v8, v8, v9, s[36:37]")
    a("ds_write_b32 v10, v8 offset:4096")
    a("s_waitcnt lgkmcnt(0)")
    a("s_barrier")
    for i in range(16): a(f"ds_read2_b32 {vr(16+2*i,2)}, v{11+i//8} offset0:{32*(i%8)} offset1:{32*(i%8)+16}")
    for i in range(1, 32):
        if i % 2 == 0 or i == 1: a(f"s_waitcnt lgkmcnt({15 - i//2})")
        a(f"v_add_f32 v16, v16, v{16+i}")
    for r in range(4): a(f"v_fma_f32 v{DD+r}, -v16, s40, v{DD+r}")
    a(f"v_cndmask_b32 v{DD}, v{DD}, 0, s[36:37]")
    a(f"v_cvt_pk_bf16_f32 v{DD}, v{DD}, v{DD+1}")
    a(f"v_cvt_pk_bf16_f32 v{DD+1}, v{DD+2}, v{DD+3}")
    a(f"buffer_store_dwordx2 {vr(DD,2)}, v5, s[28:31], s35 offen{ST1}")
    fin()
    a.label("L1_ln")
    a(f"s_load_dwordx2 s[6:7], s[0:1], {A_X}")
    a(f"s_cmp_ge_u32 s2, {K1_GRID}")
    a("s_cbranch_scc1 L1_end")
    a(f"s_sub_u32 s3, s2, {WG_LN0}")
    a(f"s_mul_i32 s3, s3, {80*256}")
    a("v_lshrrev_b32 v1, 6, v0")
    a("v_lshlrev_b32 v3, 4, v0")
    a("v_readfirstlane_b32 s24, v1")
    a("v_and_b32 v4, 15, v0")
    a("v_bfe_u32 v5, v0, 4, 3")
    a("v_lshlrev_b32 v5, 5, v5")
    a("v_xor_b32 v6, v3, v5")
    a("v_cmp_eq_u32 vcc, 0, v4")
    a(f"s_mov_b32 s20, {f32(1.0/128)}")
    a(f"v_mov_b32 v4, {f32(1e-5)}")
    a(f"v_mov_b32 v5, {f32(CH)}")
    a("s_mov_b32 s23, 0xffff0000")
    a("s_add_u32 s21, s3, 8192")
    a("s_add_u32 s22, s3, 16384")
    a("s_cmp_ge_u32 s24, 4")
    a("s_waitcnt lgkmcnt(0)")
    stamp(True)
    a("s_mov_b32 s8, s6")
    a("s_mov_b32 s9, s7")
    a(f"s_mov_b32 s10, {N*256}")
    a("s_mov_b32 s11, 0x00020000")
    a("s_cbranch_scc1 L1_ln2")
    c0 = cnt[0]
    for NI in (3, 2):
        cnt[0] = c0
        if NI == 2: a.label("L1_ln2")
        so = (3, 21, 22)
        I = range(NI)
        W = lambda i: 8 + 4 * i
        X = lambda i, k: 24 + 8 * i + k
        A, B = (lambda i: 48 + i), (lambda i: 52 + i)
        for i in I: a(f"buffer_load_dwordx4 {vr(W(i),4)}, v3, s[8:11], s{so[i]} offen")
        srd(a, 12, 4, N * 256, HP_OFF); srd(a, 16, 4, N * 256, HQ_OFF)
        for i in I:
            a(f"s_waitcnt vmcnt({NI-1-i})")
            for c in range(4):
                a(f"v_lshlrev_b32 v{X(i,2*c)}, 16, v{W(i)+c}")
                a(f"v_and_b32 v{X(i,2*c+1)}, s23, v{W(i)+c}")
        stamp()
        for i in I: a(f"v_add_f32 v{A(i)}, v{X(i,0)}, v{X(i,1)}")
        for k in range(2, 8):
            for i in I: a(f"v_add_f32 v{A(i)}, v{A(i)}, v{X(i,k)}")
        row_sum(a, [A(i) for i in I])
        for i in I: a(f"v_mul_f32 v{A(i)}, s20, v{A(i)}")
        for k in range(8):
            for i in I: a(f"v_sub_f32 v{X(i,k)}, v{X(i,k)}, v{A(i)}")
        for i in I: a(f"v_mul_f32 v{B(i)}, v{X(i,0)}, v{X(i,0)}")
        for k in range(1, 8):
            for i in I: a(f"v_fmac_f32 v{B(i)}, v{X(i,k)}, v{X(i,k)}")
        row_sum(a, [B(i) for i in I])
        for i in I: a(f"v_fma_f32 v{B(i)}, v{B(i)}, s20, v4")
        for i in I: a(f"v_rsq_f32 v{B(i)}, v{B(i)}")
        for k in range(8):
            for i in I: a(f"v_mul_f32 v{X(i,k)}, v{X(i,k)}, v{B(i)}")
        for i in I: a(f"v_mul_f32_dpp v{A(i)}, v{X(i,0)}, v5 row_newbcast:0 row_mask:0xf bank_mask:0xf")
        for i in I:
            for c in range(4): a(f"v_cvt_pk_bf16_f32 v{W(i)+c}, v{X(i,2*c)}, v{X(i,2*c+1)}")
            a(f"buffer_store_dwordx4 {vr(W(i),4)}, v6, s[16:19], s{so[i]} offen{ST1}")
        for i in I:
            for k in range(8): a(f"v_add_f32 v{X(i,k)}, v{X(i,k)}, v{A(i)}")
            a(f"v_cndmask_b32 v{X(i,0)}, v{X(i,0)}, 1.0, vcc")
            for c in range(4): a(f"v_cvt_pk_bf16_f32 v{X(i,c)}, v{X(i,2*c)}, v{X(i,2*c+1)}")
            a(f"buffer_store_dwordx4 {vr(X(i,0),4)}, v6, s[12:15], s{so[i]} offen{ST1}")
        fin()
    a.label("L1_end")
    a("s_endpgm")
def desc_k1(a):
    kernel_desc(a, NAME1, 64, 64, 96)
K1_LAUNCH = f"; @launch kernel={NAME1} grid=({K1_GRID},1,1) block=(512,1,1) lds=40960"
```

```python
from asmlib import *
from layout import *
NAME1 = "prep_kernel"
WG_W0, WG_PF, WG_LN0 = 64, 88, 96
LN_WGS = 125
K1_GRID = WG_LN0 + LN_WGS
PREFETCH = 1
ST1 = ''
MF = "v_mfma_f32_16x16x32_bf16"

def dpp(op, d, s0, s1, ctl, rm="0xf", bc=False):
    return f"{op}_dpp v{d}, v{s0}, v{s1} {ctl} row_mask:{rm} bank_mask:0xf" + (" bound_ctrl:1" if bc else "")
def wave_scan(a, v):
    for k in (1, 2, 4, 8): a(dpp("v_add_u32", v, v, v, f"row_shr:{k}", bc=True))
    a(dpp("v_add_u32", v, v, v, "row_bcast:15", "0xa"))
    a(dpp("v_add_u32", v, v, v, "row_bcast:31", "0xc"))
def row_sum(a, vs):
    for k in (8, 4, 2, 1):
        for v in vs: a(dpp("v_add_f32", v, v, v, f"row_ror:{k}"))

def gen_k1(a, stamps=False):
    cnt = [0]
    def stamp(reset=False):
        if reset: cnt[0] = 1
        if not stamps: return
        i = cnt[0]; cnt[0] += 1
        a(f"s_memrealtime s[{64+2*i}:{65+2*i}]")
    def fin():
        if stamps:
            a("s_waitcnt vmcnt(0)")
            stamp()
            a("s_waitcnt lgkmcnt(0)")
            a("s_lshl_b32 s50, s2, 6")
            srd(a, 52, 4, 1 << 20, 0x1100000)
            a("s_mov_b64 exec, 1")
            for i in range(cnt[0]):
                a(f"v_mov_b32 v1, s{64+2*i}")
                a(f"buffer_store_dword v1, off, s[52:55], s50 offset:{4*i}")
        a("s_endpgm")
    kernel_begin(a, NAME1)
    stamp()
    a(f"s_load_dwordx2 s[4:5], s[0:1], {A_WS}")
    a(f"s_cmp_ge_u32 s2, {WG_LN0}")
    a("s_cbranch_scc1 L1_ln")
    a(f"s_cmp_ge_u32 s2, {WG_PF}")
    a("s_cbranch_scc1 L1_pf")
    a(f"s_cmp_ge_u32 s2, {WG_W0}")
    a("s_cbranch_scc1 L1_w")
    a(f"s_load_dwordx4 s[8:11], s[0:1], {A_SRC}")
    a("v_lshlrev_b32 v1, 3, v0")
    a("v_mov_b32 v4, 0")
    a("v_mov_b32 v5, 0")
    a("ds_write_b64 v1, v[4:5]")
    a(f"s_mul_i32 s3, s2, {EPP*4}")
    a("v_lshlrev_b32 v2, 2, v0")
    a("s_add_u32 s6, s3, 4096")
    a("s_add_u32 s7, s3, 8192")
    a("s_waitcnt lgkmcnt(0)")
    stamp(True)
    NE = 5
    DST = lambda i: 10 + i; SRC = lambda i: 16 + i; BK = lambda i: 22 + i; RK = lambda i: 28 + i
    srd(a, 16, 10, E * 4)
    for i in range(NE): a(f"buffer_load_dword v{DST(i)}, v2, s[16:19], s{(3,3,6,6,7)[i]} offen offset:{(i%2)*2048}")
    srd(a, 12, 8, E * 4)
    for i in range(NE): a(f"buffer_load_dword v{SRC(i)}, v2, s[12:15], s{(3,3,6,6,7)[i]} offen offset:{(i%2)*2048}")
    srd(a, 20, 4, NPROD * 4096, TAB_OFF); srd(a, 24, 4, E * 4, SEG_OFF); srd(a, 28, 4, 256 * 128, FLG_OFF)
    a("s_cmp_lg_u32 s2, 0")
    a("s_cbranch_scc1 L1_noflag")
    a("v_lshlrev_b32 v3, 7, v0")
    a("v_mov_b32 v6, 0")
    a("v_mov_b32 v7, 0")
    a("buffer_store_dwordx4 v[4:7], v3, s[28:31], 0 offen")
    a.label("L1_noflag")
    a("s_barrier")
    a("s_mov_b32 s33, 52429")
    a("v_mov_b32 v8, 1")
    a(f"v_cmp_gt_u32 vcc, {EPP - 4*512}, v0")
    a("v_lshrrev_b32 v3, 6, v0")
    a("v_lshlrev_b32 v3, 2, v3")
    a("s_mov_b64 s[34:35], vcc")
    a("v_lshlrev_b32 v6, 4, v0")
    a(f"v_cmp_gt_u32 vcc, {EPP//4 - 512}, v0")
    a("v_mov_b32 v7, 0x7fffff00")
    a("v_readfirstlane_b32 s38, v3")
    a("v_cndmask_b32 v7, v7, v6, vcc")
    a("s_waitcnt vmcnt(5)")
    stamp()
    for i in range(NE):
        a(f"v_mul_u32_u24 v{BK(i)}, s33, v{DST(i)}")
        a(f"v_lshrrev_b32 v{BK(i)}, 19, v{BK(i)}")
        a(f"v_mul_u32_u24 v9, 10, v{BK(i)}")
        a(f"v_lshlrev_b32 v{BK(i)}, 2, v{BK(i)}")
        if i == NE - 1: a("s_mov_b64 exec, s[34:35]")
        a(f"ds_add_rtn_u32 v{RK(i)}, v{BK(i)}, v8")
        a(f"v_sub_u32 v{DST(i)}, v{DST(i)}, v9")
    a("s_mov_b64 exec, -1")
    a("s_waitcnt lgkmcnt(0)")
    a("s_barrier")
    stamp()
    a("ds_read_b64 v[4:5], v1")
    a("s_waitcnt lgkmcnt(0)")
    a("v_add_u32 v36, v4, v5")
    a("v_mov_b32 v37, v36")
    wave_scan(a, 37)
    a("v_and_b32 v9, 63, v0")
    a("v_cmp_eq_u32 vcc, 63, v9")
    a("s_and_saveexec_b64 s[36:37], vcc")
    a("ds_write_b32 v3, v37 offset:4096")
    a("s_mov_b64 exec, -1")
    a("v_mov_b32 v9, 0")
    a("v_sub_u32 v37, v37, v36")
    a("s_waitcnt lgkmcnt(0)")
    a("s_barrier")
    a("ds_read_b128 v[40:43], v9 offset:4096")
    a("ds_read_b128 v[44:47], v9 offset:4112")
    a("s_waitcnt vmcnt(0)")
    for i in range(NE):
        a(f"v_and_b32 v9, 7, v{SRC(i)}")
        a(f"v_lshl_or_b32 v{DST(i)}, v9, 5, v{DST(i)}")
        a(f"v_lshl_or_b32 v{DST(i)}, v{SRC(i)}, 8, v{DST(i)}")
    a("s_waitcnt lgkmcnt(0)")
    for w in range(7):
        a(f"s_cmp_gt_u32 s38, {4*w}")
        a("s_cselect_b32 s39, 1, 0")
        a(f"v_mad_u32_u24 v37, v{40+w}, s39, v37")
    a("v_mov_b32 v38, v37")
    a("v_add_u32 v39, v37, v4")
    a("ds_write_b64 v1, v[38:39]")
    for i in range(2): a(f"v_lshl_or_b32 v{40+i}, v{4+i}, 16, v{38+i}")
    a("s_lshl_b32 s39, s2, 12")
    a("buffer_store_dwordx2 v[40:41], v1, s[20:23], s39 offen" + ST1)
    a("s_waitcnt lgkmcnt(0)")
    a("s_barrier")
    stamp()
    for i in range(NE):
        if i == NE - 1: a("s_mov_b64 exec, s[34:35]")
        a(f"ds_read_b32 v{BK(i)}, v{BK(i)}")
    a("s_mov_b64 exec, -1")
    for i in range(NE):
        a(f"s_waitcnt lgkmcnt({NE-1})")
        a(f"v_add_lshl_u32 v{BK(i)}, v{BK(i)}, v{RK(i)}, 2")
        if i == NE - 1: a("s_mov_b64 exec, s[34:35]")
        a(f"ds_write_b32 v{BK(i)}, v{DST(i)} offset:8192")
    a("s_mov_b64 exec, -1")
    a("s_waitcnt lgkmcnt(0)")
    a("s_barrier")
    for i in range(2): a(f"ds_read_b128 {vr(12+4*i,4)}, v6 offset:{8192+8192*i}")
    for i in range(2):
        a(f"s_waitcnt lgkmcnt({1-i})")
        a(f"buffer_store_dwordx4 {vr(12+4*i,4)}, v{6+i}, s[24:27], s{(3,7)[i]} offen{ST1}")
    fin()
    a.label("L1_w")
    a(f"s_load_dwordx8 s[8:15], s[0:1], {A_WMSG}")
    a(f"s_load_dwordx2 s[16:17], s[0:1], {A_WOUT}")
    a("v_lshrrev_b32 v1, 6, v0")
    a("v_and_b32 v0, 63, v0")
    a(f"s_sub_u32 s6, s2, {WG_W0}")
    a("v_readfirstlane_b32 s3, v1")
    a("v_and_b32 v2, 15, v0")
    a("v_lshrrev_b32 v3, 4, v0")
    a("s_and_b32 s7, s6, 7")
    a("s_lshr_b32 s6, s6, 3")
    a("v_lshrrev_b32 v6, 1, v2")
    a("v_xor_b32 v6, v6, v3")
    a("v_lshlrev_b32 v6, 5, v6")
    a("v_and_b32 v7, 1, v2")
    a("v_lshl_or_b32 v6, v7, 4, v6")
    a("v_lshl_or_b32 v56, v3, 8, v6")
    a("v_xor_b32 v57, 0x80, v56")
    a("v_lshrrev_b32 v6, 1, v3")
    a("v_and_b32 v7, 1, v3")
    a("v_lshlrev_b32 v7, 4, v7")
    a("v_lshl_add_u32 v7, v2, 8, v7")
    a("v_and_b32 v4, 7, v2")
    for ks in range(4):
        a(f"v_add_u32 v5, {2*ks}, v6")
        a("v_xor_b32 v5, v5, v4")
        a(f"v_lshl_add_u32 v{52+ks}, v5, 5, v7")
    a("v_lshrrev_b32 v5, 3, v2")
    a("v_and_b32 v6, 3, v2")
    a("v_lshl_add_u32 v5, v5, 2, v6")
    a("v_bfe_u32 v6, v2, 2, 1")
    a("v_lshlrev_b32 v6, 12, v6")
    a("v_lshl_add_u32 v5, v5, 4, v6")
    a(f"s_mov_b32 s40, {f32(CH)}")
    a(f"s_mov_b32 s41, {f32(RS128)}")
    a(f"s_mov_b32 s42, {f32(QSCALE)}")
    a("s_lshl_b32 s34, s3, 12")
    a("s_add_u32 s43, s34, 8192")
    def big_dma(srd_):
        a("s_mov_b32 m0, s43")
        for pc in range(4): a(f"buffer_load_dwordx4 v{56+pc%2}, s[{srd_}:{srd_+3}], s34 offen offset:{pc*1024} lds")
    def big_addr():
        for ks in range(4): a(f"v_add_u32 v{58+ks}, s43, v{52+ks}")
    def big_read():
        for ks in range(4): a(f"ds_read_b128 {vr(BIG(ks),4)}, v{58+ks}")
    BIG = lambda ks: 32 + ks * 4
    SM = lambda ks: 16 + ks * 4
    DD = 48
    a("s_cmp_eq_u32 s6, 0")
    a("s_waitcnt lgkmcnt(0)")
    a("s_cbranch_scc0 L1_wv")
    stamp(True)
    srd(a, 24, 12, 32768)
    big_dma(24)
    srd(a, 20, 10, 32768)
    a("s_and_b32 s33, s3, 3")
    a("s_lshl_b32 s33, s33, 10")
    a("s_add_u32 m0, s33, 4096")
    a("s_lshl_b32 s35, s7, 12")
    a("s_add_u32 s33, s33, s35")
    a("s_and_b32 s35, s3, 1")
    a("s_lshl_b32 s35, s35, 7")
    a("v_xor_b32 v4, s35, v56")
    a("buffer_load_dwordx4 v4, s[20:23], s33 offen lds")
    big_addr()
    srd(a, 28, 4, 32768, MQ_OFF)
    a("v_lshrrev_b32 v6, 1, v3")
    a("v_lshl_add_u32 v5, v6, 8, v5")
    a("v_and_b32 v6, 1, v3")
    a("v_lshl_add_u32 v5, v6, 3, v5")
    a("s_lshr_b32 s34, s7, 1")
    a("s_lshl_b32 s34, s34, 10")
    a("s_and_b32 s35, s7, 1")
    a("s_lshl_b32 s35, s35, 9")
    a("s_add_u32 s34, s34, s35")
    a("s_lshr_b32 s35, s3, 1")
    a("s_lshl_b32 s35, s35, 13")
    a("s_add_u32 s34, s34, s35")
    a("s_and_b32 s35, s3, 1")
    a("s_lshl_b32 s35, s35, 7")
    a("s_add_u32 s34, s34, s35")
    a("v_lshlrev_b32 v7, 4, v3")
    a("s_lshl_b32 s35, s3, 6")
    a("v_add_u32 v6, s35, v7")
    a("s_cmp_eq_u32 s3, 0")
    a("s_cselect_b64 s[36:37], -1, 0")
    a("v_cmp_eq_u32 vcc, 0, v2")
    a("s_and_b64 s[36:37], s[36:37], vcc")
    a("s_waitcnt vmcnt(0)")
    big_read()
    a("s_barrier")
    for ks in range(4): a(f"ds_read_b128 {vr(SM(ks),4)}, v{52+ks} offset:4096")
    for ks in range(4):
        a(f"s_waitcnt lgkmcnt({3-ks})")
        a(f"{MF} {vr(DD,4)}, {vr(SM(ks),4)}, {vr(BIG(ks),4)}, {'0' if ks==0 else vr(DD,4)}")
    stamp()
    for r in range(4): a(f"v_mul_f32 v{8+r}, s41, v{DD+r}")
    for r in range(4): a(f"v_sub_f32 v{12+r}, v{8+r}, v{DD+r}")
    for r in range(4): a(f"v_cndmask_b32 v{8+r}, v{8+r}, v{12+r}, s[36:37]")
    row_sum(a, [8, 9, 10, 11])
    a("ds_write_b128 v6, v[8:11]")
    a("s_waitcnt lgkmcnt(0)")
    a("s_barrier")
    for w in range(8): a(f"ds_read_b128 {vr(16+4*w,4)}, v7 offset:{64*w}")
    for w in range(1, 8):
        a(f"s_waitcnt lgkmcnt({7-w})")
        for r in range(4): a(f"v_add_f32 v{16+r}, v{16+r}, v{16+4*w+r}")
    for r in range(4): a(f"v_fma_f32 v{DD+r}, -v{16+r}, s40, v{DD+r}")
    for r in range(4): a(f"v_mul_f32 v{DD+r}, s42, v{DD+r}")
    for r in range(4): a(f"v_cndmask_b32 v{DD+r}, v{DD+r}, 0, s[36:37]")
    a(f"v_cvt_pk_bf16_f32 v{DD}, v{DD}, v{DD+1}")
    a(f"v_cvt_pk_bf16_f32 v{DD+1}, v{DD+2}, v{DD+3}")
    a(f"buffer_store_dwordx2 {vr(DD,2)}, v5, s[28:31], s34 offen{ST1}")
    fin()
    a.label("L1_wv")
    stamp(True)
    srd(a, 24, 16, 32768)
    a("v_lshrrev_b32 v6, 2, v0")
    a("v_lshlrev_b32 v6, 8, v6")
    a("v_and_b32 v7, 3, v0")
    a("v_lshl_add_u32 v6, v7, 3, v6")
    a("s_lshl_b32 s33, s7, 5")
    a("s_add_u32 s33, s33, s34")
    a("buffer_load_dwordx2 v[8:9], v6, s[24:27], s33 offen")
    a("s_cmp_eq_u32 s6, 1")
    a("s_cselect_b32 s20, s14, s8")
    a("s_cselect_b32 s21, s15, s9")
    a("s_mov_b32 s22, 32768")
    a("s_mov_b32 s23, 0x00020000")
    big_dma(20)
    big_addr()
    a(f"s_mov_b32 s33, {MM_OFF}")
    a(f"s_cselect_b32 s33, {MV_OFF}, s33")
    a("s_add_u32 s28, s4, s33")
    a("s_addc_u32 s29, s5, 0")
    a("s_mov_b32 s30, 32768")
    a("s_mov_b32 s31, 0x00020000")
    a("s_lshl_b32 s35, s3, 9")
    a("v_lshl_add_u32 v6, v0, 3, s35")
    a("v_lshlrev_b32 v7, 8, v3")
    a("v_lshl_add_u32 v7, v2, 3, v7")
    a("v_lshl_add_u32 v5, v3, 8, v5")
    a("s_lshr_b32 s35, s7, 1")
    a("s_lshl_b32 s35, s35, 13")
    a("s_and_b32 s36, s7, 1")
    a("s_lshl_b32 s36, s36, 7")
    a("s_add_u32 s35, s35, s36")
    a("s_lshr_b32 s36, s3, 1")
    a("s_lshl_b32 s36, s36, 10")
    a("s_add_u32 s35, s35, s36")
    a("s_and_b32 s36, s3, 1")
    a("s_lshl_b32 s36, s36, 3")
    a("s_add_u32 s35, s35, s36")
    a("s_cmp_eq_u32 s3, 0")
    a("s_cselect_b64 s[36:37], -1, 0")
    a("v_cmp_eq_u32 vcc, 0, v3")
    a("s_and_b64 s[36:37], s[36:37], vcc")
    a("v_lshlrev_b32 v10, 2, v0")
    a("s_lshl_b32 s33, s3, 8")
    a("v_add_u32 v10, s33, v10")
    a("v_lshlrev_b32 v11, 2, v2")
    a("v_add_u32 v12, 5120, v11")
    a("v_add_u32 v11, 4096, v11")
    a("s_waitcnt vmcnt(4)")
    a("ds_write_b64 v6, v[8:9]")
    a("s_waitcnt vmcnt(0) lgkmcnt(0)")
    big_read()
    a("s_barrier")
    for ks in range(4):
        for h in range(2): a(f"ds_read_b64_tr_b16 {vr(SM(ks)+2*h,2)}, v7 offset:{ks*1024 + h*128}")
    for ks in range(4):
        a(f"s_waitcnt lgkmcnt({6-2*ks})")
        a(f"{MF} {vr(DD,4)}, {vr(BIG(ks),4)}, {vr(SM(ks),4)}, {'0' if ks==0 else vr(DD,4)}")
    stamp()
    a(f"v_add_f32 v8, v{DD}, v{DD+1}")
    a(f"v_add_f32 v9, v{DD+2}, v{DD+3}")
    a("v_add_f32 v8, v8, v9")
    a("v_mul_f32 v8, s41, v8")
    a(f"v_sub_f32 v9, v8, v{DD}")
    a("v_cndmask_b32 v8, v8, v9, s[36:37]")
    a("ds_write_b32 v10, v8 offset:4096")
    a("s_waitcnt lgkmcnt(0)")
    a("s_barrier")
    for i in range(16): a(f"ds_read2_b32 {vr(16+2*i,2)}, v{11+i//8} offset0:{32*(i%8)} offset1:{32*(i%8)+16}")
    for i in range(1, 32):
        if i % 2 == 0 or i == 1: a(f"s_waitcnt lgkmcnt({15 - i//2})")
        a(f"v_add_f32 v16, v16, v{16+i}")
    for r in range(4): a(f"v_fma_f32 v{DD+r}, -v16, s40, v{DD+r}")
    a(f"v_cndmask_b32 v{DD}, v{DD}, 0, s[36:37]")
    a(f"v_cvt_pk_bf16_f32 v{DD}, v{DD}, v{DD+1}")
    a(f"v_cvt_pk_bf16_f32 v{DD+1}, v{DD+2}, v{DD+3}")
    a(f"buffer_store_dwordx2 {vr(DD,2)}, v5, s[28:31], s35 offen{ST1}")
    fin()
    a.label("L1_ln")
    a(f"s_load_dwordx2 s[6:7], s[0:1], {A_X}")
    a(f"s_cmp_ge_u32 s2, {K1_GRID}")
    a("s_cbranch_scc1 L1_end")
    a(f"s_sub_u32 s3, s2, {WG_LN0}")
    a(f"s_mul_i32 s3, s3, {80*256}")
    a("v_lshrrev_b32 v1, 6, v0")
    a("v_lshlrev_b32 v3, 4, v0")
    a("v_readfirstlane_b32 s24, v1")
    a("v_and_b32 v4, 15, v0")
    a("v_bfe_u32 v5, v0, 4, 3")
    a("v_lshlrev_b32 v5, 5, v5")
    a("v_xor_b32 v6, v3, v5")
    a("v_cmp_eq_u32 vcc, 0, v4")
    a(f"s_mov_b32 s20, {f32(1.0/128)}")
    a(f"v_mov_b32 v4, {f32(1e-5)}")
    a(f"v_mov_b32 v5, {f32(CH)}")
    a("s_mov_b32 s23, 0xffff0000")
    a("s_add_u32 s21, s3, 8192")
    a("s_add_u32 s22, s3, 16384")
    a("s_cmp_ge_u32 s24, 4")
    a("s_waitcnt lgkmcnt(0)")
    stamp(True)
    a("s_mov_b32 s8, s6")
    a("s_mov_b32 s9, s7")
    a(f"s_mov_b32 s10, {N*256}")
    a("s_mov_b32 s11, 0x00020000")
    a("s_cbranch_scc1 L1_ln2")
    c0 = cnt[0]
    for NI in (3, 2):
        cnt[0] = c0
        if NI == 2: a.label("L1_ln2")
        so = (3, 21, 22)
        I = range(NI)
        W = lambda i: 8 + 4 * i
        X = lambda i, k: 24 + 8 * i + k
        A, B = (lambda i: 48 + i), (lambda i: 52 + i)
        for i in I: a(f"buffer_load_dwordx4 {vr(W(i),4)}, v3, s[8:11], s{so[i]} offen")
        srd(a, 12, 4, N * 256, HP_OFF); srd(a, 16, 4, N * 256, HQ_OFF)
        for i in I:
            a(f"s_waitcnt vmcnt({NI-1-i})")
            for c in range(4):
                a(f"v_lshlrev_b32 v{X(i,2*c)}, 16, v{W(i)+c}")
                a(f"v_and_b32 v{X(i,2*c+1)}, s23, v{W(i)+c}")
        stamp()
        for i in I: a(f"v_add_f32 v{A(i)}, v{X(i,0)}, v{X(i,1)}")
        for k in range(2, 8):
            for i in I: a(f"v_add_f32 v{A(i)}, v{A(i)}, v{X(i,k)}")
        row_sum(a, [A(i) for i in I])
        for i in I: a(f"v_mul_f32 v{A(i)}, s20, v{A(i)}")
        for k in range(8):
            for i in I: a(f"v_sub_f32 v{X(i,k)}, v{X(i,k)}, v{A(i)}")
        for i in I: a(f"v_mul_f32 v{B(i)}, v{X(i,0)}, v{X(i,0)}")
        for k in range(1, 8):
            for i in I: a(f"v_fmac_f32 v{B(i)}, v{X(i,k)}, v{X(i,k)}")
        row_sum(a, [B(i) for i in I])
        for i in I: a(f"v_fma_f32 v{B(i)}, v{B(i)}, s20, v4")
        for i in I: a(f"v_rsq_f32 v{B(i)}, v{B(i)}")
        for k in range(8):
            for i in I: a(f"v_mul_f32 v{X(i,k)}, v{X(i,k)}, v{B(i)}")
        for i in I: a(f"v_mul_f32_dpp v{A(i)}, v{X(i,0)}, v5 row_newbcast:0 row_mask:0xf bank_mask:0xf")
        for i in I:
            for c in range(4): a(f"v_cvt_pk_bf16_f32 v{W(i)+c}, v{X(i,2*c)}, v{X(i,2*c+1)}")
            a(f"buffer_store_dwordx4 {vr(W(i),4)}, v6, s[16:19], s{so[i]} offen{ST1}")
        for i in I:
            for k in range(8): a(f"v_add_f32 v{X(i,k)}, v{X(i,k)}, v{A(i)}")
            a(f"v_cndmask_b32 v{X(i,0)}, v{X(i,0)}, 1.0, vcc")
            for c in range(4): a(f"v_cvt_pk_bf16_f32 v{X(i,c)}, v{X(i,2*c)}, v{X(i,2*c+1)}")
            a(f"buffer_store_dwordx4 {vr(X(i,0),4)}, v6, s[12:15], s{so[i]} offen{ST1}")
        fin()
    a.label("L1_pf")
    if PREFETCH:
        a("s_getpc_b64 s[40:41]")
        a.label("L1_pc")
        a("s_sub_u32 s40, s40, L1_pc-prep_kernel")
        a("s_subb_u32 s41, s41, 0")
        a("v_lshlrev_b32 v2, 7, v0")
        a("v_mov_b32 v3, L2_slow-prep_kernel")
        a("v_cmp_gt_u32 vcc, v3, v2")
        a("v_add_u32 v3, L2_epi-L2_slow, v2")
        a("v_cndmask_b32 v2, v3, v2, vcc")
        a("v_min_u32 v2, L2_end-prep_kernel, v2")
        a("v_mov_b32 v3, s41")
        a("v_add_co_u32 v2, vcc, s40, v2")
        a("v_addc_co_u32 v3, vcc, 0, v3, vcc")
        a("global_load_dword v4, v[2:3], off")
        a("s_waitcnt vmcnt(0)")
    a.label("L1_end")
    a("s_endpgm")
def desc_k1(a):
    kernel_desc(a, NAME1, 64, 64, 96)
K1_LAUNCH = f"; @launch kernel={NAME1} grid=({K1_GRID},1,1) block=(512,1,1) lds=40960"
```

```python
from asmlib import *
from layout import *
from k1 import wave_scan
NAME2 = "attn_kernel"
NWG = 253
NSTEP = 39
RING = 32768
SPARE = 4 * RING
LIST_B = 1088 * 4
LREG = SPARE + 4 * LIST_B
OFR = SPARE + 20480
LDS2 = OFR + 12288
ST2 = ' nt'
SKIP = ()
NEARLY = 8
PEARLY = 0
WS_BYTES = XCH_OFF + NWG * XCH_WG
MF = "v_mfma_f32_16x16x32_bf16"
MF16 = "v_mfma_f32_16x16x16_bf16"
OOB = "0x7fffff00"
NORM2_MAX = 48.0
O = lambda j, qb: (qb * 8 + j) * 4
Q = lambda qb, ks: 160 + (qb * 4 + ks) * 4
AM = lambda m, hf, ks: 160 + ((m * 2 + hf) * 4 + ks) * 4
KF = lambda par, kb, ks: 32 + par * 32 + (kb * 4 + ks) * 4
VF = lambda par, j: 96 + par * 32 + j * 4
S = lambda par, kb: 160 + par * 8 + kb * 4
P = lambda par: 176 + par * 4
KA = lambda ks: 8 + ks
VA = lambda j: 12 + j
VOFF0, VOFF1 = 20, 21
V_TAB, V_SEG, V_Q, V_G = 22, 23, 24, 25
V_DEG, V_HOT, V_RED = 26, 27, 1
V_ROW = lambda b: 28 + b
ENT = lambda j: 184 + j
CM = lambda qb: 200 + qb * 4
XR = lambda b: 220 + b * 4
LK = lambda ks: 184 + 4 * ks
LV = lambda j: 240 + 2 * j
LS, LP, LA = 236, 240, 244
U = 246
S_W, S_TILE, S_SPLIT, S_RING, S_KOFF, S_CNT, S_LEFT = 3, 28, 29, 30, 31, 33, 34
S_AM, S_LIST, S_NB, S_I = 40, 45, 46, 47
ST_OFF = 0x1000000
def red_off(s, qb, h):
    k = qb * 6 + (s - 1) * 2 + h
    return ((8 + k) % 32) * 1024

def gen_k2(a, stamps=False):
    nst = [0]
    seq = [0]
    def stamp():
        seq[0] += 1
        if not stamps or (SKIP and seq[0] in SKIP): return
        i = nst[0]; nst[0] += 1
        a(f"s_memtime s[{64+2*i}:{65+2*i}]")
    def emit(xs):
        for x in xs: a(x)
    kernel_begin(a, NAME2)
    a(f"s_lshr_b32 s{S_TILE}, s2, 4")
    a(f"s_lshl_b32 s{S_TILE}, s{S_TILE}, 3")
    a("s_and_b32 s34, s2, 7")
    a(f"s_add_u32 s{S_TILE}, s{S_TILE}, s34")
    a(f"s_cmp_ge_u32 s{S_TILE}, 125")
    a("s_cbranch_scc1 L2_end")
    a(f"s_load_dwordx2 s[4:5], s[0:1], {A_WS}")
    a(f"s_load_dwordx2 s[16:17], s[0:1], {A_X}")
    a(f"s_load_dwordx2 s[20:21], s[0:1], {A_OUT}")
    a(f"s_load_dwordx2 s[24:25], s[0:1], {A_DEG}")
    if stamps: a("s_memrealtime s[62:63]")
    stamp()
    a("v_lshrrev_b32 v1, 6, v0")
    a("v_and_b32 v0, 63, v0")
    a(f"s_bfe_u32 s{S_SPLIT}, s2, 0x10003")
    a(f"v_readfirstlane_b32 s{S_W}, v1")
    a(f"v_and_b32 v{V_Q}, 15, v0")
    a(f"v_lshrrev_b32 v{V_G}, 4, v0")
    a(f"v_lshlrev_b32 v{VOFF0}, 4, v0")
    a(f"v_add_u32 v{VOFF1}, 4096, v{VOFF0}")
    a(f"s_lshl_b32 s{S_RING}, s{S_W}, 15")
    a(f"s_lshl_b32 s35, s{S_SPLIT}, 2")
    a(f"s_add_u32 s38, s35, s{S_W}")
    a(f"s_mul_i32 s{S_KOFF}, s38, {NSTEP*8192}")
    a(f"s_mul_i32 s36, s{S_TILE}, {80*256}")
    a(f"s_mul_i32 s42, s{S_W}, 5120")
    a(f"s_add_u32 s43, s42, {SPARE}")
    a("s_add_u32 s42, s42, s36")
    a(f"s_add_u32 s42, s42, {HQ_OFF}")
    a(f"s_lshl_b32 s{S_AM}, s{S_W}, 13")
    a(f"s_add_u32 s41, s{S_AM}, {MQ_OFF}")
    a(f"s_add_u32 s{S_AM}, s{S_AM}, {MV_OFF}")
    a("s_mov_b32 m0, s43")
    a(f"s_lshl_b32 s39, s{S_TILE}, 3")
    a("s_add_u32 s39, s39, s35")
    a(f"s_lshl_b32 s44, s{S_W}, 16")
    a("s_lshl_b32 s35, s39, 2")
    a("s_add_u32 s44, s44, s35")
    a(f"s_add_u32 s44, s44, {TAB_OFF}")
    a(f"v_lshlrev_b32 v2, 12, v{V_Q}")
    a(f"v_lshl_add_u32 v2, v{V_G}, 2, v2")
    a(f"s_xor_b32 s35, s{S_SPLIT}, 1")
    a("s_mul_i32 s37, s35, 15")
    a(f"v_xor_b32 v3, s37, v{V_Q}")
    a("s_mul_i32 s37, s35, 3")
    a(f"s_xor_b32 s48, s37, s{S_W}")
    a("s_add_u32 s39, s39, s48")
    a(f"s_mul_i32 s49, s35, {4*4096}")
    a("s_add_u32 s36, s36, s49")
    a(f"s_add_u32 s49, s49, {SPARE}")
    a("s_lshl_b32 s37, s35, 13")
    a("s_sub_u32 s37, 4096, s37")
    a(f"s_mul_i32 s{S_LEFT}, s35, 4")
    a(f"s_mul_i32 s{S_LEFT}, s{S_LEFT}, s{S_W}")
    a(f"s_add_u32 s{S_LEFT}, s{S_LEFT}, s{S_W}")
    a(f"s_mul_i32 s{S_LIST}, s{S_W}, {LIST_B}")
    a(f"s_add_u32 s{S_LIST}, s{S_LIST}, {SPARE}")
    a(f"v_lshrrev_b32 v5, 1, v{V_G}")
    a(f"v_and_b32 v6, 1, v{V_G}")
    a("v_lshlrev_b32 v31, 4, v6")
    for row, base, dst in (("v3", "s49", 232), (f"v{V_Q}", f"s{S_RING}", KA(0))):
        a(f"v_and_b32 v4, 7, {row}")
        a(f"v_lshl_add_u32 v6, {row}, 8, v31")
        a(f"v_add_u32 v6, {base}, v6")
        for ks in range(4):
            a(f"v_add_u32 v7, {2*ks}, v5")
            a("v_xor_b32 v7, v7, v4")
            a(f"v_lshl_add_u32 v{dst+ks}, v7, 5, v6")
    a("s_waitcnt lgkmcnt(0)")
    stamp()
    srd(a, 12, 4, WS_BYTES)
    HB = lambda qb, ks: 32 + (qb * 4 + ks) * 4
    MA = lambda hf, ks: 112 + (hf * 4 + ks) * 4
    QD = lambda qb, hf: 144 + (qb * 2 + hf) * 4
    for pc in range(4): a(f"buffer_load_dwordx4 v{VOFF0}, s[12:15], s42 offen offset:{pc*1024} lds")
    a("s_add_u32 m0, s43, 4096")
    srd(a, 8, 4, N * 256, HP_OFF)
    a(f"buffer_load_dwordx4 v{VOFF1}, s[12:15], s42 offen lds ; #hq")
    for hf in range(2):
        for ks in range(4): a(f"buffer_load_dwordx4 {vr(MA(hf,ks),4)}, v{VOFF0+hf}, s[12:15], s41 offen offset:{ks*1024} ; #mq")
    a(f"buffer_load_dword v{V_TAB}, v2, s[12:15], s44 offen ; #tab")
    def dma(slot, piece, last=7):
        out = []
        half, sub = piece // 4, piece % 4
        if sub == 0: out.append(f"s_add_u32 m0, s{S_RING}, {slot*8192 + half*4096}")
        out.append(f"buffer_load_dwordx4 v{VOFF0+half}, s[8:11], s{S_KOFF} offen offset:{sub*1024} lds")
        if piece == last: out.append(f"s_add_u32 s{S_KOFF}, s{S_KOFF}, 8192")
        return out
    tagged = lambda grp, tag: [x + f" ; #{tag}" if x.startswith("buffer_") else x for x in grp]
    stamp()
    for s, nb in ((16, N * 256), (20, N * 256), (24, N * 2)):
        a(f"s_mov_b32 s{s+2}, {nb}")
        a(f"s_mov_b32 s{s+3}, 0x00020000")
    a(f"v_lshrrev_b32 v4, 2, v{V_Q}")
    a(f"v_lshl_add_u32 v4, v{V_G}, 2, v4")
    a(f"v_and_b32 v5, 3, v{V_Q}")
    a("v_lshlrev_b32 v5, 3, v5")
    a("v_lshl_add_u32 v5, v4, 8, v5")
    a(f"v_add_u32 v5, s{S_RING}, v5")
    a("v_and_b32 v4, 7, v4")
    a(f"s_lshl_b32 s43, s{S_W}, 1")
    for j in range(8):
        a(f"s_add_u32 s44, s43, {j}")
        a("s_and_b32 s44, s44, 7")
        a("v_xor_b32 v7, s44, v4")
        a(f"v_lshl_add_u32 v{VA(j)}, v7, 5, v5")
    a("v_lshlrev_b32 v3, 8, v3")
    a(f"v_lshl_add_u32 v3, v{V_G}, 4, v3")
    a(f"s_lshl_b32 s44, s{S_W}, 6")
    a("s_add_u32 s44, s44, s36")
    a("s_mul_i32 s43, s37, 3")
    a("s_add_u32 s44, s44, s43")
    a(f"v_add_u32 v{V_ROW(1)}, s44, v3")
    a(f"v_mov_b32 v3, {OOB}")
    a(f"v_cmp_lt_u32 vcc, 7, v{V_Q}")
    a(f"v_add_u32 v{V_ROW(2)}, s37, v{V_ROW(1)}")
    a(f"v_subrev_u32 v{V_ROW(0)}, s37, v{V_ROW(1)}")
    a(f"v_cndmask_b32 v{V_ROW(0)}, v3, v{V_ROW(0)}, vcc")
    a(f"v_sub_u32 v4, 9, v{V_Q}")
    a(f"s_cmp_eq_u32 s{S_SPLIT}, 1")
    a("s_cselect_b64 vcc, -1, 0")
    a("s_mul_i32 s44, s39, 10")
    a(f"v_cndmask_b32 v5, v4, v{V_Q}, vcc")
    a(f"v_cmp_gt_u32 vcc, 10, v{V_Q}")
    a("v_add_lshl_u32 v4, v5, s44, 1")
    a("v_sub_u32 v5, 15, v5")
    a("v_lshlrev_b32 v5, v5, 1")
    a(f"v_cndmask_b32 v{V_DEG}, v3, v4, vcc")
    a(f"v_cndmask_b32 v{V_HOT}, 0, v5, vcc")
    a(f"v_mul_u32_u24 v{V_SEG}, {EPP*4}, v0")
    a(f"v_add_u32 v{V_SEG}, {SEG_OFF}, v{V_SEG}")
    a(f"v_add_u32 v{V_RED}, s{S_RING}, v{VOFF0}")
    a(f"v_add_u32 v6, {2*RING}, v{VOFF0}")
    a(f"v_lshlrev_b32 v2, 2, v{V_Q}")
    a(f"v_lshl_add_u32 v2, v{V_G}, 8, v2")
    a(f"s_lshl_b32 s44, s{S_W}, 6")
    a(f"s_add_u32 s44, s44, {OFR}")
    a("v_add_u32 v2, s44, v2")
    a(f"s_lshl_b32 s44, s{S_W}, 2")
    a(f"v_add_u32 v5, {OFR+1024}, v{VOFF0}")
    a("v_add_u32 v4, s44, v5")
    a("s_lshl_b32 s48, s48, 8")
    a(f"s_add_u32 s48, s48, {OFR}")
    a("v_lshl_add_u32 v3, v0, 2, s48")
    for pc in range(NEARLY): emit(tagged(dma(pc // 8, pc % 8), f"t{pc//8}"))
    a("@wait vm hq")
    a("s_barrier")
    stamp()

    def hb_reads(qb):
        for ks in range(4): a(f"ds_read_b128 {vr(HB(qb,ks),4)}, v{232+ks}")
        if qb < 4:
            for ks in range(4): a(f"v_add_u32 v{232+ks}, s37, v{232+ks}")
    hb_reads(0); hb_reads(1); hb_reads(2)
    late = [tagged(dma(pc // 8, pc % 8), f"t{pc//8}") for pc in range(NEARLY, 16)]
    a("@wait vm mq")
    NQ = lambda qb: 184 + qb
    def post(qb):
        sq = [f"v_mul_f32 v{NQ(qb)}, v{QD(qb,0)}, v{QD(qb,0)}"] + [f"v_fmac_f32 v{NQ(qb)}, v{QD(qb,0)+i}, v{QD(qb,0)+i}" for i in range(1, 8)]
        if qb: sq.append(f"v_max_f32 v{NQ(0)}, v{NQ(0)}, v{NQ(qb)}")
        cv = [f"v_cvt_pk_bf16_f32 v{HB(qb,0)+c}, v{QD(qb,0)+2*c}, v{QD(qb,0)+2*c+1}" for c in range(4)]
        return cv[:2] + sq[:4] + cv[2:] + sq[4:]
    for qb in range(5):
        if qb + 3 < 5: hb_reads(qb + 3)
        a(f"s_waitcnt lgkmcnt({4*min(3, 4-qb) + (1 if qb >= 3 else 0)})")
        po = post(qb - 1) if qb else []
        for hf in range(2):
            for ks in range(4):
                a(f"{MF} {vr(QD(qb,hf),4)}, {vr(MA(hf,ks),4)}, {vr(HB(qb,ks),4)}, {'0' if ks==0 else vr(QD(qb,hf),4)}")
                if hf * 4 + ks == 0 and qb >= 3: emit(late.pop(0))
                elif hf * 4 + ks >= 1:
                    for _ in range(2):
                        if po: a(po.pop(0))
        assert not po
        if qb >= 1: a(f"ds_write_b128 v{V_RED}, {vr(HB(qb-1,0),4)} offset:{24576 + (qb-1)*1024}")
    stamp()
    for _ in range(2): emit(late.pop(0))
    a("@wait vm tab")
    a(f"ds_write_b32 v2, v{V_TAB}")
    po = post(4)
    emit(po[:8])
    a(f"ds_write_b128 v{V_RED}, {vr(HB(4,0),4)} offset:{24576 + 4*1024}")
    emit(po[8:])
    a(f"ds_write_b32 v4, v{NQ(0)}")
    for g in late: emit(g)
    a("@wait vm t0")
    a("s_waitcnt lgkmcnt(0)")
    a("s_barrier")
    stamp()

    def kread(par, slot, j):
        kb, ks = j // 4, j % 4
        return f"ds_read_b128 {vr(KF(par,kb,ks),4)}, v{KA(ks)} offset:{slot*8192 + kb*4096}"
    def vread(par, slot, j):
        db, hf = j // 2, j % 2
        return f"ds_read_b64_tr_b16 {vr(VF(par,db)+2*hf,2)}, v{VA(db)} offset:{slot*8192 + hf*4096}"
    def qk(spar, kpar, qb, j, slow):
        kb, ks = j // 4, j % 4
        c = (vr(CM(qb), 4) if slow else "0") if ks == 0 else vr(S(spar, kb), 4)
        return f"{MF} {vr(S(spar,kb),4)}, {vr(KF(kpar,kb,ks),4)}, {ar(Q(qb,ks),4)}, {c}"
    def pv(ppar, vpar, qb, j, first=False):
        return f"{MF} {ar(O(j,qb),4)}, {vr(VF(vpar,j),4)}, {vr(P(ppar),4)}, {'0' if first else ar(O(j,qb),4)}"
    def qread(qb): return [f"ds_read_b128 {ar(Q(qb,ks),4)}, v{VOFF0 if ks<2 else 6} offset:{(ks%2)*RING + 24576 + qb*1024}" for ks in range(4)]
    emit(qread(0))
    for j in range(4): a(kread(0, 0, j))
    a(f"ds_read_b128 v[188:191], v5 ; #nq")
    for j in range(4, 8): a(kread(0, 0, j) + " ; #k0")
    rd = qread(1) + qread(2) + qread(3) + qread(4) + [f"ds_read_b32 v{V_TAB}, v3 ; #q"]
    emit(rd[:3]); rd = rd[3:]
    a("@wait lg nq")
    for j in range(8):
        if j == 4: a("@wait lg k0")
        a(qk(0, 0, 0, j, False))
        for _ in range(2):
            if rd: a(rd.pop(0))
    emit(["v_add_f32 v188, v188, v189", "v_add_f32 v190, v190, v191", "v_add_f32 v188, v188, v190", "v_mov_b32 v189, v188"])
    emit(tagged(dma(2, 0), "t2"))
    emit(["v_permlane32_swap_b32 v188, v189", "v_add_f32 v188, v188, v189", "v_mov_b32 v189, v188"])
    emit(tagged(dma(2, 1), "t2"))
    emit(["v_permlane16_swap_b32 v188, v189", "v_add_f32 v188, v188, v189", f"v_mov_b32 v189, {f32(NORM2_MAX)}", "v_cmp_nle_f32 vcc, v188, v189"])
    stamp()
    vl = [vread(0, 0, j) + " ; #v0" for j in range(16)]
    for pc in range(2, 8):
        emit(vl[2*pc-4:2*pc-2])
        emit(tagged(dma(2, pc), "t2"))
    a("@wait lg q")
    a("s_barrier")
    stamp()
    emit(vl[12:])
    a(f"v_and_b32 v7, 0xffff, v{V_TAB}")
    a(f"v_lshl_add_u32 v{V_SEG}, v7, 2, v{V_SEG}")
    a(f"v_lshrrev_b32 v{V_TAB}, 16, v{V_TAB}")
    a(f"s_mov_b32 s{S_CNT}, {(NSTEP-7)//4}")
    a("s_cbranch_vccnz L2_slow")

    def red_write(s, qb, h): return f"ds_write_b128 v{V_RED}, {ar(O(2*s+h,qb),4)} offset:{red_off(s,qb,h)}"
    def step(t, slow, loop_end=False):
        par = t % 2
        nslot = (t + 1) % 4
        sc = [[] for _ in range(80)]; mem = [[] for _ in range(80)]; val = [[] for _ in range(80)]
        last = t == NSTEP - 1
        in_loop = 3 <= t < 7
        adj = NSTEP - 11 if in_loop else 0
        used = [8 if G % 2 == 0 else (4 if G % 4 == 3 else 0) for G in range(80)]
        def cost(x): return 8 if x.startswith(("buffer_", "v_exp", "ds_write_b128")) else 4
        def put(G, x):
            (val if x.startswith("v_") else mem)[G].append(x); used[G] += cost(x)
        def place(items, G, sep=0):
            prev = None
            for x in items:
                grp = x if isinstance(x, list) else [x]
                y = next(z for z in grp if not z.startswith("s_"))
                if prev is not None: G += sep if sep else (1 if prev.startswith("v_") and not y.startswith("v_") else 0)
                while used[G] + cost(y) > 8: G += 1
                put(G, y)
                k = grp.index(y)
                sc[G - 1] += grp[:k]; sc[G + 1] += grp[k + 1:]
                prev = y
            return G
        if not last:
            for j in range(8): put(1 + 2 * j, kread(1 - par, nslot, j) + f" ; #k{t+1+adj}")
            for j in range(16): put(16 + 4 * j + 3, vread(1 - par, nslot, j) + f" ; #v{t+1+adj}")
            sc[0].append("s_waitcnt vmcnt(16)" if in_loop else f"@wait vm t{t+1}")
            sc[62].append("s_waitcnt lgkmcnt(11)" if in_loop else f"@wait lg k{t+1}")
        sc[14].append("s_waitcnt lgkmcnt(7)" if in_loop else f"@wait lg v{t}")
        tg = lambda grp, tag: [x + f" ; #{tag}" if x.startswith("buffer_") else x for x in grp]
        if t == 0:
            place([tg(dma(3, pc), "t3") for pc in range(8)] + [tg(dma(0, pc), "t4") for pc in range(8)], 17, 4)
        elif t + 4 < NSTEP:
            place([tg(dma(t % 4, pc), f"t{t+4+adj}") for pc in range(8)], 17, 8)
        def am_stage(slot):
            out = []
            for pc in range(8):
                hf, ks = pc // 4, pc % 4
                g = [f"s_add_u32 m0, s{S_RING}, {slot*8192 + hf*4096}"] if ks == 0 else []
                g.append(f"buffer_load_dwordx4 v{VOFF0+hf}, s[12:15], s{S_AM} offen offset:{ks*1024} lds ; #am")
                if pc == 7 and slot == 3: g.append(f"s_add_u32 s{S_AM}, s{S_AM}, {MM_OFF-MV_OFF}")
                out.append(g)
            return out
        if t == 2:
            sc[2].append(f"s_mov_b32 s35, {8*NSTEP*8192}")
            for pc, G in enumerate((21, 29, 37, 53)):
                half = 0 if G < 49 else 1
                sc[G - 1].append(f"s_mov_b32 m0, s{S_LIST}")
                put(G, f"buffer_load_dwordx4 v{VOFF0}, s[8:11], s35 offen offset:{pc*1024} lds ; #left")
                sc[G + 1].append(f"s_add_u32 m0, s{S_RING}, {(t%4)*8192 + half*4096}")
        if t == NSTEP - 4:
            place(am_stage(3), 17, 8)
            sc[2].append(f"s_sub_u32 s35, s{S_LIST}, s{S_RING}")
            G = place([f"v_add_u32 v{LA+i}, s35, v{KA(0)+i}" for i in range(12)], 5)
            rl = [f"ds_read_b128 {vr(LK(ks),4)}, v{LA+ks} ; #lk" for ks in range(4)] + [f"ds_read_b64_tr_b16 {ar(LV(j),2)}, v{LA+4+j} ; #lv" for j in range(8)]
            place(rl[:6], G + 1)
            step.rest = rl[6:]
        if t == NSTEP - 3:
            ops = []
            for k in range(4):
                ops += [f"v_sub_u32 v{U+k}, {4*k+1}, v{V_TAB} clamp", f"v_lshl_add_u32 v{U+k}, v{U+k}, 26, v{V_SEG}"]
            step.ent = [f"buffer_load_dwordx4 {vr(ENT(4*k),4)}, v{U+k}, s[12:15], 0 offen offset:{16*k} ; #ent" for k in range(4)]
            G = place(step.rest, 1)
            xl = [f"buffer_load_dwordx4 {vr(XR(b),4)}, v{V_ROW(b)}, s[16:19], 0 offen" for b in range(3)] + [f"buffer_load_ushort v{V_DEG}, v{V_DEG}, s[24:27], 0 offen"]
            G = place(xl + ops[:2] + [step.ent[0]], G + 1)
            G = place([f"v_exp_f32 v{LS+e}, v{LS+e}" for e in range(4)] + [f"v_cvt_pk_bf16_f32 v{LP+c}, v{LS+2*c}, v{LS+2*c+1}" for c in range(2)], G)
            G = place(ops[2:], G)
            tmp = Asm(); wave_scan(tmp, U + 5)
            ops = [f"v_min_u32 v{U+4}, 16, v{V_TAB}", f"v_mov_b32 v{U+5}, v{U+4}"]
            place(ops, G)
            step.scan = [x.strip() for x in tmp.lines]
        if t == NSTEP - 2:
            G = place(step.scan[:4], 1, 4)
            G = place(step.ent[1:], 17)
            G = place(step.scan[4:], G, 4)
            G = place([f"v_readlane_b32 s{S_NB}, v{U+5}, 63", f"v_sub_u32 v{U+5}, v{U+5}, v{U+4}"], G + 1)
            G = place(am_stage(0), G)
            G = place([f"v_add_u32 v{U+6}, s{S_NB}, v0", f"v_lshl_add_u32 v{U+5}, v{U+5}, 2, s{S_LIST}"], G)
        if last:
            G = place([f"v_lshl_add_u32 v{U+6}, v{U+6}, 2, s{S_LIST}", f"v_mov_b32 v{U+7}, 0x7fffff0f", f"ds_write_b32 v{U+6}, v{U+7}"], 1)
            sc[4].append("@wait vm ent")
            for j in range(8):
                r = U + j % 4
                G = place([f"v_sub_u32 v{r}, {j+1}, v{U+4} clamp", f"v_lshl_add_u32 v{r}, v{r}, 18, v{U+5}", f"ds_write_b32 v{r}, v{ENT(j)} offset:{4*j}"], max(G, 5))
            amr = lambda m: [f"ds_read_b128 {ar(AM(m,hf,ks),4)}, v{V_RED} offset:{(24576,0)[m] + hf*4096 + ks*1024}" for hf in range(2) for ks in range(4)]
            for G, x in zip([15, 19, 23, 27, 31, 35, 35, 37], amr(0)): mem[G].append(x)
            for qb, gaps in ((0, [37, 39, 41, 43, 45, 47]), (1, [49, 53, 57, 61, 65, 67]), (2, [69, 71, 73, 75, 77, 79])):
                for G, (s, h) in zip(gaps, [(s, h) for s in range(1, 4) for h in range(2)]): mem[G].append(red_write(s, qb, h) + " ; #send")
            sc[50].append("@wait vm am")
            for G, x in zip([51, 55, 59, 63, 63, 65, 67, 69], amr(1)): mem[G].insert(0, x)
        if loop_end:
            sc[76].append(f"s_sub_u32 s{S_CNT}, s{S_CNT}, 1")
            sc[78].append(f"s_cmp_lg_u32 s{S_CNT}, 0")
        for p in range(5):
            u = 5 * t + p
            sp = u % 2
            qks = [qk(1 - sp, (par + (p == 4)) % 2, (p + 1) % 5, j, slow) for j in range(8)]
            pvs = [pv(1 - sp, (par - (p == 0)) % 2, (p + 4) % 5, j, u <= 5) for j in range(8)]
            if u == 0: pvs = [None] * 8
            if last and p == 4: qks = [None] * 8
            mf = qks[:4] + pvs[:4] + qks[4:] + pvs[4:]
            for e in range(8): val[16 * p + 2 * e].append(f"v_exp_f32 v{S(sp,e//4)+e%4}, v{S(sp,e//4)+e%4}")
            for c in range(4): val[16 * p + 4 * c + 3].append(f"v_cvt_pk_bf16_f32 v{P(sp)+c}, v{S(sp,c//2)+2*(c%2)}, v{S(sp,c//2)+2*(c%2)+1}")
            for i in range(16):
                G = 16 * p + i
                if mf[i]: a(mf[i])
                emit(sc[G] + mem[G] + val[G])

    def variants(tag, body, pre=()):
        emit(pre)
        a(f"s_cmp_ge_u32 s{S_LEFT}, 4")
        a(f"s_cbranch_scc1 {tag}_x")
        for r in range(3):
            a(f"s_cmp_eq_u32 s{S_LEFT}, {r}")
            a(f"s_cbranch_scc1 {tag}_{r}")
        for r in (3, 2, 1, 0):
            if r < 3: a.label(f"{tag}_{r}")
            emit(body(r))
            if r: a(f"s_branch {tag}_x")
        a.label(f"{tag}_x")
    def main_loop(slow):
        tag = "s" if slow else "f"
        if not slow: stamp()
        for t in range(3): step(t, slow)
        a.raw(".p2align 6")
        a.label(f"L2_loop_{tag}")
        for t in range(3, 7): step(t, slow, t == 6)
        a(f"s_cbranch_scc1 L2_loop_{tag}")
        step(NSTEP - 4, slow)
        variants(f"L2_lq{tag}", lambda r: [f"{MF} {vr(LS,4)}, {vr(LK(ks),4)}, {ar(Q(r,ks),4)}, {(vr(CM(r),4) if slow else '0') if ks==0 else vr(LS,4)}" for ks in range(4)],
                 ["@wait lg lk"])
        step(NSTEP - 3, slow)
        variants(f"L2_lv{tag}", lambda r: [f"{MF16} {ar(O(j,r),4)}, {ar(LV(j),2)}, {vr(LP,2)}, {ar(O(j,r),4)}" for j in range(8)], ["@wait lg lv"])
        step(NSTEP - 2, slow)
        step(NSTEP - 1, slow)
        wr = [red_write(s, 3, h) for s in range(1, 4) for h in range(2)]
        for j in range(8):
            a(pv((5 * NSTEP - 1) % 2, (NSTEP - 1) % 2, 4, j))
            if wr: a(wr.pop(0))
        if not slow: a("s_branch L2_epi")
    main_loop(False)

    a.label("L2_slow")
    a("s_waitcnt lgkmcnt(0)")
    for ks in range(4): a(f"v_subrev_u32 v{232+ks}, s{S_RING}, v{KA(ks)}")
    for qb in range(5): a(f"v_mov_b32 v{CM(qb)}, 0xff800000")
    a("s_mov_b32 s35, 0")
    a.label("L2_max")
    for ks in range(4): a(f"buffer_load_dwordx4 {vr(KF(1,0,ks),4)}, v{232+ks}, s[8:11], s35 offen")
    a("s_waitcnt vmcnt(0)")
    for qb in range(5):
        for ks in range(4): a(f"{MF} {vr(160+4*qb,4)}, {vr(KF(1,0,ks),4)}, {ar(Q(qb,ks),4)}, {'0' if ks==0 else vr(160+4*qb,4)}")
    for qb in range(5):
        a(f"v_max3_f32 v{CM(qb)}, v{CM(qb)}, v{160+4*qb}, v{161+4*qb}")
        a(f"v_max3_f32 v{CM(qb)}, v{CM(qb)}, v{162+4*qb}, v{163+4*qb}")
    a("s_add_u32 s35, s35, 4096")
    a(f"s_cmp_lt_u32 s35, {N*256}")
    a("s_cbranch_scc1 L2_max")
    for x in (16, 32):
        a(f"v_xor_b32 v2, {x}, v0")
        a("v_lshlrev_b32 v2, 2, v2")
        for qb in range(5): a(f"ds_bpermute_b32 v{CM(qb)+1}, v2, v{CM(qb)}")
        a("s_waitcnt lgkmcnt(0)")
        for qb in range(5): a(f"v_max_f32 v{CM(qb)}, v{CM(qb)}, v{CM(qb)+1}")
    for qb in range(5):
        a(f"v_sub_f32 v{CM(qb)}, 0, v{CM(qb)}")
        for r in range(1, 4): a(f"v_mov_b32 v{CM(qb)+r}, v{CM(qb)}")
    for j in range(8): a(qk(0, 0, 0, j, True))
    a("s_nop 7")
    main_loop(True)

    a.label("L2_epi")
    stamp()
    R = lambda qb: 32 + qb * 8
    T = lambda k: 72 + k * 8
    AG = lambda j: 96 + 4 * j
    GV = lambda j: 128 + 4 * j
    V_AD, V_OH, V_BA, TMP = 200, 201, 206, 210
    V_OW, V_OR, V_P0, V_P1 = 214, 215, 218, 219
    FLG, SEL = 232, 236
    PK = lambda b: 240 + 4 * b
    GA = lambda k, i: 160 + 8 * k + i
    OH = lambda i: 84 + i
    OB = 92
    BO = lambda b, ks: (b * 4 + ks) * 4
    BP = lambda b, ks: 48 + (b * 4 + ks) * 4
    FO = lambda b, hf: 32 + (b * 2 + hf) * 4
    LD = lambda b: 56 + 4 * b
    def weave(main, groups, first=0):
        n = len(main) - first
        pos = {first + (k * n) // len(groups): g for k, g in enumerate(groups)} if groups else {}
        assert len(pos) == len(groups)
        for x, ins in enumerate(main):
            a(ins)
            emit(pos.get(x, []))
    def acc_reads(qb): return [f"v_accvgpr_read_b32 v{R(qb)+4*h+r}, a{O(h,qb)+r}" for h in range(2) for r in range(4)]
    def pack(d, qb): return [f"v_cvt_pk_bf16_f32 v{d+c}, v{R(qb)+2*c}, v{R(qb)+2*c+1}" for c in range(4)]
    for s in range(1, 4):
        emit([f"s_sub_u32 s41, s{S_W}, {s}", "s_and_b32 s41, s41, 3", "s_lshl_b32 s41, s41, 15", f"v_add_u32 v{2+s}, s41, v{VOFF0}"])
    a("s_waitcnt lgkmcnt(6)")
    a("s_barrier")
    stamp()
    def red_read(k, s, qb):
        for h in range(2): a(f"ds_read_b128 {vr(T(k)+4*h,4)}, v{3+s} offset:{red_off(s+1,qb,h)}")
    for qb in range(3):
        for s in range(3): red_read(3 * qb + s, s, qb)
    for s in range(1, 4):
        for h in range(2): a(red_write(s, 4, h))
    emit(acc_reads(0))
    emit(["s_xor_b32 s42, s2, 8", f"s_mul_i32 s42, s42, {XCH_WG}", f"s_mul_i32 s43, s{S_W}, 2560", f"s_add_u32 s43, s43, {XCH_OFF}",
          "s_add_u32 s42, s42, s43",
          f"s_mul_i32 s44, s2, {XCH_WG}", "s_add_u32 s43, s43, s44",
          f"v_sub_u32 v6, 23, v{V_Q}", "v_lshlrev_b32 v6, 6, v6", f"v_lshl_add_u32 v6, v{V_G}, 4, v6",
          f"v_cmp_gt_u32 vcc, 8, v{V_Q}", "v_subrev_u32 v7, 1024, v6", f"v_mov_b32 v31, {OOB}", "v_cndmask_b32 v7, v31, v7, vcc"])
    emit(acc_reads(1) + acc_reads(2))
    for qb in range(3):
        for s in range(3):
            k = 3 * qb + s
            a(f"s_waitcnt lgkmcnt({min(15, 2*(8-k) + 6)})")
            for i in range(8): a(f"v_add_f32 v{R(qb)+i}, v{R(qb)+i}, v{T(k)+i}")
        emit(pack(PK(qb) - 8 if qb < 2 else PK(0), qb))
        va, off = (7, 0) if qb == 2 else (6, (1 - qb) * 1024)
        a(f"buffer_store_dwordx4 {vr(PK(qb) - 8 if qb < 2 else PK(0),4)}, v{va}, s[12:15], s42 offen offset:{off} sc1")
    a("s_waitcnt lgkmcnt(0)")
    a("s_barrier")
    stamp()
    def build_list(tag):
        t = U + 4 if tag == "a" else TMP
        if tag == "b":
            a(f"v_min_u32 v{t}, 16, v{V_TAB}")
            a(f"v_mov_b32 v{t+1}, v{t}")
            wave_scan(a, t + 1)
            a(f"v_readlane_b32 s{S_NB}, v{t+1}, 63")
            a(f"v_sub_u32 v{t+1}, v{t+1}, v{t}")
            a(f"v_lshl_add_u32 v{t+1}, v{t+1}, 2, s{S_LIST}")
            a(f"v_add_u32 v{t+2}, s{S_NB}, v0")
            a(f"v_lshl_add_u32 v{t+2}, v{t+2}, 2, s{S_LIST}")
            a(f"v_mov_b32 v{t+3}, 0x7fffff0f")
            a(f"ds_write_b32 v{t+2}, v{t+3}")
        for j in range(8 if tag == "a" else 0, 16):
            a(f"v_cmp_lt_u32 vcc, {j}, v{t}")
            a("s_and_b64 exec, exec, vcc")
            a(f"s_cbranch_execz L2_built_{tag}")
            a(f"ds_write_b32 v{t+1}, v{ENT(j)} offset:{4*j}")
        a.label(f"L2_built_{tag}")
        a("s_mov_b64 exec, -1")
        a(f"s_add_u32 s{S_NB}, s{S_NB}, 31")
        a(f"s_lshr_b32 s{S_NB}, s{S_NB}, 5")
        a(f"v_lshl_add_u32 v{V_AD}, v{V_G}, 5, s{S_LIST}")
        a(f"v_lshl_add_u32 v{V_OH}, v{V_G}, 2, s{S_LIST}")
    def addr_reads(k, off):
        return [f"ds_read_b128 {vr(GA(k,0),4)}, v{V_AD} offset:{off}", f"ds_read_b128 {vr(GA(k,4),4)}, v{V_AD} offset:{off+16}"]
    def fire(k, regs, slot):
        g = [[f"s_add_u32 m0, s{S_RING}, {slot*8192 + i*1024}",
              f"v_bitop3_b32 v{GA(regs,i)}, v{GA(regs,i)}, v{9 + i%2}, s48 bitop3:0x28",
              f"buffer_load_dwordx4 v{GA(regs,i)}, s[52:55], 0 offen lds ; #b{k}"] for i in range(8)]
        g[0] = [f"s_cmp_gt_u32 s{S_NB}, {k}", f"s_cselect_b32 s54, {N*256}, 0"] + g[0]
        return g
    build_list("a")
    for k in range(2): emit([x + " ; #ga" for x in addr_reads(k, k * 128)])
    for n, qb in enumerate((3, 4)):
        for s in range(3): red_read(3 * n + s, s, qb)
    emit([f"v_lshrrev_b32 v9, 1, v{V_Q}", f"v_xor_b32 v9, v9, v{V_G}", "v_lshlrev_b32 v9, 5, v9", f"v_and_b32 v10, 1, v{V_Q}",
          "v_lshl_or_b32 v9, v10, 4, v9", "v_xor_b32 v10, 0x80, v9",
          "s_mov_b32 s48, 0xfffffff0", "s_mov_b32 s52, s8", "s_mov_b32 s53, s9", "s_mov_b32 s55, 0x00020000",
          f"s_mul_i32 s41, s{S_W}, 3072", f"s_add_u32 s41, s41, {OFR}", f"v_add_u32 v{V_OW}, s41, v{VOFF0}"])
    a("@wait lg ga")
    emit(acc_reads(3) + acc_reads(4))
    own = []
    for n, qb in enumerate((3, 4)):
        for s in range(3):
            k = 3 * n + s
            own.append(f"s_waitcnt lgkmcnt({2*(5-k)})")
            own += [f"v_add_f32 v{R(qb)+i}, v{R(qb)+i}, v{T(k)+i}" for i in range(8)]
    weave(own, fire(0, 0, 1))
    a("s_barrier")
    stamp()
    GW = lambda p, j: 96 + 32 * p + 4 * j
    OBP = lambda p: (92, 80)[p]
    def loads(k, slot, p, extra=()):
        m = [f"ds_read2_b32 {vr(OH(2*c),2)}, v{V_OH} offset0:{32*k + 16*(c%2) + 4*(c//2)} offset1:{32*k + 16*(c%2) + 4*(c//2) + 8}" for c in range(4)]
        m += list(extra)
        for j in range(16):
            m.append(f"ds_read_b64_tr_b16 {ar(GW(p,j//2)+2*(j%2),2)}, v{VA(j//2)} offset:{slot*8192 + (j%2)*4096}")
            if j == 7: m.append("s_waitcnt lgkmcnt(8)")
            if 8 <= j < 12:
                c = j - 8; o = OBP(p) + c
                m += [f"v_lshlrev_b32 v{o}, v{OH(2*c)}, v{V_HOT}", f"v_lshl_or_b32 v{o}, v11, v{OH(2*c+1)}, v{o}",
                      f"v_pk_ashrrev_i16 v{o}, 15, v{o} op_sel_hi:[0,1]", f"v_and_b32 v{o}, v{V_DEG}, v{o}"]
        return m
    def mults(p, first=False): return [f"{MF} {vr(AG(j),4)}, {ar(GW(p,j),4)}, {vr(OBP(p),4)}, {'0' if first else vr(AG(j),4)}" for j in range(8)]
    def stage(k, slot_next, groups=(), extra=()):
        a("s_waitcnt lgkmcnt(0)")
        mm = mults(k % 2, k == 0)
        emit(mm[:2] + sum(list(groups[:2]), []))
        a(f"@wait vm b{k+1}")
        ld = loads(k + 1, slot_next, (k + 1) % 2, extra)
        main = []
        for x, ins in enumerate(ld):
            main.append(ins)
            if x % 4 == 1 and len(mm) > 2: main.append(mm.pop(2))
        assert len(mm) == 2
        weave(main, list(groups[2:]))
    pre = [f"v_add_u32 v{V_OR}, {OFR}, v{VOFF0}"] + addr_reads(2, 2 * 128) + addr_reads(3, 3 * 128)
    pre += [f"v_lshlrev_b32 v11, 16, v{V_HOT}", f"v_lshl_or_b32 v{V_DEG}, v{V_DEG}, 16, v{V_DEG}",
            f"v_cmp_eq_u32 vcc, 0, v{V_G}", f"v_mov_b32 v{SEL}, 0x3f80", f"v_mov_b32 v{SEL+1}, 0", f"v_mov_b32 v{SEL+2}, 0", f"v_mov_b32 v{SEL+3}, 0",
            f"v_cndmask_b32 v{SEL}, 0, v{SEL}, vcc",
            "s_lshl_b32 s57, s2, 7", f"s_lshl_b32 s50, s{S_W}, 2", f"s_add_u32 s50, s50, {FLG_OFF}", "s_add_u32 s57, s57, s50",
            "s_xor_b32 s51, s57, 1024", "s_mov_b32 s49, 0x400000", "v_mov_b32 v2, 1"]
    pre2 = []
    for b in range(3):
        t = TMP
        pre2 += [f"v_add_u32 v{t}, {16*b-8}, v{V_Q}"] + ([f"v_max_i32 v{t}, 0, v{t}"] if b == 0 else [])
        pre2 += [f"v_mul_u32_u24 v{t+1}, 26, v{t}", f"v_lshrrev_b32 v{t+1}, 8, v{t+1}",
                 f"v_mul_u32_u24 v{t+2}, 10, v{t+1}", f"v_sub_u32 v{t}, v{t}, v{t+2}",
                 f"v_lshl_add_u32 v{t}, v{V_G}, 4, v{t}", f"v_lshlrev_b32 v{t}, 4, v{t}",
                 f"v_lshl_add_u32 v{V_BA+b}, v{t+1}, 15, v{t}"]
    pre2 += [f"v_add_u32 v{V_P1}, 8, v{V_Q}", f"v_lshlrev_b32 v{V_P1}, 6, v{V_P1}", f"v_lshl_add_u32 v{V_P1}, v{V_G}, 4, v{V_P1}",
             f"v_cmp_lt_u32 vcc, 7, v{V_Q}", f"v_subrev_u32 v{V_P0}, 1024, v{V_P1}", "s_mov_b32 s58, 0xffff0000",
             f"v_cndmask_b32 v{V_P0}, v31, v{V_P0}, vcc"]
    for s in range(4):
        pre2 += [f"s_add_u32 s41, s{S_W}, {s}", "s_and_b32 s41, s41, 3", "s_lshl_b32 s41, s41, 10", f"v_add_u32 v{3+s}, s41, v{V_RED}"]
    weave(pre, fire(1, 1, 2))
    a("s_waitcnt vmcnt(16)")
    a("s_mov_b64 exec, 1")
    a("buffer_store_dword v2, off, s[12:15], s57 sc1")
    a("s_mov_b64 exec, -1")
    a("s_waitcnt lgkmcnt(0)")
    weave(pre2, fire(2, 2, 3))
    flag = f"buffer_load_dword v{FLG}, off, s[12:15], s51 sc1"
    if PEARLY: a(flag + " ; #flag")
    a("@wait vm b0")
    emit(loads(0, 1, 0, addr_reads(0, 4 * 128) + addr_reads(1, 5 * 128)))
    stamp()
    FD = lambda b, hf: 160 + (b * 2 + hf) * 4
    PX = lambda b: 68 + 4 * b if False else (32, 36, 40)[b]
    xun = [[f"v_lshlrev_b32 v{FD(b,0)+2*c}, 16, v{XR(b)+c}", f"v_and_b32 v{FD(b,0)+2*c+1}, s58, v{XR(b)+c}"] for b in range(3) for c in range(4)]
    pl = [f"buffer_load_dwordx4 {vr(PX(b),4)}, v{V_P0 if b==0 else V_P1}, s[12:15], s43 offen offset:{(b//2)*1024} sc1 ; #p" for b in range(3)]
    def poll():
        a("@wait vm flag")
        a.label("L2_poll")
        a(f"v_readfirstlane_b32 s50, v{FLG}")
        a("s_cmp_eq_u32 s50, 1")
        a("s_cbranch_scc1 L2_got")
        a(flag + " ; #offpath")
        a("s_sub_u32 s49, s49, 1")
        a("s_waitcnt vmcnt(0)")
        a("s_cbranch_scc0 L2_poll")
        a.label("L2_got")
        emit(pl)
    merge = []
    for b in range(3):
        for c in range(4):
            merge += [[f"v_lshlrev_b32 v44, 16, v{PX(b)+c}", f"v_and_b32 v45, s58, v{PX(b)+c}",
                       f"v_add_f32 v44, v44, v{R(2+b)+2*c}", f"v_add_f32 v45, v45, v{R(2+b)+2*c+1}",
                       f"v_cvt_pk_bf16_f32 v{PK(b)+c}, v44, v45"] + ([f"ds_write_b128 v{V_OW}, {vr(PK(b),4)} offset:{b*1024}"] if c == 3 else [])]
    stage(0, 2, fire(3, 3, 0))
    if PEARLY: poll()
    else: a(flag + " ; #flag")
    stage(1, 3, fire(4, 0, 1))
    stage(2, 0, fire(5, 1, 2))
    stamp()
    if not PEARLY: poll()
    stamp()
    stage(3, 1, xun)
    if PEARLY:
        a("@wait vm p")
        emit(sum(merge, []))
    stage(4, 2)
    a("s_waitcnt lgkmcnt(0)")
    emit(mults(1))
    a(f"s_mov_b32 s{S_I}, 6")
    a(f"v_add_u32 v{V_AD}, {6*128}, v{V_AD}")
    a(f"v_add_u32 v{V_OH}, {6*128}, v{V_OH}")
    a(f"v_cmp_lt_u32 vcc, 16, v{V_TAB}")
    a.label("L2_more")
    a(f"s_cmp_ge_u32 s{S_I}, s{S_NB}")
    a("s_cbranch_scc1 L2_aggdone")
    emit(addr_reads(3, 0))
    a("s_waitcnt lgkmcnt(0)")
    for g in fire(0, 3, 0): emit(g)
    a("s_waitcnt vmcnt(0)")
    emit(loads(0, 0, 0))
    a("s_waitcnt lgkmcnt(0)")
    emit(mults(0))
    a(f"s_add_u32 s{S_I}, s{S_I}, 1")
    a(f"v_add_u32 v{V_AD}, 128, v{V_AD}")
    a(f"v_add_u32 v{V_OH}, 128, v{V_OH}")
    a("s_branch L2_more")
    a.label("L2_aggdone")
    a("s_nop 2")
    a("s_cbranch_vccz L2_aggend")
    a(f"v_subrev_u32 v{V_TAB}, 16, v{V_TAB}")
    a(f"v_max_i32 v{V_TAB}, 0, v{V_TAB}")
    a(f"v_add_u32 v{V_SEG}, 64, v{V_SEG}")
    for j in range(4): a(f"buffer_load_dwordx4 {vr(ENT(4*j),4)}, v{V_SEG}, s[12:15], 0 offen offset:{16*j}")
    a("s_waitcnt vmcnt(0)")
    build_list("b")
    a(f"s_mov_b32 s{S_I}, 0")
    a(f"v_cmp_lt_u32 vcc, 16, v{V_TAB}")
    a("s_branch L2_more")
    a.label("L2_aggend")
    stamp()
    for s in range(4):
        for c in range(4): a(f"v_cvt_pk_bf16_f32 v{GV(s)+c}, v{AG(2*s)+2*c}, v{AG(2*s)+2*c+1}")
        a(f"ds_write_b128 v{3+s}, {vr(GV(s),4)}")
    if not PEARLY:
        a("s_waitcnt vmcnt(0)")
        emit(sum(merge, []))
    a("s_waitcnt lgkmcnt(0)")
    a("s_barrier")
    BA = lambda b, ks: 96 + (b * 4 + ks) * 4
    for b in range(3):
        for ks in range(4): a(f"ds_read_b128 {ar(BO(b,ks),4)}, v{V_OR} offset:{ks*3072 + b*1024}")
        for ks in range(4): a(f"ds_read_b128 {vr(BA(b,ks),4)}, v{V_BA+b} offset:{ks*1024}")
    stamp()
    def finish(b):
        out = [f"v_fmac_f32 v{FD(b,0)+i}, v{FO(b,0)+i}, v{LD(b)}" for i in range(8)]
        out += [f"v_cvt_pk_bf16_f32 v{PK(b)+c}, v{FD(b,0)+2*c}, v{FD(b,0)+2*c+1}" for c in range(4)]
        out += [f"buffer_store_dwordx4 {vr(PK(b),4)}, v{V_ROW(b)}, s[20:23], 0 offen{ST2}"]
        return out
    fz = []
    for b in range(3):
        pj = [f"s_waitcnt lgkmcnt({min(15, 20-8*b)})", f"{MF} {vr(LD(b),4)}, {vr(SEL,4)}, {ar(BO(b,0),4)}, 0"]
        pj += [f"{MF} {vr(FO(b,hf),4)}, {ar(AM(0,hf,ks),4)}, {ar(BO(b,ks),4)}, {'0' if ks==0 else vr(FO(b,hf),4)}" for hf in range(2) for ks in range(4)]
        pj += [f"s_waitcnt lgkmcnt({min(15, 16-8*b)})"]
        pj += [f"{MF} {vr(FD(b,hf),4)}, {ar(AM(1,hf,ks),4)}, {vr(BA(b,ks),4)}, {vr(FD(b,hf),4)}" for hf in range(2) for ks in range(4)]
        for i, x in enumerate(pj):
            a(x)
            if i == 11: a(f"v_rcp_f32 v{LD(b)}, v{LD(b)}")
            elif i >= 3:
                for _ in range(2):
                    if fz: a(fz.pop(0))
        assert not fz
        fz = finish(b)
    emit(fz)
    if stamps:
        a("s_waitcnt vmcnt(0)")
        stamp()
        a("s_memrealtime s[60:61]")
        a("s_waitcnt lgkmcnt(0)")
        a(f"s_lshl_b32 s40, s{S_TILE}, 1")
        a(f"s_add_u32 s40, s40, s{S_SPLIT}")
        a("s_lshl_b32 s40, s40, 2")
        a(f"s_add_u32 s40, s40, s{S_W}")
        a("s_lshl_b32 s40, s40, 6")
        srd(a, 8, 4, 1 << 20, ST_OFF)
        a("s_mov_b64 exec, 1")
        for i, r in enumerate([62, 60] + [64 + 2 * k for k in range(nst[0])]):
            a(f"v_mov_b32 v1, s{r}")
            a(f"buffer_store_dword v1, off, s[8:11], s40 offset:{4*i}")
    a.label("L2_end")
    a("s_endpgm")
def desc_k2(a):
    kernel_desc(a, NAME2, 512, 256, 96)
K2_LAUNCH = f"; @launch kernel={NAME2} grid=({NWG},1,1) block=(256,1,1) lds={LDS2}"
```

```python
from asmlib import *
from layout import *
MF = "v_mfma_f32_16x16x32_bf16"
def dpp(op, d, s0, s1, ctl, rm="0xf", bc=False):
    return f"{op}_dpp v{d}, v{s0}, v{s1} {ctl} row_mask:{rm} bank_mask:0xf" + (" bound_ctrl:1" if bc else "")
def wave_scan(a, v):
    for k in (1, 2, 4, 8): a(dpp("v_add_u32", v, v, v, f"row_shr:{k}", bc=True))
    a(dpp("v_add_u32", v, v, v, "row_bcast:15", "0xa"))
    a(dpp("v_add_u32", v, v, v, "row_bcast:31", "0xc"))
def row_sum(a, vs):
    for k in (8, 4, 2, 1):
        for v in vs: a(dpp("v_add_f32", v, v, v, f"row_ror:{k}"))

def gen_helper(a, S_TAG, WS_BYTES):
    a.label("LH")
    a(f"s_load_dwordx4 s[8:11], s[0:1], {A_SRC}")
    a(f"s_load_dwordx2 s[16:17], s[0:1], {A_WMSG}")
    a(f"s_load_dwordx4 s[20:23], s[0:1], {A_WV}")
    a("v_mov_b32 v63, v0")
    a("v_lshrrev_b32 v1, 6, v0")
    a("v_and_b32 v0, 63, v0")
    a("s_sub_u32 s6, s2, 250")
    a("v_readfirstlane_b32 s3, v1")
    a("v_and_b32 v2, 15, v0")
    a("v_lshrrev_b32 v3, 4, v0")
    a("v_lshrrev_b32 v6, 1, v2")
    a("v_xor_b32 v6, v6, v3")
    a("v_lshlrev_b32 v6, 5, v6")
    a("v_and_b32 v7, 1, v2")
    a("v_lshl_or_b32 v6, v7, 4, v6")
    a("v_lshl_or_b32 v56, v3, 8, v6")
    a("v_xor_b32 v57, 0x80, v56")
    a("s_lshl_b32 s34, s3, 13")
    a("s_add_u32 s43, s34, 8192")
    a("s_add_u32 s35, s34, 4096")
    a("v_lshrrev_b32 v6, 1, v3")
    a("v_and_b32 v7, 1, v3")
    a("v_lshlrev_b32 v7, 4, v7")
    a("v_lshl_add_u32 v7, v2, 8, v7")
    a("v_add_u32 v7, s43, v7")
    a("v_and_b32 v4, 7, v2")
    for ks in range(4):
        a(f"v_add_u32 v5, {2*ks}, v6")
        a("v_xor_b32 v5, v5, v4")
        a(f"v_lshl_add_u32 v{52+ks}, v5, 5, v7")
    a("v_lshrrev_b32 v5, 3, v2")
    a("v_and_b32 v6, 3, v2")
    a("v_lshl_add_u32 v5, v5, 2, v6")
    a("v_bfe_u32 v6, v2, 2, 1")
    a("v_lshlrev_b32 v6, 12, v6")
    a("v_lshl_add_u32 v5, v5, 4, v6")
    a("v_lshl_add_u32 v5, v3, 8, v5")
    a("v_lshrrev_b32 v6, 2, v0")
    a("v_lshlrev_b32 v6, 8, v6")
    a("v_and_b32 v7, 3, v0")
    a("v_lshl_add_u32 v58, v7, 3, v6")
    a("s_lshl_b32 s36, s3, 10")
    a("v_lshl_add_u32 v59, v0, 3, s36")
    a("v_lshlrev_b32 v7, 8, v3")
    a("v_lshl_add_u32 v60, v2, 3, v7")
    a("s_lshl_b32 s36, s3, 8")
    a("v_lshl_add_u32 v61, v0, 2, s36")
    a("v_lshlrev_b32 v62, 2, v2")
    a("v_add_u32 v62, 4096, v62")
    a("s_cmp_eq_u32 s3, 0")
    a("s_cselect_b64 s[46:47], -1, 0")
    a("v_cmp_eq_u32 vcc, 0, v3")
    a("s_and_b64 s[46:47], s[46:47], vcc")
    a(f"s_mov_b32 s40, {f32(CH)}")
    a(f"s_mov_b32 s41, {f32(RS128)}")
    a("s_waitcnt lgkmcnt(0)")
    a(f"s_add_u32 s48, s4, {EPO_OFF}")
    a("s_addc_u32 s49, s5, 0")
    a(f"s_load_dword s{S_TAG}, s[48:49], 0")
    srd(a, 12, 4, WS_BYTES)
    srd(a, 24, 22, 32768)
    a("s_mov_b32 s30, 32768")
    a("s_mov_b32 s31, 0x00020000")
    a("s_mov_b32 s7, s6")
    BIG = lambda t, ks: 64 + (t * 4 + ks) * 4
    SM = lambda ks: 16 + ks * 4
    DD = lambda t: 40 + 4 * t
    a.label("LH_task")
    a("s_cmp_lt_u32 s7, 8")
    a("s_cselect_b32 s28, s20, s16")
    a("s_cselect_b32 s29, s21, s17")
    a(f"s_mov_b32 s33, {MM_OFF}")
    a(f"s_cselect_b32 s33, {MV_OFF}, s33")
    a("s_and_b32 s37, s7, 7")
    a("s_lshl_b32 s38, s37, 5")
    a("s_add_u32 s38, s38, s34")
    a("s_add_u32 s39, s38, 4096")
    a("buffer_load_dwordx2 v[8:9], v58, s[24:27], s38 offen")
    a("buffer_load_dwordx2 v[10:11], v58, s[24:27], s39 offen")
    for half in range(2):
        a(f"s_add_u32 m0, s43, {half*4096}")
        for pc in range(4): a(f"buffer_load_dwordx4 v{56+pc%2}, s[28:31], s{34+half} offen offset:{pc*1024} lds")
    a("s_lshr_b32 s38, s37, 1")
    a("s_lshl_b32 s38, s38, 13")
    a("s_add_u32 s33, s33, s38")
    a("s_and_b32 s38, s37, 1")
    a("s_lshl_b32 s38, s38, 7")
    a("s_add_u32 s33, s33, s38")
    a("s_lshl_b32 s38, s3, 10")
    a("s_add_u32 s33, s33, s38")
    a("s_waitcnt vmcnt(8)")
    a("ds_write_b64 v59, v[8:9]")
    a("ds_write_b64 v59, v[10:11] offset:512")
    a("s_waitcnt vmcnt(0) lgkmcnt(0)")
    for t in range(2):
        for ks in range(4): a(f"ds_read_b128 {vr(BIG(t,ks),4)}, v{52+ks} offset:{t*4096}")
    a("s_barrier")
    for ks in range(4):
        for h in range(2): a(f"ds_read_b64_tr_b16 {vr(SM(ks)+2*h,2)}, v60 offset:{ks*1024 + h*128}")
    a("s_waitcnt lgkmcnt(0)")
    for t in range(2):
        for ks in range(4): a(f"{MF} {vr(DD(t),4)}, {vr(BIG(t,ks),4)}, {vr(SM(ks),4)}, {'0' if ks==0 else vr(DD(t),4)}")
    a(f"v_add_f32 v8, v{DD(0)}, v{DD(0)+1}")
    for i in range(2, 8): a(f"v_add_f32 v8, v8, v{DD(0)+i}")
    a("v_mul_f32 v8, s41, v8")
    a(f"v_sub_f32 v9, v8, v{DD(0)}")
    a("v_cndmask_b32 v8, v8, v9, s[46:47]")
    a("ds_write_b32 v61, v8 offset:4096")
    a("s_waitcnt lgkmcnt(0)")
    a("s_barrier")
    for i in range(8): a(f"ds_read2_b32 {vr(16+2*i,2)}, v62 offset0:{32*i} offset1:{32*i+16}")
    a("s_waitcnt lgkmcnt(0)")
    for i in range(1, 16): a(f"v_add_f32 v16, v16, v{16+i}")
    for i in range(8): a(f"v_fma_f32 v{DD(0)+i}, -v16, s40, v{DD(0)+i}")
    a(f"v_cndmask_b32 v{DD(0)}, v{DD(0)}, 0, s[46:47]")
    for c in range(4): a(f"v_cvt_pk_bf16_f32 v{12+c}, v{DD(0)+2*c}, v{DD(0)+2*c+1}")
    a("buffer_store_dwordx4 v[12:15], v5, s[12:15], s33 offen sc1")
    a("s_add_u32 s7, s7, 6")
    a("s_cmp_lt_u32 s7, 16")
    a("s_barrier")
    a("s_cbranch_scc1 LH_task")
    NR, NI = 35, 3
    assert NR * NI * 256 == EPP
    STG = 8192
    srd(a, 16, 10, E * 4); srd(a, 20, 8, E * 4)
    a("v_lshlrev_b32 v1, 4, v63")
    for i in range(4): a(f"v_mov_b32 v{4+i}, 0")
    a("ds_write_b128 v1, v[4:7]")
    a(f"s_mul_i32 s33, s6, {EPP}")
    a("v_lshlrev_b32 v2, 2, v63")
    a("s_mov_b32 s40, 52429")
    a("v_mov_b32 v8, 1")
    a("v_lshrrev_b32 v3, 6, v63")
    a("v_lshlrev_b32 v3, 2, v3")
    DST = lambda i: 64 + i; SRC = lambda i: 104 + i; BK = lambda i: 144 + i
    def edge_loop(tag, body, with_src):
        a("s_mov_b32 s36, s33")
        a(f"s_mov_b32 s37, {NI}")
        a.label(tag)
        a("s_lshl_b32 s38, s36, 2")
        for i in range(NR):
            if i and i % 4 == 0: a("s_add_u32 s38, s38, 4096")
            a(f"buffer_load_dword v{DST(i)}, v2, s[16:19], s38 offen offset:{(i%4)*1024}")
            if with_src:
                if i == 28: a("s_waitcnt vmcnt(40)")
                a(f"buffer_load_dword v{SRC(i)}, v2, s[20:23], s38 offen offset:{(i%4)*1024}")
        a("v_add_u32 v9, s36, v63")
        a("s_waitcnt vmcnt(0)")
        body()
        a(f"s_add_u32 s36, s36, {NR*256}")
        a("s_sub_u32 s37, s37, 1")
        a("s_cmp_lg_u32 s37, 0")
        a(f"s_cbranch_scc1 {tag}")
    def bucket(i):
        a(f"v_mul_u32_u24 v{BK(i)}, s40, v{DST(i)}")
        a(f"v_lshrrev_b32 v{BK(i)}, 19, v{BK(i)}")
        a(f"v_cmp_gt_u32 vcc, {E - 256*i}, v9")
    def count():
        for i in range(NR):
            bucket(i)
            a(f"v_cndmask_b32 v10, v11, v{BK(i)}, vcc")
            a("v_lshlrev_b32 v10, 2, v10")
            a("ds_add_u32 v10, v8")
    a("v_mov_b32 v11, 1023")
    a("s_waitcnt lgkmcnt(0)")
    a("s_barrier")
    edge_loop("LH_count", count, False)
    a("s_waitcnt lgkmcnt(0)")
    a("s_barrier")
    a("ds_read_b128 v[4:7], v1")
    a("s_waitcnt lgkmcnt(0)")
    a("v_add_u32 v12, v4, v5")
    a("v_add_u32 v13, v12, v6")
    a("v_add_u32 v14, v13, v7")
    a("v_mov_b32 v15, v14")
    wave_scan(a, 15)
    a("v_cmp_eq_u32 vcc, 63, v0")
    a("s_and_saveexec_b64 s[44:45], vcc")
    a("ds_write_b32 v3, v15 offset:4096")
    a("s_mov_b64 exec, -1")
    a("v_mov_b32 v9, 0")
    a("v_sub_u32 v15, v15, v14")
    a("s_waitcnt lgkmcnt(0)")
    a("s_barrier")
    a("ds_read_b128 v[16:19], v9 offset:4096")
    a("s_waitcnt lgkmcnt(0)")
    for w in range(3):
        a(f"s_cmp_gt_u32 s3, {w}")
        a("s_cselect_b32 s39, 1, 0")
        a(f"v_mad_u32_u24 v15, v{16+w}, s39, v15")
    a("v_mov_b32 v16, v15")
    a("v_add_u32 v17, v15, v4")
    a("v_add_u32 v18, v15, v12")
    a("v_add_u32 v19, v15, v13")
    a("ds_write_b128 v1, v[16:19]")
    a("v_lshlrev_b32 v9, 7, v63")
    a("v_mov_b32 v10, 0x7fffff00")
    a("v_cmp_gt_u32 vcc, 250, v63")
    a("s_lshl_b32 s39, s6, 2")
    a(f"s_add_u32 s39, s39, {TAB_OFF}")
    a("v_cndmask_b32 v9, v10, v9, vcc")
    for i in range(4):
        a(f"v_lshl_or_b32 v{20+i}, v{4+i}, 16, v{16+i}")
        a(f"buffer_store_dword v{20+i}, v9, s[12:15], s39 offen offset:{32*i} sc1")
    a("s_waitcnt lgkmcnt(0)")
    a("s_barrier")
    def scatter():
        for i in range(NR):
            bucket(i)
            a(f"v_mul_u32_u24 v10, 10, v{BK(i)}")
            a(f"v_sub_u32 v{DST(i)}, v{DST(i)}, v10")
            a(f"v_cndmask_b32 v10, v11, v{BK(i)}, vcc")
            a("v_lshlrev_b32 v10, 2, v10")
            a(f"ds_add_rtn_u32 v{BK(i)}, v10, v8")
            a(f"v_and_b32 v10, 7, v{SRC(i)}")
            a(f"v_lshl_or_b32 v{DST(i)}, v10, 5, v{DST(i)}")
            a(f"v_lshl_or_b32 v{DST(i)}, v{SRC(i)}, 8, v{DST(i)}")
        a("s_waitcnt lgkmcnt(0)")
        for i in range(NR):
            a(f"v_lshlrev_b32 v{BK(i)}, 2, v{BK(i)}")
            a(f"ds_write_b32 v{BK(i)}, v{DST(i)} offset:{STG}")
    edge_loop("LH_scatter", scatter, True)
    a("s_waitcnt lgkmcnt(0)")
    a("s_barrier")
    a(f"s_mul_i32 s38, s6, {EPP*4}")
    a(f"s_add_u32 s38, s38, {SEG_OFF}")
    nq = EPP // 4
    a("v_mov_b32 v10, 0x7fffff00")
    a(f"v_cmp_gt_u32 vcc, {nq % 256}, v63")
    a("v_add_u32 v2, 65536, v1")
    a("v_cndmask_b32 v9, v10, v1, vcc")
    for i in range(nq // 256 + 1):
        off = STG + 4096 * i
        a(f"ds_read_b128 {vr(64+4*i,4)}, v{1 if off < 65536 else 2} offset:{off % 65536}")
    a("s_waitcnt lgkmcnt(0)")
    for i in range(nq // 256 + 1):
        a(f"buffer_store_dwordx4 {vr(64+4*i,4)}, v{1 if i < nq//256 else 9}, s[12:15], s38 offen sc1")
        a("s_add_u32 s38, s38, 4096")
    a("s_lshl_b32 s38, s2, 7")
    a("s_lshl_b32 s39, s3, 2")
    a("s_add_u32 s38, s38, s39")
    a(f"s_add_u32 s38, s38, {FLH_OFF}")
    a(f"s_add_u32 s{S_TAG}, s{S_TAG}, 0x9e3779b1")
    a(f"v_mov_b32 v1, s{S_TAG}")
    a("s_waitcnt vmcnt(0)")
    a("s_mov_b64 exec, 1")
    a("buffer_store_dword v1, off, s[12:15], s38 sc1")
    a("s_endpgm")
```

```python
from asmlib import *
from layout import *
from helper import wave_scan, row_sum, gen_helper
NAME2 = "gather_scatter__hybrid_graph_tf_graphgps__graph_kernel"
NWG = 256
NSTEP = 39
RING = 32768
SPARE = 4 * RING
LIST_B = 1088 * 4
LREG = SPARE + 4 * LIST_B
OFR = SPARE + 20480
LDS2 = OFR + 12288
ST2 = ' nt'
SKIP = ()
PREFETCH = 1
PEARLY = 0
WS_BYTES = XCH_OFF + NWG * XCH_WG
MF = "v_mfma_f32_16x16x32_bf16"
MF16 = "v_mfma_f32_16x16x16_bf16"
OOB = "0x7fffff00"
NORM2_MAX = 48.0
O = lambda j, qb: (qb * 8 + j) * 4
Q = lambda qb, ks: 160 + (qb * 4 + ks) * 4
AM = lambda m, hf, ks: 160 + ((m * 2 + hf) * 4 + ks) * 4
KF = lambda par, kb, ks: 32 + par * 32 + (kb * 4 + ks) * 4
VF = lambda par, j: 96 + par * 32 + j * 4
S = lambda par, kb: 160 + par * 8 + kb * 4
P = lambda par: 176 + par * 4
KA = lambda ks: 8 + ks
VA = lambda j: 12 + j
VOFF0, VOFF1 = 20, 21
V_TAB, V_L4, V_Q, V_G = 22, 23, 24, 25
V_DEG, V_HOT, V_RED = 26, 27, 1
V_ROW = lambda b: 28 + b
ENT = lambda j: 184 + j
CM = lambda qb: 200 + qb * 4
XR = lambda b: 220 + b * 4
LK = lambda ks: 184 + 4 * ks
LV = lambda j: 240 + 2 * j
LS, LP, LA = 236, 240, 244
U = 244
S_W, S_TILE, S_SPLIT, S_RING, S_KOFF, S_CNT, S_LEFT = 3, 28, 29, 30, 31, 33, 34
S_AM, S_LIST, S_NB, S_I, S_PART, S_TAG, S_KEY = 40, 45, 46, 47, 56, 59, 38
S_C = lambda p: 84 + p
S_S = lambda p: 90 + p
PL = ' sc1'
ST_OFF = 0x1000000
def red_off(s, qb, h):
    k = qb * 6 + (s - 1) * 2 + h
    return ((8 + k) % 32) * 1024

def gen_k2(a, stamps=False):
    nst = [0]
    seq = [0]
    def stamp():
        seq[0] += 1
        if not stamps or (SKIP and seq[0] in SKIP): return
        i = nst[0]; nst[0] += 1
        a(f"s_memtime s[{64+2*i}:{65+2*i}]")
    def emit(xs):
        for x in xs: a(x)
    kernel_begin(a, NAME2)
    a(f"s_cmp_ge_u32 s2, {NWG}")
    a("s_cbranch_scc1 L2_end")
    a(f"s_load_dwordx2 s[4:5], s[0:1], {A_WS}")
    a("s_cmp_ge_u32 s2, 250")
    a("s_cbranch_scc1 LH")
    a(f"s_load_dwordx2 s[16:17], s[0:1], {A_X}")
    a(f"s_load_dwordx4 s[60:63], s[0:1], {A_WQ}")
    a(f"s_load_dwordx2 s[20:21], s[0:1], {A_OUT}")
    a(f"s_load_dwordx2 s[24:25], s[0:1], {A_DEG}")
    if stamps: a("s_memrealtime s[96:97]")
    stamp()
    if PREFETCH:
        a("s_getpc_b64 s[42:43]")
        a.label("L2_pc")
        a("s_lshr_b32 s35, s2, 3")
        a("v_and_b32 v2, 7, v0")
        a("v_lshl_add_u32 v2, s35, 3, v2")
        a("v_lshlrev_b32 v2, 7, v2")
        a("v_mov_b32 v3, L2_slow-L2_pc")
        a("v_cmp_gt_u32 vcc, v3, v2")
        a("v_add_u32 v3, L2_epi-L2_slow, v2")
        a("v_cndmask_b32 v2, v3, v2, vcc")
        a("v_min_u32 v2, LH-L2_pc, v2")
        a("v_mov_b32 v3, s43")
        a("v_add_co_u32 v2, vcc, s42, v2")
        a("v_addc_co_u32 v3, vcc, 0, v3, vcc")
        a("global_load_dword v255, v[2:3], off")
    a("v_lshrrev_b32 v1, 6, v0")
    a("v_and_b32 v0, 63, v0")
    a(f"s_lshr_b32 s{S_TILE}, s2, 4")
    a(f"v_readfirstlane_b32 s{S_W}, v1")
    a(f"s_lshl_b32 s{S_TILE}, s{S_TILE}, 3")
    a("s_and_b32 s35, s2, 7")
    a(f"s_add_u32 s{S_TILE}, s{S_TILE}, s35")
    a(f"s_bfe_u32 s{S_SPLIT}, s2, 0x10003")
    a(f"s_xor_b32 s{S_PART}, s2, 8")
    a("s_sub_u32 s35, s2, 242")
    a("s_cmp_lt_u32 s35, 6")
    a("s_cbranch_scc0 L2_ids")
    a(f"s_and_b32 s{S_SPLIT}, s2, 1")
    a(f"s_xor_b32 s{S_PART}, s2, 1")
    a("s_lshr_b32 s35, s35, 1")
    a(f"s_add_u32 s{S_TILE}, s35, 122")
    a.label("L2_ids")
    a(f"v_and_b32 v{V_Q}, 15, v0")
    a(f"v_lshrrev_b32 v{V_G}, 4, v0")
    a(f"v_lshlrev_b32 v{VOFF0}, 4, v0")
    a(f"v_add_u32 v{VOFF1}, 4096, v{VOFF0}")
    a(f"s_lshl_b32 s{S_RING}, s{S_W}, 15")
    a(f"s_mul_i32 s36, s{S_TILE}, {80*256}")
    a(f"s_mul_i32 s35, s{S_SPLIT}, 10")
    a(f"s_add_u32 s35, s35, s{S_W}")
    SO = lambda i: 84 + i
    for i in range(5):
        a(f"s_add_u32 s{SO(i)}, s35, {4*i}")
        a(f"s_sub_u32 s41, s{SO(i)}, 20")
        a(f"s_cselect_b32 s{SO(i)}, s{SO(i)}, s41")
        a(f"s_lshl_b32 s{SO(i)}, s{SO(i)}, 10")
    a(f"v_lshrrev_b32 v2, 1, v{V_Q}")
    a(f"v_xor_b32 v2, v2, v{V_G}")
    a("v_lshlrev_b32 v2, 5, v2")
    a(f"v_and_b32 v3, 1, v{V_Q}")
    a("v_lshl_or_b32 v2, v3, 4, v2")
    a(f"v_lshl_or_b32 v2, v{V_G}, 8, v2")
    a("v_xor_b32 v3, 0x80, v2")
    a(f"s_and_b32 s41, s{S_W}, 1")
    a("s_lshl_b32 s41, s41, 7")
    a("v_xor_b32 v4, s41, v2")
    a(f"s_lshl_b32 s42, s{S_W}, 13")
    a("s_add_u32 s43, s42, 4096")
    a("s_waitcnt lgkmcnt(0)")
    stamp()
    a(f"s_mov_b32 s18, {N*256}")
    a("s_mov_b32 s19, 0x00020000")
    W = lambda i: 32 + 4 * i
    for i in range(5):
        a(f"s_add_u32 s41, s36, s{SO(i)}")
        a(f"buffer_load_dwordx4 {vr(W(i),4)}, v{VOFF0}, s[16:19], s41 offen ; #x{i}")
    a(f"s_add_u32 s48, s4, {EPO_OFF}")
    a("s_addc_u32 s49, s5, 0")
    a(f"s_load_dword s{S_TAG}, s[48:49], 0")
    for m in range(2):
        srd(a, 52, 60 + 2 * m, 32768)
        for half in range(2):
            a(f"s_add_u32 m0, s{S_RING}, {m*8192 + half*4096}")
            for pc in range(4): a(f"buffer_load_dwordx4 v{2+pc%2}, s[52:55], s{42+half} offen offset:{pc*1024} lds ; #w")
    stamp()
    srd(a, 12, 4, WS_BYTES)
    srd(a, 8, 4, N * 256, HP_OFF)
    for s, nb in ((20, N * 256), (24, N * 2)):
        a(f"s_mov_b32 s{s+2}, {nb}")
        a(f"s_mov_b32 s{s+3}, 0x00020000")
    a(f"s_lshl_b32 s35, s{S_SPLIT}, 2")
    a(f"s_add_u32 s{S_KEY}, s35, s{S_W}")
    a(f"s_mul_i32 s{S_KOFF}, s{S_KEY}, {NSTEP*8192}")
    a(f"s_lshl_b32 s{S_AM}, s{S_W}, 13")
    a(f"s_add_u32 s{S_AM}, s{S_AM}, {MV_OFF}")
    a(f"s_lshl_b32 s39, s{S_TILE}, 3")
    a("s_add_u32 s39, s39, s35")
    a(f"s_xor_b32 s35, s{S_SPLIT}, 1")
    a("s_mul_i32 s37, s35, 15")
    a(f"v_xor_b32 v3, s37, v{V_Q}")
    a("s_mul_i32 s37, s35, 3")
    a(f"s_xor_b32 s48, s37, s{S_W}")
    a("s_add_u32 s39, s39, s48")
    a(f"s_mul_i32 s49, s35, {4*4096}")
    a("s_add_u32 s50, s36, s49")
    a(f"s_add_u32 s49, s49, {SPARE}")
    a("s_lshl_b32 s37, s35, 13")
    a("s_sub_u32 s37, 4096, s37")
    a(f"s_mul_i32 s{S_LEFT}, s35, 4")
    a(f"s_mul_i32 s{S_LEFT}, s{S_LEFT}, s{S_W}")
    a(f"s_add_u32 s{S_LEFT}, s{S_LEFT}, s{S_W}")
    a(f"s_mul_i32 s{S_LIST}, s{S_W}, {LIST_B}")
    a(f"s_add_u32 s{S_LIST}, s{S_LIST}, {SPARE}")
    a(f"v_lshrrev_b32 v5, 1, v{V_G}")
    a(f"v_and_b32 v6, 1, v{V_G}")
    a("v_lshlrev_b32 v31, 4, v6")
    a(f"v_lshrrev_b32 v2, 2, v{V_Q}")
    a(f"v_and_b32 v6, 3, v{V_Q}")
    a("v_lshl_add_u32 v200, v2, 3, v6")
    a("v_add_u32 v201, 4, v200")
    a(f"s_add_u32 s41, s{S_RING}, 8192")
    for row, base, dst in (("v3", "s49", 232), (f"v{V_Q}", f"s{S_RING}", KA(0)), ("v200", "s41", 204), ("v201", "s41", 208)):
        a(f"v_and_b32 v30, 7, {row}")
        a(f"v_lshl_add_u32 v6, {row}, 8, v31")
        a(f"v_add_u32 v6, {base}, v6")
        for ks in range(4):
            a(f"v_add_u32 v7, {2*ks}, v5")
            a("v_xor_b32 v7, v7, v30")
            a(f"v_lshl_add_u32 v{dst+ks}, v7, 5, v6")
    a(f"v_bfe_u32 v5, v{V_Q}, 1, 1")
    a(f"s_lshl_b32 s41, s{S_W}, 1")
    a("v_add_u32 v5, s41, v5")
    a(f"v_and_b32 v6, 1, v{V_Q}")
    a("v_lshlrev_b32 v6, 4, v6")
    a(f"v_lshl_add_u32 v6, v{V_G}, 11, v6")
    for hh in range(2):
        a(f"v_add_u32 v7, {4*hh}, v2")
        a("v_lshl_add_u32 v30, v7, 8, v6")
        a("v_xor_b32 v7, v7, v5")
        a(f"v_lshl_add_u32 v{212+hh}, v7, 5, v30")
        a(f"v_add_u32 v{214+hh}, {2*RING}, v{212+hh}")
    a(f"v_lshl_add_u32 v2, v{V_G}, 2, v2")
    a(f"v_and_b32 v5, 3, v{V_Q}")
    a("v_lshlrev_b32 v5, 3, v5")
    a("v_lshl_add_u32 v5, v2, 8, v5")
    a(f"v_add_u32 v5, s{S_RING}, v5")
    a("v_and_b32 v2, 7, v2")
    for j in range(8):
        a(f"s_add_u32 s44, s41, {j}")
        a("s_and_b32 s44, s44, 7")
        a("v_xor_b32 v7, s44, v2")
        a(f"v_lshl_add_u32 v{VA(j)}, v7, 5, v5")
    a("v_lshlrev_b32 v3, 8, v3")
    a(f"v_lshl_add_u32 v3, v{V_G}, 4, v3")
    a(f"s_lshl_b32 s44, s{S_W}, 6")
    a("s_add_u32 s44, s44, s50")
    a("s_mul_i32 s43, s37, 3")
    a("s_add_u32 s44, s44, s43")
    a(f"v_add_u32 v{V_ROW(1)}, s44, v3")
    a(f"v_mov_b32 v3, {OOB}")
    a(f"v_cmp_lt_u32 vcc, 7, v{V_Q}")
    a(f"v_add_u32 v{V_ROW(2)}, s37, v{V_ROW(1)}")
    a(f"v_subrev_u32 v{V_ROW(0)}, s37, v{V_ROW(1)}")
    a(f"v_cndmask_b32 v{V_ROW(0)}, v3, v{V_ROW(0)}, vcc")
    a(f"v_sub_u32 v2, 9, v{V_Q}")
    a(f"s_cmp_eq_u32 s{S_SPLIT}, 1")
    a("s_cselect_b64 vcc, -1, 0")
    a("s_mul_i32 s44, s39, 10")
    a(f"v_cndmask_b32 v5, v2, v{V_Q}, vcc")
    a(f"v_cmp_gt_u32 vcc, 10, v{V_Q}")
    a("v_add_lshl_u32 v2, v5, s44, 1")
    a("v_sub_u32 v5, 15, v5")
    a("v_lshlrev_b32 v5, v5, 1")
    a(f"v_cndmask_b32 v{V_DEG}, v3, v2, vcc")
    a(f"v_cndmask_b32 v{V_HOT}, 0, v5, vcc")
    a(f"v_lshlrev_b32 v{V_L4}, 2, v0")
    a("s_lshl_b32 s39, s39, 5")
    a(f"s_add_u32 s39, s39, {TAB_OFF}")
    a(f"v_add_u32 v{V_RED}, s{S_RING}, v{VOFF0}")
    a(f"v_add_u32 v6, {2*RING}, v{VOFF0}")
    a(f"s_lshl_b32 s44, s{S_W}, 2")
    a(f"v_add_u32 v5, {OFR}, v{VOFF0}")
    a("v_add_u32 v2, s44, v5")
    def flag_addr(dst, r, tail):
        a(f"s_mul_i32 s41, {r}, 156")
        a("s_mul_i32 s41, s41, 52429")
        a("s_lshr_b32 s41, s41, 18")
        a(f"v_add_u32 v{dst}, s41, v0")
        a(f"v_min_u32 v{dst}, 249, v{dst}")
        a("v_cmp_gt_u32 vcc, 33, v0")
        emit(tail)
        a(f"v_cndmask_b32 v{dst}, v7, v{dst}, vcc")
        a(f"v_lshlrev_b32 v{dst}, 7, v{dst}")
    flag_addr(216, f"s{S_KEY}", ["v_mov_b32 v7, 249", "s_nop 0"])
    a(f"s_xor_b32 s44, s{S_KEY}, 4")
    flag_addr(V_TAB, "s44", ["v_and_b32 v7, 7, v0", "v_min_u32 v7, 5, v7", "v_add_u32 v7, 250, v7"])
    a(f"s_lshl_b32 s57, s{S_TILE}, 1")
    a(f"s_add_u32 s57, s57, s{S_SPLIT}")
    a("s_lshl_b32 s57, s57, 7")
    a(f"s_lshl_b32 s44, s{S_W}, 2")
    a("s_add_u32 s57, s57, s44")
    a(f"s_add_u32 s57, s57, {FLH_OFF}")
    a(f"s_mov_b32 s58, {FLH_OFF}")
    a(f"v_cmp_eq_u32 vcc, 0, v{V_Q}")
    a(f"s_mov_b32 s41, {f32(1.0/128)}")
    a(f"v_mov_b32 v217, {f32(1e-5)}")
    a(f"v_mov_b32 v31, {f32(CH)}")
    a("s_mov_b32 s43, 0xffff0000")
    a(f"s_cmp_lt_u32 s{S_W}, 2")
    a(f"s_cselect_b32 s44, s{SO(2)}, 0x7ff00000")
    X = lambda i, k: 64 + 8 * i + k
    A_, B_ = (lambda i: 56 + i), (lambda i: 104 + i)
    def layernorm(I, own):
        for i in I:
            a(f"@wait vm x{i}")
            for c in range(4):
                a(f"v_lshlrev_b32 v{X(i,2*c)}, 16, v{W(i)+c}")
                a(f"v_and_b32 v{X(i,2*c+1)}, s43, v{W(i)+c}")
        if own: stamp()
        for i in I: a(f"v_add_f32 v{A_(i)}, v{X(i,0)}, v{X(i,1)}")
        for k in range(2, 8):
            for i in I: a(f"v_add_f32 v{A_(i)}, v{A_(i)}, v{X(i,k)}")
        row_sum(a, [A_(i) for i in I])
        for i in I: a(f"v_mul_f32 v{A_(i)}, s41, v{A_(i)}")
        for k in range(8):
            for i in I: a(f"v_sub_f32 v{X(i,k)}, v{X(i,k)}, v{A_(i)}")
        for i in I: a(f"v_mul_f32 v{B_(i)}, v{X(i,0)}, v{X(i,0)}")
        for k in range(1, 8):
            for i in I: a(f"v_fmac_f32 v{B_(i)}, v{X(i,k)}, v{X(i,k)}")
        row_sum(a, [B_(i) for i in I])
        for i in I: a(f"v_fma_f32 v{B_(i)}, v{B_(i)}, s41, v217")
        for i in I: a(f"v_rsq_f32 v{B_(i)}, v{B_(i)}")
        for k in range(8):
            for i in I: a(f"v_mul_f32 v{X(i,k)}, v{X(i,k)}, v{B_(i)}")
        if own:
            for i in I: a(f"v_mul_f32_dpp v{A_(i)}, v{X(i,0)}, v31 row_newbcast:0 row_mask:0xf bank_mask:0xf")
            for i in I:
                Y = 112 + 8 * i
                for k in range(8): a(f"v_add_f32 v{Y+k}, v{X(i,k)}, v{A_(i)}")
                a(f"v_cndmask_b32 v{Y}, v{Y}, 1.0, vcc")
                for c in range(4): a(f"v_cvt_pk_bf16_f32 v{Y+c}, v{Y+2*c}, v{Y+2*c+1}")
                a(f"s_add_u32 s42, s36, s{SO(i) if i < 2 else 44}")
                a(f"buffer_store_dwordx4 {vr(Y,4)}, v4, s[8:11], s42 offen sc1")
        for i in I:
            a(f"s_add_u32 s42, s{SO(i)}, {SPARE}")
            a(f"v_add_u32 v{B_(i)}, s42, v4")
            for c in range(4): a(f"v_cvt_pk_bf16_f32 v{W(i)+c}, v{X(i,2*c)}, v{X(i,2*c+1)}")
            a(f"ds_write_b128 v{B_(i)}, {vr(W(i),4)}")
    layernorm(range(3), True)
    layernorm(range(3, 5), False)
    a("s_waitcnt vmcnt(0) lgkmcnt(0)")
    a(f"s_add_u32 s{S_TAG}, s{S_TAG}, 0x9e3779b1")
    a(f"v_mov_b32 v7, s{S_TAG}")
    a("s_mov_b64 exec, 1")
    a("buffer_store_dword v7, off, s[12:15], s57 sc1")
    a("s_mov_b64 exec, -1")
    a("s_barrier")
    stamp()

    def dma(slot, piece, last=7):
        out = []
        half, sub = piece // 4, piece % 4
        if sub == 0: out.append(f"s_add_u32 m0, s{S_RING}, {slot*8192 + half*4096}")
        out.append(f"buffer_load_dwordx4 v{VOFF0+half}, s[8:11], s{S_KOFF} offen offset:{sub*1024}{PL} lds")
        if piece == last: out.append(f"s_add_u32 s{S_KOFF}, s{S_KOFF}, 8192")
        return out
    tagged = lambda grp, tag: [x + f" ; #{tag}" if x.startswith("buffer_") else x for x in grp]
    HB = lambda qb, ks: 32 + (qb * 4 + ks) * 4
    MA = lambda hf, ks: 112 + (hf * 4 + ks) * 4
    QD = lambda qb, hf: 144 + (qb * 2 + hf) * 4
    def gemm(reads, post):
        for qb in range(2): emit(reads(qb))
        for qb in range(5):
            if qb + 2 < 5: emit(reads(qb + 2))
            a(f"@wait lg hb{qb}")
            po = post(qb - 1) if qb else []
            for hf in range(2):
                for ks in range(4):
                    a(f"{MF} {vr(QD(qb,hf),4)}, {vr(MA(hf,ks),4)}, {vr(HB(qb,ks),4)}, {'0' if ks==0 else vr(QD(qb,hf),4)}")
                    if hf * 4 + ks >= 2:
                        for _ in range(2):
                            if po and po[0].startswith("v_"): a(po.pop(0))
            emit(po)
        emit(post(4))
        a("s_waitcnt lgkmcnt(0)")
        a("s_barrier")
    for hf in range(2):
        for ks in range(4):
            for hh in range(2): a(f"ds_read_b64_tr_b16 {vr(MA(hf,ks)+2*hh,2)}, v{212 + 2*(ks//2) + hh} offset:{(ks%2)*RING + 8*hf}")
    def reads1(qb):
        return [f"ds_read_b128 {vr(HB(qb,ks),4)}, v{232+ks} ; #hb{qb}" for ks in range(4)] + ([f"v_add_u32 v{232+ks}, s37, v{232+ks}" for ks in range(4)] if qb < 4 else [])
    def post1(qb):
        return [f"v_cvt_pk_bf16_f32 v{QD(qb,0)+c}, v{QD(qb,0)+2*c}, v{QD(qb,0)+2*c+1}" for c in range(4)] + [f"ds_write_b128 v{V_RED}, {vr(QD(qb,0),4)} offset:{16384 + qb*1024}"]
    gemm(reads1, post1)
    stamp()
    for hf in range(2):
        for ks in range(4): a(f"ds_read_b128 {vr(MA(hf,ks),4)}, v{204 + 4*hf + ks}")
    a(f"s_cmp_eq_u32 s{S_W}, 0")
    a("s_cselect_b64 s[42:43], -1, 0")
    a(f"v_cmp_eq_u32 vcc, 0, v{V_G}")
    a(f"s_mov_b32 s41, {f32(RS128)}")
    a("s_and_b64 s[42:43], s[42:43], vcc")
    NQ = lambda qb: 184 + qb
    def reads2(qb): return [f"ds_read_b128 {vr(HB(qb,ks),4)}, v{VOFF0 if ks<2 else 6} offset:{(ks%2)*RING + 16384 + qb*1024} ; #hb{qb}" for ks in range(4)]
    def post2(qb):
        return [f"v_add_f32 v{NQ(qb)}, v{QD(qb,0)}, v{QD(qb,0)+1}"] + [f"v_add_f32 v{NQ(qb)}, v{NQ(qb)}, v{QD(qb,0)+i}" for i in range(2, 8)] + \
               [f"v_mul_f32 v{NQ(qb)}, s41, v{NQ(qb)}", f"v_sub_f32 v7, v{NQ(qb)}, v{QD(qb,0)}", f"v_cndmask_b32 v{NQ(qb)}, v{NQ(qb)}, v7, s[42:43]",
                f"ds_write_b32 v2, v{NQ(qb)} offset:{qb*1024}"]
    gemm(reads2, post2)
    stamp()
    a(f"buffer_load_dwordx4 v[220:223], v216, s[12:15], s58 offen{PL} ; #flag1")
    for qb in range(5): a(f"ds_read_b128 {vr(HB(qb,0),4)}, v5 offset:{qb*1024}")
    a(f"s_mov_b32 s41, {f32(QSCALE)}")
    a(f"s_mov_b32 s44, {f32(-QSCALE*CH)}")
    def lane_sum(regs):
        for op in ("v_permlane32_swap_b32", "v_permlane16_swap_b32"):
            for r in regs: a(f"v_mov_b32 v{r+1}, v{r}")
            for r in regs: a(f"{op} v{r}, v{r+1}")
            for r in regs: a(f"v_add_f32 v{r}, v{r}, v{r+1}")
    for qb in range(5):
        a(f"s_waitcnt lgkmcnt({4-qb})")
        emit([f"v_add_f32 v{HB(qb,0)}, v{HB(qb,0)}, v{HB(qb,0)+1}", f"v_add_f32 v{HB(qb,0)+2}, v{HB(qb,0)+2}, v{HB(qb,0)+3}", f"v_add_f32 v{HB(qb,0)}, v{HB(qb,0)}, v{HB(qb,0)+2}"])
    lane_sum([HB(qb, 0) for qb in range(5)])
    for qb in range(5):
        a(f"v_mul_f32 v{HB(qb,0)}, s44, v{HB(qb,0)}")
        for i in range(8): a(f"v_fma_f32 v{QD(qb,0)+i}, v{QD(qb,0)+i}, s41, v{HB(qb,0)}")
        a(f"v_cndmask_b32 v{QD(qb,0)}, v{QD(qb,0)}, 0, s[42:43]")
        for c in range(4): a(f"v_cvt_pk_bf16_f32 v{HB(qb,1)+c}, v{QD(qb,0)+2*c}, v{QD(qb,0)+2*c+1}")
        a(f"ds_write_b128 v{V_RED}, {vr(HB(qb,1),4)} offset:{24576 + qb*1024}")
    for qb in range(5):
        a(f"v_mul_f32 v{NQ(qb)}, v{QD(qb,0)}, v{QD(qb,0)}")
        for i in range(1, 8): a(f"v_fmac_f32 v{NQ(qb)}, v{QD(qb,0)+i}, v{QD(qb,0)+i}")
        if qb: a(f"v_max_f32 v{NQ(0)}, v{NQ(0)}, v{NQ(qb)}")
    a(f"ds_write_b32 v2, v{NQ(0)} offset:5120")
    a("s_waitcnt lgkmcnt(0)")
    a("s_barrier")
    stamp()

    def kread(par, slot, j):
        kb, ks = j // 4, j % 4
        return f"ds_read_b128 {vr(KF(par,kb,ks),4)}, v{KA(ks)} offset:{slot*8192 + kb*4096}"
    def vread(par, slot, j):
        db, hf = j // 2, j % 2
        return f"ds_read_b64_tr_b16 {vr(VF(par,db)+2*hf,2)}, v{VA(db)} offset:{slot*8192 + hf*4096}"
    def qk(spar, kpar, qb, j, slow):
        kb, ks = j // 4, j % 4
        c = (vr(CM(qb), 4) if slow else "0") if ks == 0 else vr(S(spar, kb), 4)
        return f"{MF} {vr(S(spar,kb),4)}, {vr(KF(kpar,kb,ks),4)}, {ar(Q(qb,ks),4)}, {c}"
    def pv(ppar, vpar, qb, j, first=False):
        return f"{MF} {ar(O(j,qb),4)}, {vr(VF(vpar,j),4)}, {vr(P(ppar),4)}, {'0' if first else ar(O(j,qb),4)}"
    def qread(qb): return [f"ds_read_b128 {ar(Q(qb,ks),4)}, v{VOFF0 if ks<2 else 6} offset:{(ks%2)*RING + 24576 + qb*1024}" for ks in range(4)]
    def ready(regs, addr, tag, wait):
        a(wait)
        a("s_mov_b32 s49, 0x40000")
        a.label(f"L2_rdy_{tag}")
        for i in range(4): a(f"v_xor_b32 v{regs+i}, s{S_TAG}, v{regs+i}")
        a(f"v_or3_b32 v{regs}, v{regs}, v{regs+1}, v{regs+2}")
        a(f"v_or_b32 v{regs}, v{regs}, v{regs+3}")
        a(f"v_cmp_ne_u32 vcc, 0, v{regs}")
        a("s_sub_u32 s49, s49, 1")
        a("s_cselect_b64 vcc, 0, vcc")
        a(f"s_cbranch_vccz L2_go_{tag}")
        a(f"buffer_load_dwordx4 {vr(regs,4)}, v{addr}, s[12:15], s58 offen{PL} ; #offpath")
        a("s_waitcnt vmcnt(0)")
        a(f"s_branch L2_rdy_{tag}")
        a.label(f"L2_go_{tag}")
    a(f"ds_read_b128 v[188:191], v5 offset:5120 ; #nq")
    for qb in range(5): emit([x + " ; #q" for x in qread(qb)])
    ready(220, 216, "a", "@wait vm flag1")
    stamp()
    for pc in range(16): emit(tagged(dma(pc // 8, pc % 8), f"t{pc//8}"))
    a("@wait lg nq")
    emit(["v_add_f32 v188, v188, v189", "v_add_f32 v190, v190, v191", "v_add_f32 v188, v188, v190"])
    lane_sum([188])
    a(f"v_mov_b32 v189, {f32(NORM2_MAX)}")
    a("v_cmp_nle_f32 vcc, v188, v189")
    for pc in range(8): emit(tagged(dma(2, pc), "t2"))
    a("s_waitcnt lgkmcnt(0)")
    a("s_barrier")
    a(f"s_mov_b32 s{S_CNT}, {(NSTEP-7)//4}")
    a("@wait vm t0")
    stamp()
    for j in range(8): a(kread(0, 0, j) + f" ; #k0{j//4}")
    vl = [vread(0, 0, j) + " ; #v0" for j in range(16)]
    emit(vl[:4])
    a("s_cbranch_vccnz L2_slow")
    for j in range(8):
        if j % 4 == 0: a(f"@wait lg k0{j//4}")
        a(qk(0, 0, 0, j, False))
        emit(vl[4+2*j:6+2*j])

    def red_write(s, qb, h): return f"ds_write_b128 v{V_RED}, {ar(O(2*s+h,qb),4)} offset:{red_off(s,qb,h)}"
    S_T = lambda p: 60 + p if p < 4 else 46 + p
    S_P = lambda p: 41 + p if p < 4 else 44 + p
    def seg_scalars(first):
        out = []
        for p in range(NPROD):
            if first:
                out += [f"s_and_b32 s{S_S(p)}, s{S_C(p)}, 0xffff", f"s_lshr_b32 s{S_C(p)}, s{S_C(p)}, 16"]
                out += [f"s_lshl2_add_u32 s{S_S(p)}, s{S_S(p)}, {SEG_OFF + p*EPP*4}"]
            out += [f"s_min_u32 s{S_T(p)}, s{S_C(p)}, 64"]
            out += [f"s_mov_b32 s{S_NB}, s{S_T(0)}"] if p == 0 else []
            if p: out += [f"s_lshl_b32 s{S_P(p)}, s{S_NB}, 2", f"s_add_u32 s{S_NB}, s{S_NB}, s{S_T(p)}"]
        return out
    def seg_load(p):
        return [f"v_sub_u32 v{U+p}, v{U+6}, s{S_T(p)} clamp", f"v_lshl_add_u32 v{ENT(8+p)}, v{U+p}, 26, v{V_L4}",
                f"buffer_load_dword v{ENT(p)}, v{ENT(8+p)}, s[12:15], s{S_S(p)} offen{PL} ; #ent"]
    def seg_store(p):
        return [f"v_lshl_add_u32 v{U+p}, v{U+p}, 18, v{U+7}"] + ([f"v_add_u32 v{U+p}, s{S_P(p)}, v{U+p}"] if p else []) + [f"ds_write_b32 v{U+p}, v{ENT(p)}"]
    def step(t, slow, loop_end=False):
        par = t % 2
        nslot = (t + 1) % 4
        sc = [[] for _ in range(80)]; mem = [[] for _ in range(80)]; val = [[] for _ in range(80)]
        last = t == NSTEP - 1
        in_loop = 3 <= t < 7
        adj = NSTEP - 11 if in_loop else 0
        used = [8 if G % 2 == 0 else (4 if G % 4 == 3 else 0) for G in range(80)]
        def cost(x): return 8 if x.startswith(("buffer_", "v_exp", "ds_write_b128")) else 4
        def put(G, x):
            (val if x.startswith("v_") else mem)[G].append(x); used[G] += cost(x)
        def place(items, G, sep=0):
            prev = None
            for x in items:
                grp = x if isinstance(x, list) else [x]
                y = next(z for z in grp if not z.startswith("s_"))
                if prev is not None: G += sep if sep else (1 if prev.startswith("v_") and not y.startswith("v_") else 0)
                while used[G] + cost(y) > 8: G += 1
                put(G, y)
                k = grp.index(y)
                sc[G - 1] += grp[:k]; sc[G + 1] += grp[k + 1:]
                prev = y
            return G
        if not last:
            for j in range(8): put(1 + 2 * j, kread(1 - par, nslot, j) + f" ; #k{t+1+adj}")
            for j in range(16): put(16 + 4 * j + 3, vread(1 - par, nslot, j) + f" ; #v{t+1+adj}")
            sc[0].append("s_waitcnt vmcnt(16)" if in_loop else f"@wait vm t{t+1}")
            sc[62].append("s_waitcnt lgkmcnt(11)" if in_loop else f"@wait lg k{t+1}")
        sc[14].append("s_waitcnt lgkmcnt(7)" if in_loop else f"@wait lg v{t}")
        tg = lambda grp, tag: [x + f" ; #{tag}" if x.startswith("buffer_") else x for x in grp]
        if t == 0:
            place([tg(dma(3, pc), "t3") for pc in range(8)] + [tg(dma(0, pc), "t4") for pc in range(8)], 17, 4)
        elif t + 4 < NSTEP:
            place([tg(dma(t % 4, pc), f"t{t+4+adj}") for pc in range(8)], 17, 8)
        def am_stage(slot):
            out = []
            for pc in range(8):
                hf, ks = pc // 4, pc % 4
                g = [f"s_add_u32 m0, s{S_RING}, {slot*8192 + hf*4096}"] if ks == 0 else []
                g.append(f"buffer_load_dwordx4 v{VOFF0+hf}, s[12:15], s{S_AM} offen offset:{ks*1024}{PL} lds ; #am{slot}")
                if pc == 7 and slot == 3: g.append(f"s_add_u32 s{S_AM}, s{S_AM}, {MM_OFF-MV_OFF}")
                out.append(g)
            return out
        if t == 2:
            sc[2].append(f"s_mov_b32 s35, {8*NSTEP*8192}")
            for pc, G in enumerate((21, 29, 37, 53)):
                half = 0 if G < 49 else 1
                sc[G - 1].append(f"s_mov_b32 m0, s{S_LIST}")
                put(G, f"buffer_load_dwordx4 v{VOFF0}, s[8:11], s35 offen offset:{pc*1024}{PL} lds ; #left")
                sc[G + 1].append(f"s_add_u32 m0, s{S_RING}, {(t%4)*8192 + half*4096}")
        if t == NSTEP - 4:
            xl = [f"buffer_load_dwordx4 {vr(XR(b),4)}, v{V_ROW(b)}, s[16:19], 0 offen" for b in range(3)] + [f"buffer_load_ushort v{V_DEG}, v{V_DEG}, s[24:27], 0 offen"]
            place([f"buffer_load_dwordx4 v[232:235], v{V_TAB}, s[12:15], s58 offen{PL} ; #flag2"] + xl, 17, 12)
            sc[2].append(f"s_sub_u32 s35, s{S_LIST}, s{S_RING}")
            G = place([f"v_add_u32 v{LA+i}, s35, v{KA(0)+i}" for i in range(12)], 5)
            rl = [f"ds_read_b128 {vr(LK(ks),4)}, v{LA+ks} ; #lk" for ks in range(4)] + [f"ds_read_b64_tr_b16 {ar(LV(j),2)}, v{LA+4+j} ; #lv" for j in range(8)]
            place(rl, G + 1)
        if t == NSTEP - 3:
            put(17, f"buffer_load_dword v{V_TAB}, v{V_L4}, s[12:15], s39 offen{PL} ; #tab")
            G = place(am_stage(3), 21)
            G = place([f"v_exp_f32 v{LS+e}, v{LS+e}" for e in range(4)] + [f"v_cvt_pk_bf16_f32 v{LP+c}, v{LS+2*c}, v{LS+2*c+1}" for c in range(2)], G)
            place([f"v_add_u32 v{U+6}, 1, v0", f"v_add_u32 v{U+7}, s{S_LIST}, v{V_L4}"], 1, 4)
        if t == NSTEP - 2:
            sc[0].append("@wait vm tab")
            G = place([f"v_readlane_b32 s{S_C(p)}, v{V_TAB}, {p}" for p in range(NPROD)], 1)
            sal = seg_scalars(True)
            for k, x in enumerate(sal): sc[12 + 2 * (k // 2)].append(x)
            G = max(G, 12 + len(sal) // 3)
            for p in range(NPROD):
                G = place(seg_load(p), max(G, 14 + 2 * ((5 * (p + 1) + 1) // 2)))
            step.am = am_stage(0)
            G = place(step.am[:2], G)
        if last:
            G = place(step.am[2:], 5)
            G = place([f"v_lshl_add_u32 v{U+8}, s{S_NB}, 2, v{U+7}", f"v_mov_b32 v{U+9}, 0x7fffff0f", f"ds_write_b32 v{U+8}, v{U+9}"], 1)
            sc[16].append("@wait vm ent")
            G = 17
            for p in range(NPROD): G = place(seg_store(p), G)
            assert G <= 47, G
            amr = lambda m: [f"ds_read_b128 {ar(AM(m,hf,ks),4)}, v{V_RED} offset:{(24576,0)[m] + hf*4096 + ks*1024}" for hf in range(2) for ks in range(4)]
            for G, x in zip([13, 15, 19, 23, 27, 31, 35, 37], amr(0)): mem[G].insert(0, x)
            for qb, gaps in ((0, [37, 39, 41, 43, 45, 47]), (1, [49, 53, 57, 61, 65, 67]), (2, [69, 71, 73, 75, 77, 79])):
                for G, (s, h) in zip(gaps, [(s, h) for s in range(1, 4) for h in range(2)]): mem[G].append(red_write(s, qb, h) + " ; #send")
            sc[12].append("@wait vm am3")
            sc[50].append("@wait vm am0")
            for G, x in zip([51, 55, 59, 63, 63, 65, 67, 69], amr(1)): mem[G].insert(0, x)
        if loop_end:
            sc[76].append(f"s_sub_u32 s{S_CNT}, s{S_CNT}, 1")
            sc[78].append(f"s_cmp_lg_u32 s{S_CNT}, 0")
        for p in range(5):
            u = 5 * t + p
            sp = u % 2
            qks = [qk(1 - sp, (par + (p == 4)) % 2, (p + 1) % 5, j, slow) for j in range(8)]
            pvs = [pv(1 - sp, (par - (p == 0)) % 2, (p + 4) % 5, j, u <= 5) for j in range(8)]
            if u == 0: pvs = [None] * 8
            if last and p == 4: qks = [None] * 8
            mf = qks[:4] + pvs[:4] + qks[4:] + pvs[4:]
            for e in range(8): val[16 * p + 2 * e].append(f"v_exp_f32 v{S(sp,e//4)+e%4}, v{S(sp,e//4)+e%4}")
            for c in range(4): val[16 * p + 4 * c + 3].append(f"v_cvt_pk_bf16_f32 v{P(sp)+c}, v{S(sp,c//2)+2*(c%2)}, v{S(sp,c//2)+2*(c%2)+1}")
            for i in range(16):
                G = 16 * p + i
                if mf[i]: a(mf[i])
                emit(sc[G] + mem[G] + val[G])

    def variants(tag, body, pre=()):
        emit(pre)
        a(f"s_cmp_ge_u32 s{S_LEFT}, 4")
        a(f"s_cbranch_scc1 {tag}_x")
        for r in range(3):
            a(f"s_cmp_eq_u32 s{S_LEFT}, {r}")
            a(f"s_cbranch_scc1 {tag}_{r}")
        for r in (3, 2, 1, 0):
            if r < 3: a.label(f"{tag}_{r}")
            emit(body(r))
            if r: a(f"s_branch {tag}_x")
        a.label(f"{tag}_x")
    def main_loop(slow):
        tag = "s" if slow else "f"
        if not slow: stamp()
        for t in range(3): step(t, slow)
        a.raw(".p2align 6")
        a.label(f"L2_loop_{tag}")
        for t in range(3, 7): step(t, slow, t == 6)
        a(f"s_cbranch_scc1 L2_loop_{tag}")
        step(NSTEP - 4, slow)
        variants(f"L2_lq{tag}", lambda r: [f"{MF} {vr(LS,4)}, {vr(LK(ks),4)}, {ar(Q(r,ks),4)}, {(vr(CM(r),4) if slow else '0') if ks==0 else vr(LS,4)}" for ks in range(4)],
                 ["@wait lg lk"])
        ready(232, V_TAB, "b" + tag, "@wait vm flag2")
        step(NSTEP - 3, slow)
        variants(f"L2_lv{tag}", lambda r: [f"{MF16} {ar(O(j,r),4)}, {ar(LV(j),2)}, {vr(LP,2)}, {ar(O(j,r),4)}" for j in range(8)], ["@wait lg lv"])
        step(NSTEP - 2, slow)
        step(NSTEP - 1, slow)
        wr = [red_write(s, 3, h) for s in range(1, 4) for h in range(2)]
        for j in range(8):
            a(pv((5 * NSTEP - 1) % 2, (NSTEP - 1) % 2, 4, j))
            if wr: a(wr.pop(0))
        if not slow: a("s_branch L2_epi")
    main_loop(False)

    a.label("L2_slow")
    emit(vl[4:])
    for k in range(4):
        a(f"v_add_u32 v216, {64*k}, v0")
        a("v_min_u32 v216, 249, v216")
        a("v_lshlrev_b32 v216, 7, v216")
        a(f"buffer_load_dwordx4 v[220:223], v216, s[12:15], s58 offen{PL}")
        ready(220, 216, f"c{k}", "s_waitcnt vmcnt(0)")
    a("s_waitcnt lgkmcnt(0)")
    for ks in range(4): a(f"v_subrev_u32 v{232+ks}, s{S_RING}, v{KA(ks)}")
    for qb in range(5): a(f"v_mov_b32 v{CM(qb)}, 0xff800000")
    a("s_mov_b32 s35, 0")
    a.label("L2_max")
    for ks in range(4): a(f"buffer_load_dwordx4 {vr(KF(1,0,ks),4)}, v{232+ks}, s[8:11], s35 offen{PL}")
    a("s_waitcnt vmcnt(0)")
    for qb in range(5):
        for ks in range(4): a(f"{MF} {vr(160+4*qb,4)}, {vr(KF(1,0,ks),4)}, {ar(Q(qb,ks),4)}, {'0' if ks==0 else vr(160+4*qb,4)}")
    for qb in range(5):
        a(f"v_max3_f32 v{CM(qb)}, v{CM(qb)}, v{160+4*qb}, v{161+4*qb}")
        a(f"v_max3_f32 v{CM(qb)}, v{CM(qb)}, v{162+4*qb}, v{163+4*qb}")
    a("s_add_u32 s35, s35, 4096")
    a(f"s_cmp_lt_u32 s35, {N*256}")
    a("s_cbranch_scc1 L2_max")
    for x in (16, 32):
        a(f"v_xor_b32 v2, {x}, v0")
        a("v_lshlrev_b32 v2, 2, v2")
        for qb in range(5): a(f"ds_bpermute_b32 v{CM(qb)+1}, v2, v{CM(qb)}")
        a("s_waitcnt lgkmcnt(0)")
        for qb in range(5): a(f"v_max_f32 v{CM(qb)}, v{CM(qb)}, v{CM(qb)+1}")
    for qb in range(5):
        a(f"v_sub_f32 v{CM(qb)}, 0, v{CM(qb)}")
        for r in range(1, 4): a(f"v_mov_b32 v{CM(qb)+r}, v{CM(qb)}")
    for j in range(8): a(qk(0, 0, 0, j, True))
    a("s_nop 7")
    main_loop(True)

    a.label("L2_epi")
    stamp()
    R = lambda qb: 32 + qb * 8
    T = lambda k: 72 + k * 8
    AG = lambda j: 96 + 4 * j
    GV = lambda j: 128 + 4 * j
    V_AD, V_OH, V_BA, TMP = 200, 201, 206, 210
    V_OW, V_OR, V_P0, V_P1 = 214, 215, 218, 219
    FLG, SEL = 232, 236
    PK = lambda b: 240 + 4 * b
    GA = lambda k, i: 160 + 8 * k + i
    OH = lambda i: 84 + i
    OB = 92
    BO = lambda b, ks: (b * 4 + ks) * 4
    BP = lambda b, ks: 48 + (b * 4 + ks) * 4
    FO = lambda b, hf: 32 + (b * 2 + hf) * 4
    LD = lambda b: 56 + 4 * b
    def weave(main, groups, first=0):
        n = len(main) - first
        pos = {first + (k * n) // len(groups): g for k, g in enumerate(groups)} if groups else {}
        assert len(pos) == len(groups)
        for x, ins in enumerate(main):
            a(ins)
            emit(pos.get(x, []))
    def acc_reads(qb): return [f"v_accvgpr_read_b32 v{R(qb)+4*h+r}, a{O(h,qb)+r}" for h in range(2) for r in range(4)]
    def pack(d, qb): return [f"v_cvt_pk_bf16_f32 v{d+c}, v{R(qb)+2*c}, v{R(qb)+2*c+1}" for c in range(4)]
    for s in range(1, 4):
        emit([f"s_sub_u32 s41, s{S_W}, {s}", "s_and_b32 s41, s41, 3", "s_lshl_b32 s41, s41, 15", f"v_add_u32 v{2+s}, s41, v{VOFF0}"])
    a("s_waitcnt lgkmcnt(6)")
    a("s_barrier")
    stamp()
    def red_read(k, s, qb):
        for h in range(2): a(f"ds_read_b128 {vr(T(k)+4*h,4)}, v{3+s} offset:{red_off(s+1,qb,h)}")
    for qb in range(3):
        for s in range(3): red_read(3 * qb + s, s, qb)
    for s in range(1, 4):
        for h in range(2): a(red_write(s, 4, h))
    emit(acc_reads(0))
    emit([f"s_mul_i32 s42, s{S_PART}, {XCH_WG}", f"s_mul_i32 s43, s{S_W}, 2560", f"s_add_u32 s43, s43, {XCH_OFF}",
          "s_add_u32 s42, s42, s43",
          f"s_mul_i32 s44, s2, {XCH_WG}", "s_add_u32 s43, s43, s44",
          f"v_sub_u32 v6, 23, v{V_Q}", "v_lshlrev_b32 v6, 6, v6", f"v_lshl_add_u32 v6, v{V_G}, 4, v6",
          f"v_cmp_gt_u32 vcc, 8, v{V_Q}", "v_subrev_u32 v7, 1024, v6", f"v_mov_b32 v31, {OOB}", "v_cndmask_b32 v7, v31, v7, vcc"])
    emit(acc_reads(1) + acc_reads(2))
    for qb in range(3):
        for s in range(3):
            k = 3 * qb + s
            a(f"s_waitcnt lgkmcnt({min(15, 2*(8-k) + 6)})")
            for i in range(8): a(f"v_add_f32 v{R(qb)+i}, v{R(qb)+i}, v{T(k)+i}")
        emit(pack(PK(qb) - 8 if qb < 2 else PK(0), qb))
        va, off = (7, 0) if qb == 2 else (6, (1 - qb) * 1024)
        a(f"buffer_store_dwordx4 {vr(PK(qb) - 8 if qb < 2 else PK(0),4)}, v{va}, s[12:15], s42 offen offset:{off} sc1")
    a("s_waitcnt lgkmcnt(0)")
    a("s_barrier")
    stamp()
    def list_done():
        a(f"s_add_u32 s{S_NB}, s{S_NB}, 31")
        a(f"s_lshr_b32 s{S_NB}, s{S_NB}, 5")
        a(f"v_lshl_add_u32 v{V_AD}, v{V_G}, 5, s{S_LIST}")
        a(f"v_lshl_add_u32 v{V_OH}, v{V_G}, 2, s{S_LIST}")
    def addr_reads(k, off):
        return [f"ds_read_b128 {vr(GA(k,0),4)}, v{V_AD} offset:{off}", f"ds_read_b128 {vr(GA(k,4),4)}, v{V_AD} offset:{off+16}"]
    def fire(k, regs, slot):
        g = [[f"s_add_u32 m0, s{S_RING}, {slot*8192 + i*1024}",
              f"v_bitop3_b32 v{GA(regs,i)}, v{GA(regs,i)}, v{9 + i%2}, s48 bitop3:0x28",
              f"buffer_load_dwordx4 v{GA(regs,i)}, s[52:55], 0 offen{PL} lds ; #b{k}"] for i in range(8)]
        g[0] = [f"s_cmp_gt_u32 s{S_NB}, {k}", f"s_cselect_b32 s54, {N*256}, 0"] + g[0]
        return g
    list_done()
    for k in range(2): emit([x + " ; #ga" for x in addr_reads(k, k * 128)])
    for n, qb in enumerate((3, 4)):
        for s in range(3): red_read(3 * n + s, s, qb)
    emit([f"v_lshrrev_b32 v9, 1, v{V_Q}", f"v_xor_b32 v9, v9, v{V_G}", "v_lshlrev_b32 v9, 5, v9", f"v_and_b32 v10, 1, v{V_Q}",
          "v_lshl_or_b32 v9, v10, 4, v9", "v_xor_b32 v10, 0x80, v9",
          "s_mov_b32 s48, 0xfffffff0", "s_mov_b32 s52, s8", "s_mov_b32 s53, s9", "s_mov_b32 s55, 0x00020000",
          f"s_mul_i32 s41, s{S_W}, 3072", f"s_add_u32 s41, s41, {OFR}", f"v_add_u32 v{V_OW}, s41, v{VOFF0}"])
    a("@wait lg ga")
    emit(acc_reads(3) + acc_reads(4))
    own = []
    for n, qb in enumerate((3, 4)):
        for s in range(3):
            k = 3 * n + s
            own.append(f"s_waitcnt lgkmcnt({2*(5-k)})")
            own += [f"v_add_f32 v{R(qb)+i}, v{R(qb)+i}, v{T(k)+i}" for i in range(8)]
    weave(own, fire(0, 0, 1))
    a("s_barrier")
    stamp()
    GW = lambda p, j: 96 + 32 * p + 4 * j
    OBP = lambda p: (92, 80)[p]
    def loads(k, slot, p, extra=()):
        m = [f"ds_read2_b32 {vr(OH(2*c),2)}, v{V_OH} offset0:{32*k + 16*(c%2) + 4*(c//2)} offset1:{32*k + 16*(c%2) + 4*(c//2) + 8}" for c in range(4)]
        m += list(extra)
        for j in range(16):
            m.append(f"ds_read_b64_tr_b16 {ar(GW(p,j//2)+2*(j%2),2)}, v{VA(j//2)} offset:{slot*8192 + (j%2)*4096}")
            if j == 7: m.append("s_waitcnt lgkmcnt(8)")
            if 8 <= j < 12:
                c = j - 8; o = OBP(p) + c
                m += [f"v_lshlrev_b32 v{o}, v{OH(2*c)}, v{V_HOT}", f"v_lshl_or_b32 v{o}, v11, v{OH(2*c+1)}, v{o}",
                      f"v_pk_ashrrev_i16 v{o}, 15, v{o} op_sel_hi:[0,1]", f"v_and_b32 v{o}, v{V_DEG}, v{o}"]
        return m
    def mults(p, first=False): return [f"{MF} {vr(AG(j),4)}, {ar(GW(p,j),4)}, {vr(OBP(p),4)}, {'0' if first else vr(AG(j),4)}" for j in range(8)]
    def stage(k, slot_next, groups=(), extra=()):
        a("s_waitcnt lgkmcnt(0)")
        mm = mults(k % 2, k == 0)
        emit(mm[:2] + sum(list(groups[:2]), []))
        a(f"@wait vm b{k+1}")
        ld = loads(k + 1, slot_next, (k + 1) % 2, extra)
        main = []
        for x, ins in enumerate(ld):
            main.append(ins)
            if x % 4 == 1 and len(mm) > 2: main.append(mm.pop(2))
        assert len(mm) == 2
        weave(main, list(groups[2:]))
    pre = [f"v_add_u32 v{V_OR}, {OFR}, v{VOFF0}"] + addr_reads(2, 2 * 128) + addr_reads(3, 3 * 128)
    pre += [f"v_lshlrev_b32 v11, 16, v{V_HOT}", f"v_lshl_or_b32 v{V_DEG}, v{V_DEG}, 16, v{V_DEG}",
            f"v_cmp_eq_u32 vcc, 0, v{V_G}", f"v_mov_b32 v{SEL}, 0x3f80", f"v_mov_b32 v{SEL+1}, 0", f"v_mov_b32 v{SEL+2}, 0", f"v_mov_b32 v{SEL+3}, 0",
            f"v_cndmask_b32 v{SEL}, 0, v{SEL}, vcc",
            "s_lshl_b32 s57, s2, 7", f"s_lshl_b32 s50, s{S_W}, 2", f"s_add_u32 s50, s50, {FLX_OFF}", "s_add_u32 s57, s57, s50",
            f"s_lshl_b32 s51, s{S_PART}, 7", "s_add_u32 s51, s51, s50", "s_mov_b32 s49, 0x40000", f"v_mov_b32 v2, s{S_TAG}"]
    pre2 = []
    for b in range(3):
        t = TMP
        pre2 += [f"v_add_u32 v{t}, {16*b-8}, v{V_Q}"] + ([f"v_max_i32 v{t}, 0, v{t}"] if b == 0 else [])
        pre2 += [f"v_mul_u32_u24 v{t+1}, 26, v{t}", f"v_lshrrev_b32 v{t+1}, 8, v{t+1}",
                 f"v_mul_u32_u24 v{t+2}, 10, v{t+1}", f"v_sub_u32 v{t}, v{t}, v{t+2}",
                 f"v_lshl_add_u32 v{t}, v{V_G}, 4, v{t}", f"v_lshlrev_b32 v{t}, 4, v{t}",
                 f"v_lshl_add_u32 v{V_BA+b}, v{t+1}, 15, v{t}"]
    pre2 += [f"v_add_u32 v{V_P1}, 8, v{V_Q}", f"v_lshlrev_b32 v{V_P1}, 6, v{V_P1}", f"v_lshl_add_u32 v{V_P1}, v{V_G}, 4, v{V_P1}",
             f"v_cmp_lt_u32 vcc, 7, v{V_Q}", f"v_subrev_u32 v{V_P0}, 1024, v{V_P1}", "s_mov_b32 s58, 0xffff0000",
             f"v_cndmask_b32 v{V_P0}, v31, v{V_P0}, vcc"]
    for s in range(4):
        pre2 += [f"s_add_u32 s41, s{S_W}, {s}", "s_and_b32 s41, s41, 3", "s_lshl_b32 s41, s41, 10", f"v_add_u32 v{3+s}, s41, v{V_RED}"]
    weave(pre, fire(1, 1, 2))
    a("s_waitcnt vmcnt(16)")
    a("s_mov_b64 exec, 1")
    a("buffer_store_dword v2, off, s[12:15], s57 sc1")
    a("s_mov_b64 exec, -1")
    a("s_waitcnt lgkmcnt(0)")
    weave(pre2, fire(2, 2, 3))
    flag = f"buffer_load_dword v{FLG}, off, s[12:15], s51 sc1"
    if PEARLY: a(flag + " ; #flag")
    a("@wait vm b0")
    emit(loads(0, 1, 0, addr_reads(0, 4 * 128) + addr_reads(1, 5 * 128)))
    stamp()
    FD = lambda b, hf: 160 + (b * 2 + hf) * 4
    PX = lambda b: 68 + 4 * b if False else (32, 36, 40)[b]
    xun = [[f"v_lshlrev_b32 v{FD(b,0)+2*c}, 16, v{XR(b)+c}", f"v_and_b32 v{FD(b,0)+2*c+1}, s58, v{XR(b)+c}"] for b in range(3) for c in range(4)]
    pl = [f"buffer_load_dwordx4 {vr(PX(b),4)}, v{V_P0 if b==0 else V_P1}, s[12:15], s43 offen offset:{(b//2)*1024} sc1 ; #p" for b in range(3)]
    def poll():
        a("@wait vm flag")
        a.label("L2_poll")
        a(f"v_readfirstlane_b32 s50, v{FLG}")
        a(f"s_cmp_eq_u32 s50, s{S_TAG}")
        a("s_cbranch_scc1 L2_got")
        a(flag + " ; #offpath")
        a("s_sub_u32 s49, s49, 1")
        a("s_waitcnt vmcnt(0)")
        a("s_cbranch_scc0 L2_poll")
        a.label("L2_got")
        emit(pl)
    merge = []
    for b in range(3):
        for c in range(4):
            merge += [[f"v_lshlrev_b32 v44, 16, v{PX(b)+c}", f"v_and_b32 v45, s58, v{PX(b)+c}",
                       f"v_add_f32 v44, v44, v{R(2+b)+2*c}", f"v_add_f32 v45, v45, v{R(2+b)+2*c+1}",
                       f"v_cvt_pk_bf16_f32 v{PK(b)+c}, v44, v45"] + ([f"ds_write_b128 v{V_OW}, {vr(PK(b),4)} offset:{b*1024}"] if c == 3 else [])]
    stage(0, 2, fire(3, 3, 0))
    if PEARLY: poll()
    else: a(flag + " ; #flag")
    stage(1, 3, fire(4, 0, 1))
    stage(2, 0, fire(5, 1, 2))
    stamp()
    if not PEARLY: poll()
    stamp()
    stage(3, 1, xun)
    if PEARLY:
        a("@wait vm p")
        emit(sum(merge, []))
    stage(4, 2)
    a("s_waitcnt lgkmcnt(0)")
    emit(mults(1))
    a(f"s_mov_b32 s{S_I}, 6")
    a(f"v_add_u32 v{V_AD}, {6*128}, v{V_AD}")
    a(f"v_add_u32 v{V_OH}, {6*128}, v{V_OH}")
    a.label("L2_more")
    a(f"s_cmp_ge_u32 s{S_I}, s{S_NB}")
    a("s_cbranch_scc1 L2_aggdone")
    emit(addr_reads(3, 0))
    a("s_waitcnt lgkmcnt(0)")
    for g in fire(0, 3, 0): emit(g)
    a("s_waitcnt vmcnt(0)")
    emit(loads(0, 0, 0))
    a("s_waitcnt lgkmcnt(0)")
    emit(mults(0))
    a(f"s_add_u32 s{S_I}, s{S_I}, 1")
    a(f"v_add_u32 v{V_AD}, 128, v{V_AD}")
    a(f"v_add_u32 v{V_OH}, 128, v{V_OH}")
    a("s_branch L2_more")
    a.label("L2_aggdone")
    a(f"s_max_u32 s41, s{S_C(0)}, s{S_C(1)}")
    for p in range(2, NPROD): a(f"s_max_u32 s41, s41, s{S_C(p)}")
    a("s_cmp_le_u32 s41, 64")
    a("s_cbranch_scc1 L2_aggend")
    for p in range(NPROD):
        a(f"s_min_u32 s41, s{S_C(p)}, 64")
        a(f"s_sub_u32 s{S_C(p)}, s{S_C(p)}, s41")
        a(f"s_add_u32 s{S_S(p)}, s{S_S(p)}, 256")
    emit(seg_scalars(False))
    a("s_waitcnt vmcnt(0)")
    emit([f"v_add_u32 v{U+6}, 1, v0", f"v_add_u32 v{U+7}, s{S_LIST}, v{V_L4}"])
    for p in range(NPROD): emit(seg_load(p))
    emit([f"v_lshl_add_u32 v{U+8}, s{S_NB}, 2, v{U+7}", f"v_mov_b32 v{U+9}, 0x7fffff0f", f"ds_write_b32 v{U+8}, v{U+9}"])
    a("s_waitcnt vmcnt(0)")
    for p in range(NPROD): emit(seg_store(p))
    list_done()
    a("s_mov_b32 s48, 0xfffffff0")
    a(f"s_mov_b32 s{S_I}, 0")
    a("s_branch L2_more")
    a.label("L2_aggend")
    stamp()
    for s in range(4):
        for c in range(4): a(f"v_cvt_pk_bf16_f32 v{GV(s)+c}, v{AG(2*s)+2*c}, v{AG(2*s)+2*c+1}")
        a(f"ds_write_b128 v{3+s}, {vr(GV(s),4)}")
    if not PEARLY:
        a("s_waitcnt vmcnt(0)")
        emit(sum(merge, []))
    a("s_waitcnt lgkmcnt(0)")
    a("s_barrier")
    BA = lambda b, ks: 96 + (b * 4 + ks) * 4
    for b in range(3):
        for ks in range(4): a(f"ds_read_b128 {ar(BO(b,ks),4)}, v{V_OR} offset:{ks*3072 + b*1024}")
        for ks in range(4): a(f"ds_read_b128 {vr(BA(b,ks),4)}, v{V_BA+b} offset:{ks*1024}")
    stamp()
    def finish(b):
        out = [f"v_fmac_f32 v{FD(b,0)+i}, v{FO(b,0)+i}, v{LD(b)}" for i in range(8)]
        out += [f"v_cvt_pk_bf16_f32 v{PK(b)+c}, v{FD(b,0)+2*c}, v{FD(b,0)+2*c+1}" for c in range(4)]
        out += [f"buffer_store_dwordx4 {vr(PK(b),4)}, v{V_ROW(b)}, s[20:23], 0 offen{ST2}"]
        return out
    fz = []
    for b in range(3):
        pj = [f"s_waitcnt lgkmcnt({min(15, 20-8*b)})", f"{MF} {vr(LD(b),4)}, {vr(SEL,4)}, {ar(BO(b,0),4)}, 0"]
        pj += [f"{MF} {vr(FO(b,hf),4)}, {ar(AM(0,hf,ks),4)}, {ar(BO(b,ks),4)}, {'0' if ks==0 else vr(FO(b,hf),4)}" for hf in range(2) for ks in range(4)]
        pj += [f"s_waitcnt lgkmcnt({min(15, 16-8*b)})"]
        pj += [f"{MF} {vr(FD(b,hf),4)}, {ar(AM(1,hf,ks),4)}, {vr(BA(b,ks),4)}, {vr(FD(b,hf),4)}" for hf in range(2) for ks in range(4)]
        for i, x in enumerate(pj):
            a(x)
            if i == 11: a(f"v_rcp_f32 v{LD(b)}, v{LD(b)}")
            elif i >= 3:
                for _ in range(2):
                    if fz: a(fz.pop(0))
        assert not fz
        fz = finish(b)
    emit(fz)
    a(f"s_or_b32 s41, s2, s{S_W}")
    a("s_cbranch_scc1 L2_notag")
    a(f"s_mov_b32 s41, {EPO_OFF}")
    a("s_mov_b64 exec, 1")
    a("buffer_store_dword v2, off, s[12:15], s41 sc1")
    a("s_mov_b64 exec, -1")
    a.label("L2_notag")
    if stamps:
        a("s_waitcnt vmcnt(0)")
        stamp()
        assert nst[0] <= 10
        a("s_memrealtime s[98:99]")
        a("s_waitcnt lgkmcnt(0)")
        a(f"s_lshl_b32 s40, s{S_TILE}, 1")
        a(f"s_add_u32 s40, s40, s{S_SPLIT}")
        a("s_lshl_b32 s40, s40, 2")
        a(f"s_add_u32 s40, s40, s{S_W}")
        a("s_lshl_b32 s40, s40, 6")
        srd(a, 8, 4, 1 << 20, ST_OFF)
        a("s_mov_b64 exec, 1")
        for i, r in enumerate([96, 98] + [64 + 2 * k for k in range(nst[0])]):
            a(f"v_mov_b32 v1, s{r}")
            a(f"buffer_store_dword v1, off, s[8:11], s40 offset:{4*i}")
    a.label("L2_end")
    a("s_endpgm")
    gen_helper(a, S_TAG, WS_BYTES)
def desc_k2(a):
    kernel_desc(a, NAME2, 512, 256, 102)
K2_LAUNCH = f"; @launch grid=({NWG},1,1) block=(256,1,1) lds={LDS2}"
```

```python
import math
N, D, E = 10000, 128, 160000
HP_OFF  = 0
MV_OFF  = 0x280000
MM_OFF  = 0x288000
FLH_OFF = 0x290000
FLX_OFF = 0x298000
EPO_OFF = 0x2a0000
TAB_OFF = 0x2a8000
SEG_OFF = 0x2b0000
XCH_OFF = 0x350000
XCH_WG  = 4 * 40 * 4 * 16
NPROD, EPP = 6, 26880
CH = 1.0 / (math.sqrt(128.0) - 1.0)
RS128 = 1.0 / math.sqrt(128.0)
QSCALE = math.log2(math.e) / math.sqrt(128.0)
import struct
def f32(x): return "0x%08x" % struct.unpack("<I", struct.pack("<f", x))[0]
A_X, A_SRC, A_DST, A_DEG, A_WMSG, A_WQ, A_WK, A_WV, A_WOUT, A_OUT, A_DBG, A_WS = [8 * i for i in range(12)]
```

```python
import sys
from kf import *
import hazard
import re
def resolve_waits(text):
    lines = text.split("\n")
    for i, l in enumerate(lines):
        m = re.match(r"\s*@wait (vm|lg) (\S+)", l)
        if not m: continue
        pre = ("buffer_", "global_") if m.group(1) == "vm" else ("ds_",)
        n = 0
        for k in range(i - 1, -1, -1):
            x = lines[k].strip()
            if x.startswith(pre):
                if x.endswith("#" + m.group(2)): break
                if not x.endswith("#offpath"): n += 1
        else: raise Exception("tag not found: " + l)
        lines[i] = f"    s_waitcnt vmcnt({min(n,63)})" if m.group(1) == "vm" else f"    s_waitcnt lgkmcnt({min(n,15)})"
    return "\n".join(re.sub(r"\s*; #\S+$", "", l) for l in lines)
def build_all(path, stamps=False, verbose=False):
    a = Asm()
    hdr = open("gather_scatter__hybrid_graph_tf_graphgps__graph.s.ref").read().split("\n")
    for l in hdr:
        if l.startswith("; Override") : break
        a.raw(l)
    a.raw(K2_LAUNCH)
    a.raw('.amdgcn_target "amdgcn-amd-amdhsa--gfx950"')
    gen_k2(a, stamps); desc_k2(a)
    rep = []
    t = hazard.fix(resolve_waits(a.text()), rep)
    if verbose:
        for r in rep: print(r)
    open(path, "w").write(t)
if __name__ == "__main__":
    build_all("gather_scatter__hybrid_graph_tf_graphgps__graph.s", False, True)
    import kf
    kf.SKIP = tuple(int(x) for x in sys.argv[1].split(",")) if len(sys.argv) > 1 else ()
    build_all("full_st.s", True)
```

```python
from asmlib import *
from layout import *
MF = "v_mfma_f32_16x16x32_bf16"
def dpp(op, d, s0, s1, ctl, rm="0xf", bc=False):
    return f"{op}_dpp v{d}, v{s0}, v{s1} {ctl} row_mask:{rm} bank_mask:0xf" + (" bound_ctrl:1" if bc else "")
def wave_scan(a, v):
    for k in (1, 2, 4, 8): a(dpp("v_add_u32", v, v, v, f"row_shr:{k}", bc=True))
    a(dpp("v_add_u32", v, v, v, "row_bcast:15", "0xa"))
    a(dpp("v_add_u32", v, v, v, "row_bcast:31", "0xc"))
def row_sum(a, vs):
    for k in (8, 4, 2, 1):
        for v in vs: a(dpp("v_add_f32", v, v, v, f"row_ror:{k}"))

def gen_helper(a, S_TAG, WS_BYTES):
    a.label("LH")
    a(f"s_load_dwordx4 s[8:11], s[0:1], {A_SRC}")
    a(f"s_load_dwordx2 s[16:17], s[0:1], {A_WMSG}")
    a(f"s_load_dwordx4 s[20:23], s[0:1], {A_WV}")
    a("v_mov_b32 v63, v0")
    a("v_lshrrev_b32 v1, 6, v0")
    a("v_and_b32 v0, 63, v0")
    a("s_sub_u32 s6, s2, 250")
    a("v_readfirstlane_b32 s3, v1")
    a("v_and_b32 v2, 15, v0")
    a("v_lshrrev_b32 v3, 4, v0")
    a("v_lshrrev_b32 v6, 1, v2")
    a("v_xor_b32 v6, v6, v3")
    a("v_lshlrev_b32 v6, 5, v6")
    a("v_and_b32 v7, 1, v2")
    a("v_lshl_or_b32 v6, v7, 4, v6")
    a("v_lshl_or_b32 v56, v3, 8, v6")
    a("v_xor_b32 v57, 0x80, v56")
    a("s_lshl_b32 s34, s3, 13")
    a("s_add_u32 s43, s34, 8192")
    a("s_add_u32 s35, s34, 4096")
    a("v_lshrrev_b32 v6, 1, v3")
    a("v_and_b32 v7, 1, v3")
    a("v_lshlrev_b32 v7, 4, v7")
    a("v_lshl_add_u32 v7, v2, 8, v7")
    a("v_add_u32 v7, s43, v7")
    a("v_and_b32 v4, 7, v2")
    for ks in range(4):
        a(f"v_add_u32 v5, {2*ks}, v6")
        a("v_xor_b32 v5, v5, v4")
        a(f"v_lshl_add_u32 v{52+ks}, v5, 5, v7")
    a("v_lshrrev_b32 v5, 3, v2")
    a("v_and_b32 v6, 3, v2")
    a("v_lshl_add_u32 v5, v5, 2, v6")
    a("v_bfe_u32 v6, v2, 2, 1")
    a("v_lshlrev_b32 v6, 12, v6")
    a("v_lshl_add_u32 v5, v5, 4, v6")
    a("v_lshl_add_u32 v5, v3, 8, v5")
    a("v_lshrrev_b32 v6, 2, v0")
    a("v_lshlrev_b32 v6, 8, v6")
    a("v_and_b32 v7, 3, v0")
    a("v_lshl_add_u32 v58, v7, 3, v6")
    a("s_lshl_b32 s36, s3, 10")
    a("v_lshl_add_u32 v59, v0, 3, s36")
    a("v_lshlrev_b32 v7, 8, v3")
    a("v_lshl_add_u32 v60, v2, 3, v7")
    a("s_lshl_b32 s36, s3, 8")
    a("v_lshl_add_u32 v61, v0, 2, s36")
    a("v_lshlrev_b32 v62, 2, v2")
    a("v_add_u32 v62, 4096, v62")
    a("s_waitcnt lgkmcnt(0)")
    a(f"s_add_u32 s48, s4, {EPO_OFF}")
    a("s_addc_u32 s49, s5, 0")
    a(f"s_load_dword s{S_TAG}, s[48:49], 0")
    srd(a, 12, 4, WS_BYTES)
    srd(a, 24, 22, 32768)
    a("s_mov_b32 s30, 32768")
    a("s_mov_b32 s31, 0x00020000")
    a("s_mov_b32 s7, s6")
    BIG = lambda t, ks: 64 + (t * 4 + ks) * 4
    SM = lambda ks: 16 + ks * 4
    DD = lambda t: 40 + 4 * t
    a.label("LH_task")
    a("s_cmp_lt_u32 s7, 8")
    a("s_cselect_b32 s28, s20, s16")
    a("s_cselect_b32 s29, s21, s17")
    a(f"s_mov_b32 s33, {MM_OFF}")
    a(f"s_cselect_b32 s33, {MV_OFF}, s33")
    a("s_and_b32 s37, s7, 7")
    a("s_lshl_b32 s38, s37, 5")
    a("s_add_u32 s38, s38, s34")
    a("s_add_u32 s39, s38, 4096")
    a("buffer_load_dwordx2 v[8:9], v58, s[24:27], s38 offen")
    a("buffer_load_dwordx2 v[10:11], v58, s[24:27], s39 offen")
    for half in range(2):
        a(f"s_add_u32 m0, s43, {half*4096}")
        for pc in range(4): a(f"buffer_load_dwordx4 v{56+pc%2}, s[28:31], s{34+half} offen offset:{pc*1024} lds")
    a("s_lshr_b32 s38, s37, 1")
    a("s_lshl_b32 s38, s38, 13")
    a("s_add_u32 s33, s33, s38")
    a("s_and_b32 s38, s37, 1")
    a("s_lshl_b32 s38, s38, 7")
    a("s_add_u32 s33, s33, s38")
    a("s_lshl_b32 s38, s3, 10")
    a("s_add_u32 s33, s33, s38")
    a("s_waitcnt vmcnt(8)")
    a("ds_write_b64 v59, v[8:9]")
    a("ds_write_b64 v59, v[10:11] offset:512")
    a("s_waitcnt vmcnt(0) lgkmcnt(0)")
    for t in range(2):
        for ks in range(4): a(f"ds_read_b128 {vr(BIG(t,ks),4)}, v{52+ks} offset:{t*4096}")
    a("s_barrier")
    for ks in range(4):
        for h in range(2): a(f"ds_read_b64_tr_b16 {vr(SM(ks)+2*h,2)}, v60 offset:{ks*1024 + h*128}")
    a("s_waitcnt lgkmcnt(0)")
    for t in range(2):
        for ks in range(4): a(f"{MF} {vr(DD(t),4)}, {vr(BIG(t,ks),4)}, {vr(SM(ks),4)}, {'0' if ks==0 else vr(DD(t),4)}")
    a(f"ds_write_b32 v61, v{DD(0)} offset:4096")
    a("s_waitcnt lgkmcnt(0)")
    a("s_barrier")
    a("ds_read_b32 v16, v62")
    a("s_waitcnt lgkmcnt(0)")
    for i in range(8): a(f"v_sub_f32 v{DD(0)+i}, v{DD(0)+i}, v16")
    for c in range(4): a(f"v_cvt_pk_bf16_f32 v{12+c}, v{DD(0)+2*c}, v{DD(0)+2*c+1}")
    a("buffer_store_dwordx4 v[12:15], v5, s[12:15], s33 offen sc1")
    a("s_add_u32 s7, s7, 6")
    a("s_cmp_lt_u32 s7, 16")
    a("s_barrier")
    a("s_cbranch_scc1 LH_task")
    NR, NI = 35, 3
    assert NR * NI * 256 == EPP
    STG = 8192
    srd(a, 16, 10, E * 4); srd(a, 20, 8, E * 4)
    a("v_lshlrev_b32 v1, 4, v63")
    for i in range(4): a(f"v_mov_b32 v{4+i}, 0")
    a("ds_write_b128 v1, v[4:7]")
    a(f"s_mul_i32 s33, s6, {EPP}")
    a("v_lshlrev_b32 v2, 2, v63")
    a("s_mov_b32 s40, 52429")
    a("v_mov_b32 v8, 1")
    a("v_lshrrev_b32 v3, 6, v63")
    a("v_lshlrev_b32 v3, 2, v3")
    DST = lambda i: 64 + i; SRC = lambda i: 104 + i; BK = lambda i: 144 + i
    def edge_loop(tag, body, with_src):
        a("s_mov_b32 s36, s33")
        a(f"s_mov_b32 s37, {NI}")
        a.label(tag)
        a("s_lshl_b32 s38, s36, 2")
        for i in range(NR):
            if i and i % 4 == 0: a("s_add_u32 s38, s38, 4096")
            a(f"buffer_load_dword v{DST(i)}, v2, s[16:19], s38 offen offset:{(i%4)*1024}")
            if with_src:
                if i == 28: a("s_waitcnt vmcnt(40)")
                a(f"buffer_load_dword v{SRC(i)}, v2, s[20:23], s38 offen offset:{(i%4)*1024}")
        a("v_add_u32 v9, s36, v63")
        a("s_waitcnt vmcnt(0)")
        body()
        a(f"s_add_u32 s36, s36, {NR*256}")
        a("s_sub_u32 s37, s37, 1")
        a("s_cmp_lg_u32 s37, 0")
        a(f"s_cbranch_scc1 {tag}")
    def bucket(i):
        a(f"v_mul_u32_u24 v{BK(i)}, s40, v{DST(i)}")
        a(f"v_lshrrev_b32 v{BK(i)}, 19, v{BK(i)}")
        a(f"v_cmp_gt_u32 vcc, {E - 256*i}, v9")
    def count():
        for i in range(NR):
            bucket(i)
            a(f"v_cndmask_b32 v10, v11, v{BK(i)}, vcc")
            a("v_lshlrev_b32 v10, 2, v10")
            a("ds_add_u32 v10, v8")
    a("v_mov_b32 v11, 1023")
    a("s_waitcnt lgkmcnt(0)")
    a("s_barrier")
    edge_loop("LH_count", count, False)
    a("s_waitcnt lgkmcnt(0)")
    a("s_barrier")
    a("ds_read_b128 v[4:7], v1")
    a("s_waitcnt lgkmcnt(0)")
    a("v_add_u32 v12, v4, v5")
    a("v_add_u32 v13, v12, v6")
    a("v_add_u32 v14, v13, v7")
    a("v_mov_b32 v15, v14")
    wave_scan(a, 15)
    a("v_cmp_eq_u32 vcc, 63, v0")
    a("s_and_saveexec_b64 s[44:45], vcc")
    a("ds_write_b32 v3, v15 offset:4096")
    a("s_mov_b64 exec, -1")
    a("v_mov_b32 v9, 0")
    a("v_sub_u32 v15, v15, v14")
    a("s_waitcnt lgkmcnt(0)")
    a("s_barrier")
    a("ds_read_b128 v[16:19], v9 offset:4096")
    a("s_waitcnt lgkmcnt(0)")
    for w in range(3):
        a(f"s_cmp_gt_u32 s3, {w}")
        a("s_cselect_b32 s39, 1, 0")
        a(f"v_mad_u32_u24 v15, v{16+w}, s39, v15")
    a("v_mov_b32 v16, v15")
    a("v_add_u32 v17, v15, v4")
    a("v_add_u32 v18, v15, v12")
    a("v_add_u32 v19, v15, v13")
    a("ds_write_b128 v1, v[16:19]")
    a("v_lshlrev_b32 v9, 7, v63")
    a("v_mov_b32 v10, 0x7fffff00")
    a("v_cmp_gt_u32 vcc, 250, v63")
    a("s_lshl_b32 s39, s6, 2")
    a(f"s_add_u32 s39, s39, {TAB_OFF}")
    a("v_cndmask_b32 v9, v10, v9, vcc")
    for i in range(4):
        a(f"v_lshl_or_b32 v{20+i}, v{4+i}, 16, v{16+i}")
        a(f"buffer_store_dword v{20+i}, v9, s[12:15], s39 offen offset:{32*i} sc1")
    a("s_waitcnt lgkmcnt(0)")
    a("s_barrier")
    def scatter():
        for i in range(NR):
            bucket(i)
            a(f"v_mul_u32_u24 v10, 10, v{BK(i)}")
            a(f"v_sub_u32 v{DST(i)}, v{DST(i)}, v10")
            a(f"v_cndmask_b32 v10, v11, v{BK(i)}, vcc")
            a("v_lshlrev_b32 v10, 2, v10")
            a(f"ds_add_rtn_u32 v{BK(i)}, v10, v8")
            a(f"v_and_b32 v10, 7, v{SRC(i)}")
            a(f"v_lshl_or_b32 v{DST(i)}, v10, 5, v{DST(i)}")
            a(f"v_lshl_or_b32 v{DST(i)}, v{SRC(i)}, 8, v{DST(i)}")
        a("s_waitcnt lgkmcnt(0)")
        for i in range(NR):
            a(f"v_lshlrev_b32 v{BK(i)}, 2, v{BK(i)}")
            a(f"ds_write_b32 v{BK(i)}, v{DST(i)} offset:{STG}")
    edge_loop("LH_scatter", scatter, True)
    a("s_waitcnt lgkmcnt(0)")
    a("s_barrier")
    a(f"s_mul_i32 s38, s6, {EPP*4}")
    a(f"s_add_u32 s38, s38, {SEG_OFF}")
    nq = EPP // 4
    a("v_mov_b32 v10, 0x7fffff00")
    a(f"v_cmp_gt_u32 vcc, {nq % 256}, v63")
    a("v_add_u32 v2, 65536, v1")
    a("v_cndmask_b32 v9, v10, v1, vcc")
    for i in range(nq // 256 + 1):
        off = STG + 4096 * i
        a(f"ds_read_b128 {vr(64+4*i,4)}, v{1 if off < 65536 else 2} offset:{off % 65536}")
    a("s_waitcnt lgkmcnt(0)")
    for i in range(nq // 256 + 1):
        a(f"buffer_store_dwordx4 {vr(64+4*i,4)}, v{1 if i < nq//256 else 9}, s[12:15], s38 offen sc1")
        a("s_add_u32 s38, s38, 4096")
    a("s_lshl_b32 s38, s2, 7")
    a("s_lshl_b32 s39, s3, 2")
    a("s_add_u32 s38, s38, s39")
    a(f"s_add_u32 s38, s38, {FLH_OFF}")
    a(f"s_add_u32 s{S_TAG}, s{S_TAG}, 0x9e3779b1")
    a(f"v_mov_b32 v1, s{S_TAG}")
    a("s_waitcnt vmcnt(0)")
    a("s_mov_b64 exec, 1")
    a("buffer_store_dword v1, off, s[12:15], s38 sc1")
    a("s_endpgm")
```

```python
from asmlib import *
from layout import *
from helper import wave_scan, row_sum, gen_helper
NAME2 = "gather_scatter__hybrid_graph_tf_graphgps__graph_kernel"
NWG = 256
NSTEP = 39
RING = 32768
SPARE = 4 * RING
LIST_B = 1088 * 4
LREG = SPARE + 4 * LIST_B
OFR = SPARE + 20480
LDS2 = OFR + 12288
ST2 = ' sc1'
SKIP = ()
PREFETCH = 1
REAL = 0
PUB, POLL, RDY, WK = 2, 2, 5, 0
XLATE = 0
WS_BYTES = XCH_OFF + NWG * XCH_WG
MF = "v_mfma_f32_16x16x32_bf16"
MF16 = "v_mfma_f32_16x16x16_bf16"
OOB = "0x7fffff00"
NORM2_MAX = 48.0
O = lambda j, qb: (qb * 8 + j) * 4
Q = lambda qb, ks: 160 + (qb * 4 + ks) * 4
AM = lambda m, hf, ks: 160 + ((m * 2 + hf) * 4 + ks) * 4
KF = lambda par, kb, ks: 32 + par * 32 + (kb * 4 + ks) * 4
VF = lambda par, j: 96 + par * 32 + j * 4
S = lambda par, kb: 160 + par * 8 + kb * 4
P = lambda n: 176 + (n % 2) * 4 if n % 4 < 2 else 232 + (n % 2) * 4
KA = lambda ks: 8 + ks
VA = lambda j: 12 + j
VOFF0, VOFF1 = 20, 21
V_TAB, V_L4, V_Q, V_G = 22, 23, 24, 25
V_DEG, V_HOT, V_RED = 26, 27, 1
V_ROW = lambda b: 28 + b
ENT = lambda j: 184 + j
CM = lambda qb: 200 + qb * 4
XR = lambda b: 220 + b * 4
LK = lambda ks: 184 + 4 * ks
LV = lambda j: 240 + 2 * j
LS, LP, LA = 200, 204, 244
U = 244
S_W, S_TILE, S_SPLIT, S_RING, S_KOFF, S_CNT, S_LEFT = 3, 28, 29, 30, 31, 33, 34
S_AM, S_LIST, S_NB, S_I, S_PART, S_TAG, S_KEY = 40, 45, 46, 47, 56, 59, 38
S_C = lambda p: 84 + p
S_S = lambda p: 90 + p
PL = ' sc1'
ST_OFF = 0x1000000
def red_off(s, qb, h):
    k = qb * 6 + (s - 1) * 2 + h
    return ((8 + k) % 32) * 1024

def gen_k2(a, stamps=False):
    nst = [0]
    seq = [0]
    def stamp():
        seq[0] += 1
        if not stamps or (SKIP and seq[0] in SKIP): return
        i = nst[0]; nst[0] += 1
        a(f"{'s_memrealtime' if REAL else 's_memtime'} s[{64+2*i}:{65+2*i}]")
    def emit(xs):
        for x in xs: a(x)
    def weave(main, groups, first=0):
        n = len(main) - first
        pos = {first + (k * n) // len(groups): g for k, g in enumerate(groups)} if groups else {}
        assert len(pos) == len(groups)
        for x, ins in enumerate(main):
            a(ins)
            emit(pos.get(x, []))
    kernel_begin(a, NAME2)
    a(f"s_cmp_ge_u32 s2, {NWG}")
    a("s_cbranch_scc1 L2_end")
    a(f"s_load_dwordx2 s[4:5], s[0:1], {A_WS}")
    a("s_cmp_ge_u32 s2, 250")
    a("s_cbranch_scc1 LH")
    a(f"s_load_dwordx2 s[16:17], s[0:1], {A_X}")
    a(f"s_load_dwordx4 s[60:63], s[0:1], {A_WQ}")
    a(f"s_load_dwordx2 s[20:21], s[0:1], {A_OUT}")
    a(f"s_load_dwordx2 s[24:25], s[0:1], {A_DEG}")
    if stamps: a("s_memrealtime s[96:97]")
    stamp()
    if PREFETCH:
        a("s_getpc_b64 s[42:43]")
        a.label("L2_pc")
        a("s_lshr_b32 s35, s2, 3")
        a("v_and_b32 v2, 7, v0")
        a("v_lshl_add_u32 v2, s35, 3, v2")
        a("v_lshlrev_b32 v2, 7, v2")
        a("v_mov_b32 v3, L2_slow-L2_pc")
        a("v_cmp_gt_u32 vcc, v3, v2")
        a("v_add_u32 v3, L2_epi-L2_slow, v2")
        a("v_cndmask_b32 v2, v3, v2, vcc")
        a("v_min_u32 v2, LH-L2_pc, v2")
        a("v_mov_b32 v3, s43")
        a("v_add_co_u32 v2, vcc, s42, v2")
        a("v_addc_co_u32 v3, vcc, 0, v3, vcc")
        a("global_load_dword v160, v[2:3], off")
    a("v_lshrrev_b32 v1, 6, v0")
    a("v_and_b32 v0, 63, v0")
    a(f"s_lshr_b32 s{S_TILE}, s2, 4")
    a(f"v_readfirstlane_b32 s{S_W}, v1")
    a(f"s_lshl_b32 s{S_TILE}, s{S_TILE}, 3")
    a("s_and_b32 s35, s2, 7")
    a(f"s_add_u32 s{S_TILE}, s{S_TILE}, s35")
    a(f"s_bfe_u32 s{S_SPLIT}, s2, 0x10003")
    a(f"s_xor_b32 s{S_PART}, s2, 8")
    a("s_sub_u32 s35, s2, 242")
    a("s_cmp_lt_u32 s35, 6")
    a("s_cbranch_scc0 L2_ids")
    a(f"s_and_b32 s{S_SPLIT}, s2, 1")
    a(f"s_xor_b32 s{S_PART}, s2, 1")
    a("s_lshr_b32 s35, s35, 1")
    a(f"s_add_u32 s{S_TILE}, s35, 122")
    a.label("L2_ids")
    a(f"v_and_b32 v{V_Q}, 15, v0")
    a(f"v_lshrrev_b32 v{V_G}, 4, v0")
    a(f"v_lshlrev_b32 v{VOFF0}, 4, v0")
    a(f"v_add_u32 v{VOFF1}, 4096, v{VOFF0}")
    a(f"s_lshl_b32 s{S_RING}, s{S_W}, 15")
    a(f"s_mul_i32 s36, s{S_TILE}, {80*256}")
    a(f"s_mul_i32 s35, s{S_SPLIT}, 10")
    a(f"s_add_u32 s35, s35, s{S_W}")
    SO = lambda i: 84 + i
    for i in range(5):
        a(f"s_add_u32 s{SO(i)}, s35, {4*i}")
        a(f"s_sub_u32 s41, s{SO(i)}, 20")
        a(f"s_cselect_b32 s{SO(i)}, s{SO(i)}, s41")
        a(f"s_lshl_b32 s{SO(i)}, s{SO(i)}, 10")
    a(f"v_lshrrev_b32 v2, 1, v{V_Q}")
    a(f"v_xor_b32 v2, v2, v{V_G}")
    a("v_lshlrev_b32 v2, 5, v2")
    a(f"v_and_b32 v3, 1, v{V_Q}")
    a("v_lshl_or_b32 v2, v3, 4, v2")
    a(f"v_lshl_or_b32 v218, v{V_G}, 8, v2")
    a("v_xor_b32 v219, 0x80, v218")
    a(f"s_and_b32 s41, s{S_W}, 1")
    a("s_lshl_b32 s41, s41, 7")
    a("v_xor_b32 v4, s41, v218")
    a("s_lshl_b32 s41, s2, 3")
    a("s_and_b32 s41, s41, 0x80")
    a("v_xor_b32 v218, s41, v218")
    a("v_xor_b32 v219, s41, v219")
    a(f"v_lshlrev_b32 v220, 6, v{V_G}")
    a(f"v_xor_b32 v220, v220, v{VOFF0}")
    a(f"s_lshl_b32 s50, s{S_W}, 13")
    a("s_waitcnt lgkmcnt(0)")
    stamp()
    a(f"s_mov_b32 s18, {N*256}")
    a("s_mov_b32 s19, 0x00020000")
    W = lambda i: 32 + 4 * i
    for i in range(5):
        a(f"s_add_u32 s41, s36, s{SO(i)}")
        a(f"buffer_load_dwordx4 {vr(W(i),4)}, v{VOFF0}, s[16:19], s41 offen ; #x{i}")
    a(f"s_add_u32 s48, s4, {EPO_OFF}")
    a("s_addc_u32 s49, s5, 0")
    a(f"s_load_dword s{S_TAG}, s[48:49], 0")
    RT = lambda pc: 90 + pc if pc < 6 else 94 + pc
    a("s_lshr_b32 s35, s2, 4")
    for pc in range(8):
        a(f"s_add_u32 s41, s35, {pc}")
        a("s_and_b32 s41, s41, 7")
        a(f"s_lshl_b32 s{RT(pc)}, s41, 10")
    def w_groups(m):
        tmp = Asm(); srd(tmp, 52, 60 + 2 * m, 32768)
        g = [[f"s_add_u32 m0, s51, s{RT(pc)}", f"s_add_u32 s48, s50, s{RT(pc)}",
              f"buffer_load_dwordx4 v{218 + (pc%2 if m else 2)}, s[52:55], s48 offen lds ; #w{m}"] for pc in range(8)]
        g[0] = [x.strip() for x in tmp.lines] + [f"s_add_u32 s51, s{S_RING}, {m*8192}"] + g[0]
        return g
    def w_dma(m):
        for g in w_groups(m): emit(g)
    w_dma(0)
    stamp()
    srd(a, 12, 4, WS_BYTES)
    srd(a, 8, 4, N * 256, HP_OFF)
    for s, nb in ((20, N * 256), (24, N * 2)):
        a(f"s_mov_b32 s{s+2}, {nb}")
        a(f"s_mov_b32 s{s+3}, 0x00020000")
    a(f"s_lshl_b32 s35, s{S_SPLIT}, 2")
    a(f"s_add_u32 s{S_KEY}, s35, s{S_W}")
    a(f"s_mul_i32 s{S_KOFF}, s{S_KEY}, {NSTEP*8192}")
    a(f"s_lshl_b32 s{S_AM}, s{S_W}, 13")
    a(f"s_add_u32 s{S_AM}, s{S_AM}, {MV_OFF}")
    a(f"s_lshl_b32 s39, s{S_TILE}, 3")
    a("s_add_u32 s39, s39, s35")
    a(f"s_xor_b32 s35, s{S_SPLIT}, 1")
    a("s_mul_i32 s37, s35, 15")
    a(f"v_xor_b32 v3, s37, v{V_Q}")
    a("s_mul_i32 s37, s35, 3")
    a(f"s_xor_b32 s48, s37, s{S_W}")
    a("s_add_u32 s39, s39, s48")
    a(f"s_mul_i32 s49, s35, {4*4096}")
    a("s_add_u32 s42, s36, s49")
    a(f"s_add_u32 s49, s49, {SPARE}")
    a("s_lshl_b32 s37, s35, 13")
    a("s_sub_u32 s37, 4096, s37")
    a(f"s_mul_i32 s{S_LEFT}, s35, 4")
    a(f"s_mul_i32 s{S_LEFT}, s{S_LEFT}, s{S_W}")
    a(f"s_add_u32 s{S_LEFT}, s{S_LEFT}, s{S_W}")
    a(f"s_mul_i32 s{S_LIST}, s{S_W}, {LIST_B}")
    a(f"s_add_u32 s{S_LIST}, s{S_LIST}, {SPARE}")
    a(f"v_lshrrev_b32 v5, 1, v{V_G}")
    a(f"v_and_b32 v6, 1, v{V_G}")
    a(f"v_lshrrev_b32 v2, 2, v{V_Q}")
    a(f"v_and_b32 v7, 3, v{V_Q}")
    a("v_lshlrev_b32 v5, 5, v5")
    a("v_lshl_add_u32 v200, v2, 3, v7")
    a("v_lshl_or_b32 v31, v6, 4, v5")
    a(f"s_add_u32 s41, s{S_RING}, 8192")
    fam = (("v3", "s49", 232), (f"v{V_Q}", f"s{S_RING}", KA(0)), ("v200", "s41", 204))
    for row, base, dst in fam: a(f"v_and_b32 v{dst+1}, 7, {row}")
    for row, base, dst in fam: a(f"v_lshl_add_u32 v{dst}, {row}, 8, {base}")
    for row, base, dst in fam: a(f"v_lshl_or_b32 v{dst}, v{dst+1}, 5, v{dst}")
    for row, base, dst in fam: a(f"v_xor_b32 v{dst}, v{dst}, v31")
    for ks in range(1, 4):
        for row, base, dst in fam: a(f"v_xor_b32 v{dst+ks}, {64*ks}, v{dst}")
    for ks in range(4): a(f"v_xor_b32 v{208+ks}, 0x480, v{204+ks}")
    a(f"v_lshlrev_b32 v5, 4, v7")
    a(f"v_lshl_add_u32 v5, v{V_G}, 11, v5")
    a("v_mul_u32_u24 v6, 0x140, v2")
    a(f"s_lshl_b32 s41, s{S_W}, 6")
    a("v_add_u32 v5, v5, v6")
    a("v_xor_b32 v212, s41, v5")
    a("v_add_u32 v213, 1024, v212")
    a(f"v_add_u32 v214, {2*RING}, v212")
    a(f"v_add_u32 v215, {2*RING+1024}, v212")
    a(f"v_lshl_add_u32 v2, v{V_G}, 2, v2")
    a(f"v_lshl_add_u32 v5, v7, 3, s{S_RING}")
    a("v_and_b32 v6, 7, v2")
    a("v_lshl_add_u32 v5, v2, 8, v5")
    a("v_lshl_or_b32 v5, v6, 5, v5")
    a(f"v_xor_b32 v{VA(0)}, s41, v5")
    for j in range(1, 8): a(f"v_xor_b32 v{VA(j)}, {32*j}, v{VA(0)}")
    a("v_lshlrev_b32 v3, 8, v3")
    a(f"v_lshl_add_u32 v3, v{V_G}, 4, v3")
    a(f"s_lshl_b32 s44, s{S_W}, 6")
    a("s_add_u32 s44, s44, s42")
    a("s_mul_i32 s43, s37, 3")
    a("s_add_u32 s44, s44, s43")
    a(f"v_add_u32 v{V_ROW(1)}, s44, v3")
    a(f"v_mov_b32 v3, {OOB}")
    a(f"v_cmp_lt_u32 vcc, 7, v{V_Q}")
    a(f"v_add_u32 v{V_ROW(2)}, s37, v{V_ROW(1)}")
    a(f"v_subrev_u32 v{V_ROW(0)}, s37, v{V_ROW(1)}")
    a(f"v_cndmask_b32 v{V_ROW(0)}, v3, v{V_ROW(0)}, vcc")
    a(f"v_sub_u32 v2, 9, v{V_Q}")
    a(f"s_cmp_eq_u32 s{S_SPLIT}, 1")
    a("s_cselect_b64 vcc, -1, 0")
    a("s_mul_i32 s44, s39, 10")
    a(f"v_cndmask_b32 v5, v2, v{V_Q}, vcc")
    a(f"v_cmp_gt_u32 vcc, 10, v{V_Q}")
    a("v_add_lshl_u32 v2, v5, s44, 1")
    a("v_sub_u32 v5, 15, v5")
    a("v_lshlrev_b32 v5, v5, 1")
    a(f"v_cndmask_b32 v{V_DEG}, v3, v2, vcc")
    a(f"v_cndmask_b32 v{V_HOT}, 0, v5, vcc")
    a(f"v_lshlrev_b32 v{V_L4}, 2, v0")
    a("s_lshl_b32 s39, s39, 5")
    a(f"s_add_u32 s39, s39, {TAB_OFF}")
    a(f"v_add_u32 v{V_RED}, s{S_RING}, v{VOFF0}")
    a(f"v_add_u32 v6, {2*RING}, v{VOFF0}")
    a(f"s_lshl_b32 s44, s{S_W}, 2")
    a(f"v_add_u32 v5, {OFR}, v{VOFF0}")
    a("v_add_u32 v2, s44, v5")
    def flag_addr(dst, r, tail):
        a(f"s_mul_i32 s41, {r}, 156")
        a("s_mul_i32 s41, s41, 52429")
        a("s_lshr_b32 s41, s41, 18")
        a(f"v_add_u32 v{dst}, s41, v0")
        a(f"v_min_u32 v{dst}, 249, v{dst}")
        a("v_cmp_gt_u32 vcc, 33, v0")
        emit(tail)
        a(f"v_cndmask_b32 v{dst}, v7, v{dst}, vcc")
        a(f"v_lshlrev_b32 v{dst}, 7, v{dst}")
    flag_addr(216, f"s{S_KEY}", ["v_mov_b32 v7, 249", "s_nop 0"])
    a(f"s_xor_b32 s44, s{S_KEY}, 4")
    flag_addr(V_TAB, "s44", ["v_and_b32 v7, 7, v0", "v_min_u32 v7, 5, v7", "v_add_u32 v7, 250, v7"])
    a(f"s_lshl_b32 s57, s{S_TILE}, 1")
    a(f"s_add_u32 s57, s57, s{S_SPLIT}")
    a("s_lshl_b32 s57, s57, 7")
    a(f"s_lshl_b32 s44, s{S_W}, 2")
    a("s_add_u32 s57, s57, s44")
    a(f"s_add_u32 s57, s57, {FLH_OFF}")
    a(f"s_mov_b32 s58, {FLH_OFF}")
    a(f"s_sub_u32 s35, s{S_LIST}, s{S_RING}")
    for i in range(12): a(f"v_add_u32 v{LA+i}, s35, v{KA(0)+i}")
    a(f"v_cmp_eq_u32 vcc, 0, v{V_Q}")
    a(f"s_mov_b32 s41, {f32(1.0/128)}")
    a(f"v_mov_b32 v217, {f32(1e-5)}")
    a("v_mov_b32 v221, 0x3f80")
    a("v_mov_b32 v31, 0xffff")
    a("v_cndmask_b32 v31, 0, v31, vcc")
    a("s_mov_b32 s43, 0xffff0000")
    a(f"s_cmp_lt_u32 s{S_W}, 2")
    a(f"s_cselect_b32 s44, s{SO(2)}, 0x7ff00000")
    if WK == 0: w_dma(1)
    X = lambda i, k: 64 + 8 * i + k
    A_, B_ = (lambda i: 136 + 2 * i), (lambda i: 146 + 2 * i)
    p2 = lambda r: vr(r, 2)
    def layernorm(I, own):
        for i in I:
            a(f"@wait vm x{i}")
            for c in range(4):
                a(f"v_lshlrev_b32 v{X(i,2*c)}, 16, v{W(i)+c}")
                a(f"v_and_b32 v{X(i,2*c+1)}, s43, v{W(i)+c}")
        if own: stamp()
        for i in I: a(f"v_pk_add_f32 {p2(A_(i))}, {p2(X(i,0))}, {p2(X(i,2))}")
        for i in I: a(f"v_pk_add_f32 {p2(B_(i))}, {p2(X(i,4))}, {p2(X(i,6))}")
        for i in I: a(f"v_pk_add_f32 {p2(A_(i))}, {p2(A_(i))}, {p2(B_(i))}")
        for i in I: a(f"v_add_f32 v{A_(i)}, v{A_(i)}, v{A_(i)+1}")
        row_sum(a, [A_(i) for i in I])
        for i in I: a(f"v_mul_f32 v{A_(i)}, s41, v{A_(i)}")
        for k in range(0, 8, 2):
            for i in I: a(f"v_pk_add_f32 {p2(X(i,k))}, {p2(X(i,k))}, {p2(A_(i))} op_sel_hi:[1,0] neg_lo:[0,1] neg_hi:[0,1]")
        for i in I: a(f"v_pk_mul_f32 {p2(B_(i))}, {p2(X(i,0))}, {p2(X(i,0))}")
        for k in range(2, 8, 2):
            for i in I: a(f"v_pk_fma_f32 {p2(B_(i))}, {p2(X(i,k))}, {p2(X(i,k))}, {p2(B_(i))}")
        for i in I: a(f"v_add_f32 v{B_(i)}, v{B_(i)}, v{B_(i)+1}")
        row_sum(a, [B_(i) for i in I])
        for i in I: a(f"v_fma_f32 v{B_(i)}, v{B_(i)}, s41, v217")
        for i in I: a(f"v_rsq_f32 v{B_(i)}, v{B_(i)}")
        for k in range(0, 8, 2):
            for i in I: a(f"v_pk_mul_f32 {p2(X(i,k))}, {p2(X(i,k))}, {p2(B_(i))} op_sel_hi:[1,0]")
        for i in I:
            a(f"s_add_u32 s42, s{SO(i)}, {SPARE}")
            a(f"v_add_u32 v{B_(i)}, s42, v4")
            for c in range(4): a(f"v_cvt_pk_bf16_f32 v{W(i)+c}, v{X(i,2*c)}, v{X(i,2*c+1)}")
            if own:
                a(f"v_bfi_b32 v{X(i,0)}, v31, v221, v{W(i)}")
                for c in range(1, 4): a(f"v_mov_b32 v{X(i,c)}, v{W(i)+c}")
                a(f"s_add_u32 s42, s36, s{SO(i) if i < 2 else 44}")
                a(f"buffer_store_dwordx4 {vr(X(i,0),4)}, v4, s[8:11], s42 offen sc1 ; #hp")
        for i in I: a(f"ds_write_b128 v{B_(i)}, {vr(W(i),4)}")
    layernorm(range(3), True)
    stamp()
    a("@wait vm w0")
    a("s_barrier")
    WQ = lambda hf, ks: 32 + (hf * 4 + ks) * 4
    for hf in range(2):
        for ks in range(4):
            for hh in range(2): a(f"ds_read_b64_tr_b16 {ar(WQ(hf,ks)+2*hh,2)}, v{212 + 2*(ks//2) + hh} offset:{(ks%2)*RING + 8*hf}")
    if WK == 1: w_dma(1)
    layernorm(range(3, 5), False)
    stamp()
    a("s_waitcnt lgkmcnt(0)")
    a(f"s_add_u32 s{S_TAG}, s{S_TAG}, 0x9e3779b1")
    publish = [f"v_mov_b32 v7, s{S_TAG}", "@wait vm hp",
               "buffer_store_dword v7, off, s[12:15], s57 sc1"]
    if PUB < 0: emit(publish)
    stamp()
    a("s_barrier")
    stamp()

    def dma(slot, piece, last=7):
        out = []
        half, sub = piece // 4, piece % 4
        if sub == 0: out.append(f"s_add_u32 m0, s{S_RING}, {slot*8192 + half*4096}")
        out.append(f"buffer_load_dwordx4 v{VOFF0+half}, s[8:11], s{S_KOFF} offen offset:{sub*1024}{PL} lds")
        if piece == last: out.append(f"s_add_u32 s{S_KOFF}, s{S_KOFF}, 8192")
        return out
    tagged = lambda grp, tag: [x + f" ; #{tag}" if x.startswith("buffer_") else x for x in grp]
    HB = lambda qb, ks: 32 + (qb * 4 + ks) * 4
    MA = lambda hf, ks: 112 + (hf * 4 + ks) * 4
    QD = lambda qb, hf: 144 + (qb * 2 + hf) * 4
    def ready(regs, addr, tag, wait):
        a(wait)
        a("s_mov_b32 s49, 0x40000")
        a.label(f"L2_rdy_{tag}")
        for i in range(4): a(f"v_xor_b32 v{regs+i}, s{S_TAG}, v{regs+i}")
        a(f"v_or3_b32 v{regs}, v{regs}, v{regs+1}, v{regs+2}")
        a(f"v_or_b32 v{regs}, v{regs}, v{regs+3}")
        a(f"v_cmp_ne_u32 vcc, 0, v{regs}")
        a("s_sub_u32 s49, s49, 1")
        a("s_cselect_b64 vcc, 0, vcc")
        a(f"s_cbranch_vccz L2_go_{tag}")
        a(f"buffer_load_dwordx4 {vr(regs,4)}, v{addr}, s[12:15], s58 offen{PL} ; #offpath")
        a("s_waitcnt vmcnt(0)")
        a(f"s_branch L2_rdy_{tag}")
        a.label(f"L2_go_{tag}")
    def pack_gaps(mf, mems, vals, vstart=1):
        cost = lambda x: 0 if x.startswith(("s_", "@")) else 8 if x.startswith(("buffer_", "ds_write_b128")) else 4
        for n, m in enumerate(mf):
            a(m)
            room = 8
            while mems and sum(map(cost, mems[0])) <= room and not (mems[0][-1].startswith("ds_write") and vals):
                room -= sum(map(cost, mems[0])); emit(mems.pop(0))
            while vals and room >= 4 and n >= vstart:
                a(vals.pop(0)); room -= 4
        emit(vals)
        for g in mems: emit(g)
    def gemm(blocks, reads, post, extra):
        for qb in range(5):
            x = extra.get(qb, [])
            if callable(x): x = x()
            rd = reads(qb + 2) if qb + 2 < 5 else []
            po = post(qb - 1) if qb else []
            a(f"@wait lg hb{qb}")
            pack_gaps(blocks(qb), [[y] for y in rd if y.startswith("ds_")] + x + [[y] for y in po if y.startswith("ds_")],
                      [y for y in rd + po if y.startswith("v_")], 2)
        x = extra.get(5, [])
        for g in (x() if callable(x) else x): emit(g)
        emit(post(4))
        a("s_waitcnt lgkmcnt(0)")
        a("s_barrier")
    def chain(d, A, qb): return [f"{MF} {vr(d,4)}, {ar(A(ks),4)}, {vr(HB(qb,ks),4)}, {'0' if ks==0 else vr(d,4)}" for ks in range(4)]
    def reads1(qb):
        return [f"ds_read_b128 {vr(HB(qb,ks),4)}, v{232+ks} ; #hb{qb}" for ks in range(4)] + ([f"v_add_u32 v{232+ks}, s37, v{232+ks}" for ks in range(4)] if qb < 4 else [])
    def post1(qb):
        return [f"v_cvt_pk_bf16_f32 v{QD(qb,0)+c}, v{QD(qb,0)+2*c}, v{QD(qb,0)+2*c+1}" for c in range(4)] + [f"ds_write_b128 v{V_RED}, {vr(QD(qb,0),4)} offset:{16384 + qb*1024}"]
    wk_reads = [f"ds_read_b128 {ar((hf*4+ks)*4,4)}, v{204 + 4*hf + ks}" for hf in range(2) for ks in range(4)]
    flag1 = f"buffer_load_dwordx4 v[236:239], v216, s[12:15], s58 offen{PL} ; #flag1"
    xl = [f"buffer_load_dwordx4 {vr(XR(b),4)}, v{V_ROW(b)}, s[16:19], 0 offen" for b in range(3)] + [f"buffer_load_ushort v{V_DEG}, v{V_DEG}, s[24:27], 0 offen"]
    emit(reads1(0) + reads1(1))
    gemm(lambda qb: chain(QD(qb, 0), lambda ks: WQ(0, ks), qb) + chain(QD(qb, 1), lambda ks: WQ(1, ks), qb), reads1, post1,
         {**({0: [publish] + w_groups(1)[:3], 1: w_groups(1)[3:5], 2: w_groups(1)[5:], 5: [["@wait vm w1"] + wk_reads]} if WK == 2 else
             {PUB: [publish], 3: [[y] for y in xl], 4: [["@wait vm w1", wk_reads[0]]] + [[y] for y in wk_reads[1:]]})})
    stamp()
    Z = lambda qb: 184 + 4 * qb
    def reads2(qb): return [f"ds_read_b128 {vr(HB(qb,ks),4)}, v{VOFF0 if ks<2 else 6} offset:{(ks%2)*RING + 16384 + qb*1024} ; #hb{qb}" for ks in range(4)]
    def post2(qb):
        q = QD(qb, 0); z = Z(qb)
        po = [f"v_mul_f32 v{z}, s44, v{z}", f"v_mul_f32 v{z+1}, v{q}, v{q}", f"v_mul_f32 v{z+2}, v{q+1}, v{q+1}"]
        for i in range(2, 8): po.append(f"v_fmac_f32 v{z+1+i%2}, v{q+i}, v{q+i}")
        po += [f"v_fma_f32 v{q+i}, v{q+i}, s41, v{z}" for i in range(8)]
        po += [f"v_add_f32 v{z+1}, v{z+1}, v{z+2}"] + [f"v_cvt_pk_bf16_f32 v{q+c}, v{q+2*c}, v{q+2*c+1}" for c in range(4)]
        po += [f"v_max_f32 v{Z(0)+1}, v{Z(0)+1}, v{z+1}"] if qb else []
        po += [f"ds_write_b128 v{V_RED}, {vr(q,4)} offset:{24576 + qb*1024}"]
        if qb == 4: po += [f"ds_write_b32 v2, v{Z(0)+1}"]
        return po
    def dma_rot(t, pc):
        g = [f"s_add_u32 s51, s{S_RING}, {t*8192}"] if pc == 0 else []
        g += [f"s_add_u32 m0, s51, s{RT(pc)}", f"s_add_u32 s48, s{S_KOFF}, s{RT(pc)}", f"buffer_load_dwordx4 v{VOFF0}, s[8:11], s48 offen{PL} lds ; #t{t}"]
        return g + ([f"s_add_u32 s{S_KOFF}, s{S_KOFF}, 8192"] if pc == 7 else [])
    tl = [dma_rot(pc // 8, pc % 8) for pc in range(24)]
    def first_tile():
        stamp()
        a("@wait vm flag1")
        for i in range(4): a(f"v_xor_b32 v{240+i}, s{S_TAG}, v{236+i}")
        a("v_or3_b32 v240, v240, v241, v242")
        a("v_or_b32 v240, v240, v243")
        a("v_cmp_ne_u32 vcc, 0, v240")
        a(f"s_mov_b32 s{S_CNT}, 0")
        a("s_nop 3")
        a("s_cbranch_vccnz L2_notyet")
        for g in tl[:8]: emit(g)
        a(f"s_mov_b32 s{S_CNT}, 1")
        a.label("L2_notyet")
        stamp()
        return []
    a(f"v_lshlrev_b32 v7, 4, v{V_G}")
    for ks in range(4): a(f"ds_read_b128 {ar(64+4*ks,4)}, v7 offset:{8192 + 64*ks}")
    emit(reads2(0) + reads2(1) + [f"s_mov_b32 s41, {f32(QSCALE)}", f"s_mov_b32 s44, {f32(-QSCALE)}"])
    gemm(lambda qb: chain(Z(qb), lambda ks: 64 + 4 * ks, qb) + chain(QD(qb, 0), lambda ks: 4 * ks, qb) + chain(QD(qb, 1), lambda ks: 16 + 4 * ks, qb),
         reads2, post2, {POLL: [[flag1]], RDY: first_tile})
    stamp()

    def kread(par, slot, j):
        kb, ks = j // 4, j % 4
        return f"ds_read_b128 {vr(KF(par,kb,ks),4)}, v{KA(ks)} offset:{slot*8192 + kb*4096}"
    def vread(par, slot, j):
        db, hf = j // 2, j % 2
        return f"ds_read_b64_tr_b16 {vr(VF(par,db)+2*hf,2)}, v{VA(db)} offset:{slot*8192 + hf*4096}"
    def qk(spar, kpar, qb, j, slow):
        kb, ks = j // 4, j % 4
        c = (vr(CM(qb), 4) if slow else "0") if ks == 0 else vr(S(spar, kb), 4)
        return f"{MF} {vr(S(spar,kb),4)}, {vr(KF(kpar,kb,ks),4)}, {ar(Q(qb,ks),4)}, {c}"
    def pv(n, vpar, qb, j, first=False):
        return f"{MF} {ar(O(j,qb),4)}, {vr(VF(vpar,j),4)}, {vr(P(n),4)}, {'0' if first else ar(O(j,qb),4)}"
    def qread(qb): return [f"ds_read_b128 {ar(Q(qb,ks),4)}, v{VOFF0 if ks<2 else 6} offset:{(ks%2)*RING + 24576 + qb*1024}" for ks in range(4)]
    a(f"ds_read_b128 v[188:191], v5 ; #nq")
    for qb in range(5): emit([x + " ; #q" for x in qread(qb)])
    a(f"s_cmp_eq_u32 s{S_CNT}, 1")
    a("s_cbranch_scc1 L2_fired")
    a(flag1.replace("#flag1", "#offpath"))
    ready(236, 216, "a", "s_waitcnt vmcnt(0)")
    for g in tl[:8]: emit([x.replace("#t0", "#offpath") for x in g])
    a.label("L2_fired")
    for g in tl[8:12]: emit(g)
    a("@wait lg nq")
    emit(["v_add_f32 v188, v188, v189", "v_add_f32 v190, v190, v191", "v_add_f32 v188, v188, v190", "v_mov_b32 v189, v188"])
    emit(tl[12])
    emit(["v_permlane32_swap_b32 v188, v189", "v_add_f32 v188, v188, v189", "v_mov_b32 v189, v188"])
    emit(tl[13])
    emit(["v_permlane16_swap_b32 v188, v189", "v_add_f32 v188, v188, v189", f"v_mov_b32 v189, {f32(NORM2_MAX / QSCALE**2)}", "v_cmp_nle_f32 vcc, v188, v189"])
    emit(tl[14] + tl[15])
    a("@wait vm t0")
    stamp()
    for j in range(8): a(kread(0, 0, j) + f" ; #k0{j//4}")
    vl = [vread(0, 0, j) + " ; #v0" for j in range(16)]
    emit(vl[:4])
    a("@wait lg q")
    a("s_barrier")
    a(f"s_mov_b32 s{S_CNT}, 8")
    for j in range(8):
        if j % 4 == 0: a(f"@wait lg k0{j//4}")
        a(qk(0, 0, 0, j, False))
        emit(tl[16 + j])
        if j < 6: emit(vl[4+2*j:6+2*j])
    a("s_cbranch_vccnz L2_slow")

    def red_write(s, qb, h): return f"ds_write_b128 v{V_RED}, {ar(O(2*s+h,qb),4)} offset:{red_off(s,qb,h)}"
    S_T = lambda p: 60 + p if p < 4 else 46 + p
    S_P = lambda p: 41 + p if p < 4 else 44 + p
    def seg_scalars(first):
        out = []
        for p in range(NPROD):
            if first:
                out += [f"s_and_b32 s{S_S(p)}, s{S_C(p)}, 0xffff", f"s_lshr_b32 s{S_C(p)}, s{S_C(p)}, 16"]
                out += [f"s_lshl2_add_u32 s{S_S(p)}, s{S_S(p)}, {SEG_OFF + p*EPP*4}"]
            out += [f"s_min_u32 s{S_T(p)}, s{S_C(p)}, 64"]
            out += [f"s_mov_b32 s{S_NB}, s{S_T(0)}"] if p == 0 else []
            if p: out += [f"s_lshl_b32 s{S_P(p)}, s{S_NB}, 2", f"s_add_u32 s{S_NB}, s{S_NB}, s{S_T(p)}"]
        return out
    def seg_load(p):
        return [f"v_sub_u32 v{U+p}, v{U+6}, s{S_T(p)} clamp", f"v_lshl_add_u32 v{ENT(8+p)}, v{U+p}, 26, v{V_L4}",
                f"buffer_load_dword v{ENT(p)}, v{ENT(8+p)}, s[12:15], s{S_S(p)} offen{PL} ; #ent"]
    def seg_store(p):
        return [f"v_lshl_add_u32 v{U+p}, v{U+p}, 18, v{U+7}"] + ([f"v_add_u32 v{U+p}, s{S_P(p)}, v{U+p}"] if p else []) + [f"ds_write_b32 v{U+p}, v{ENT(p)}"]
    NU = 5 * NSTEP
    def unit(n): return (0, n) if n < 5 else (1 + 2 * ((n - 5) // 10) + (n - 5) % 2, ((n - 5) % 10) // 2)
    def phase_mfmas(n, slow):
        qks = [None] * 8
        if n + 1 < NU:
            t1, q1 = unit(n + 1)
            qks = [qk((n + 1) % 2, t1 % 2, q1, j, slow) for j in range(8)]
        pvs = [None] * 8
        if 1 <= n <= 5: pvs = [pv(n - 1, 0, n - 1, j, True) for j in range(8)]
        elif n >= 7:
            h = (n - 7) % 2; n0 = n - 2 - h
            pvs = [pv(n0 + k, 1 - k, unit(n0)[1], 4 * h + jj) for jj in range(4) for k in range(2)]
        return qks[:4] + pvs[:4] + qks[4:] + pvs[4:]
    class Block:
        def __init__(b, n0, nph):
            b.n0, b.nph, b.len = n0, nph, 16 * nph
            b.sc = [[] for _ in range(b.len + 1)]; b.mem = [[] for _ in range(b.len)]; b.val = [[] for _ in range(b.len)]
            b.used = [8 if G % 2 == 0 else (4 if G % 4 == 3 else 0) for G in range(b.len)]
            b.hook = {}
        def cost(b, x): return 8 if x.startswith(("buffer_", "v_exp", "ds_write_b128")) else 4
        def put(b, G, x):
            (b.val if x.startswith("v_") else b.mem)[G].append(x); b.used[G] += b.cost(x)
        def place(b, items, G, sep=0, room=8, only=None):
            prev = None
            for x in items:
                grp = x if isinstance(x, list) else [x]
                y = next(z for z in grp if not z.startswith("s_"))
                if prev is not None: G += sep if sep else (1 if prev.startswith("v_") and not y.startswith("v_") else 0)
                while G % 2 == 0 or b.used[G] + b.cost(y) > room or (only and G % 4 != only): G += 1
                b.put(G, y)
                k = grp.index(y)
                b.sc[G - 1] += grp[:k]; b.sc[G + 1] += grp[k + 1:]
                prev = y
            return G
        def emit(b, slow):
            for p in range(b.nph):
                n = b.n0 + p
                mf = phase_mfmas(n, slow)
                if n < NU:
                    for e in range(8): b.val[16*p + 2*e].append(f"v_exp_f32 v{S(n%2,e//4)+e%4}, v{S(n%2,e//4)+e%4}")
                    for c in range(4): b.val[16*p + 4*c + 3].append(f"v_cvt_pk_bf16_f32 v{P(n)+c}, v{S(n%2,c//2)+2*(c%2)}, v{S(n%2,c//2)+2*(c%2)+1}")
                for i in range(16):
                    G = 16 * p + i
                    if mf[i]: a(mf[i])
                    emit(b.sc[G] + b.mem[G] + b.val[G])
                if p in b.hook: b.hook[p]()
            emit(b.sc[b.len])
    tg = lambda grp, tag: [x + f" ; #{tag}" if x.startswith("buffer_") else x for x in grp]
    kr = lambda t: [kread(t % 2, t % 4, j) + f" ; #k{t%2}{'ab'[j//4]}" for j in range(8)]
    def single(slow):
        b = Block(0, 5)
        b.sc[0].append("@wait vm t1")
        b.place(kr(1), 1)
        b.sc[14].append("@wait lg v0")
        b.place([vread(1, 1, j) + " ; #v1" for j in range(16)], 13, only=3)
        b.place([tg(dma(3, pc), "p1") for pc in range(8)] + [tg(dma(0, pc), "p1") for pc in range(4)], 17, 4)
        b.sc[62] += ["@wait lg k1b", "@wait vm t2"]
        b.place(kr(2), 65, only=1)
        b.sc[80].append("@wait lg k0a")
        b.emit(slow)
    def am_stage(slot):
        out = []
        for pc in range(8):
            hf, ks = pc // 4, pc % 4
            g = [f"s_add_u32 m0, s{S_RING}, {slot*8192 + hf*4096}"] if ks == 0 else []
            g.append(f"buffer_load_dwordx4 v{VOFF0+hf}, s[12:15], s{S_AM} offen offset:{ks*1024}{PL} lds ; #am{slot}")
            if pc == 7 and slot == 3: g.append(f"s_add_u32 s{S_AM}, s{S_AM}, {MM_OFF-MV_OFF}")
            out.append(g)
        return out
    ND = (NSTEP - 1) // 2
    def double(D, slow, tag):
        last = D == ND - 1
        tA, tB = 1 + 2 * D, 2 + 2 * D
        b = Block(5 + 10 * D, 12 if last else 10)
        b.sc[6].append("@wait lg k0b")
        lo = (lambda j: (7, 15)[j // 4]) if D == 0 else (lambda j: 7 + 8 * (j // 2))
        G = 7
        for j in range(8):
            for t in ((tB,) if D == 0 else (tA, tB)):
                for hf in range(2): G = b.place([vread(t % 2, t % 4, 2 * j + hf) + f" ; #vv{j//2}"], max(G, lo(j)))
        for k in range(4): b.sc[34 + 8 * k].append(f"@wait lg vv{k}")
        if D == 0:
            b.place([tg(dma(0, pc), "p1") for pc in range(4, 8)], 33, only=1)
        if D + 2 < ND:
            b.place([tg(dma((tA + pc // 8) % 4, pc % 8), f"p{D%2}") for pc in range(16)], 61, 4)
        if not last:
            b.sc[116].append(f"@wait vm p{(D+1)%2}")
            b.place(kr(tA + 2)[:4], 119, only=3)
            b.place(kr(tA + 2)[4:], 129)
            b.sc[142].append("@wait lg k1a")
            b.sc[150].append("@wait lg k1b")
            G = b.place(kr(tB + 2)[:4], 135, only=3)
            b.place(kr(tB + 2)[4:], 145)
            b.sc[158].append("@wait lg k0a")
        if D == 0:
            b.sc[48] += [f"s_mov_b32 s35, {8*NSTEP*8192}", f"s_mov_b32 m0, s{S_LIST}"]
            b.place([f"buffer_load_dwordx4 v{VOFF0}, s[8:11], s35 offen offset:{pc*1024}{PL} lds ; #left" for pc in range(4)], 49, room=12)
            b.sc[82].append("@wait vm left")
            rl = [f"ds_read_b128 {vr(LK(ks),4)}, v{LA+ks} ; #lk" for ks in range(4)] + [f"ds_read_b64_tr_b16 {ar(LV(j),2)}, v{LA+4+j} ; #lv" for j in range(8)]
            b.place(rl[:9], 83, only=3)
            b.place(rl[9:], 125)
            b.hook[6] = lambda: variants(f"L2_lq{tag}", lambda r: [f"{MF} {vr(LS if not slow else 240,4)}, {vr(LK(ks),4)}, {ar(Q(r,ks),4)}, {(vr(CM(r),4) if slow else '0') if ks==0 else vr(LS if not slow else 240,4)}" for ks in range(4)], ["@wait lg lk"])
            ls = LS if not slow else 240
            b.place([f"v_exp_f32 v{ls+e}, v{ls+e}" for e in range(4)] + [f"v_cvt_pk_bf16_f32 v{ls+c}, v{ls+2*c}, v{ls+2*c+1}" for c in range(2)], 137, room=16, only=1)
            b.hook[9] = lambda: variants(f"L2_lv{tag}", lambda r: [f"{MF16} {ar(O(j,r),4)}, {ar(LV(j),2)}, {vr(ls,2)}, {ar(O(j,r),4)}" for j in range(8)], ["@wait lg lv"])
        if D == 2:
            b.put(53, f"buffer_load_dwordx4 v[240:243], v{V_TAB}, s[12:15], s58 offen{PL} ; #flag2")
            b.sc[154].append(f"s_sub_u32 s{S_CNT}, s{S_CNT}, 1")
            b.sc[156].append(f"s_cmp_lg_u32 s{S_CNT}, 0")
        if D == ND - 2:
            b.put(1, f"buffer_load_dword v{V_TAB}, v{V_L4}, s[12:15], s39 offen{PL} ; #tab")
            b.place([f"v_add_u32 v{U+6}, 1, v0", f"v_add_u32 v{U+7}, s{S_LIST}, v{V_L4}"], 5)
            G = b.place(am_stage(3), 61)
            b.sc[48].append("@wait vm tab")
            b.place([f"v_readlane_b32 s{S_C(p)}, v{V_TAB}, {p}" for p in range(NPROD)], 49)
            for k, x in enumerate(seg_scalars(True)): b.sc[60 + 2 * k].append(x)
            for p in range(NPROD): G = b.place(seg_load(p), max(G, 74 + 12 * p), room=12)
        if last:
            b.place(am_stage(0)[:2], 1)
            G = b.place(am_stage(0)[2:], 49, room=12)
            b.place([f"v_lshl_add_u32 v{U+8}, s{S_NB}, 2, v{U+7}", f"v_mov_b32 v{U+9}, 0x7fffff0f", f"ds_write_b32 v{U+8}, v{U+9}"], 51, room=12)
            amr = lambda m: [f"ds_read_b128 {ar(AM(m,hf,ks),4)}, v{V_RED} offset:{(24576,0)[m] + hf*4096 + ks*1024}" for hf in range(2) for ks in range(4)]
            b.sc[62].append("@wait vm ent")
            b.place(amr(0), 63, only=3)
            for qb in range(4):
                b.place([red_write(s, qb, h) + (" ; #send" if qb < 3 else "") for s in range(1, 4) for h in range(2)], 69 + 32 * qb, 4) if qb < 3 else None
            for G, (s, h) in zip((165, 167, 173, 175, 181, 183), [(s, h) for s in range(1, 4) for h in range(2)]): b.mem[G].append(red_write(s, 3, h))
            G = 65
            for p in range(NPROD): G = b.place(seg_store(p), G, room=12)
            b.sc[110].append("@wait vm am0")
            b.place(amr(1), 111, only=3)
        b.emit(slow)

    def variants(tag, body, pre=()):
        emit(pre)
        a(f"s_cmp_ge_u32 s{S_LEFT}, 4")
        a(f"s_cbranch_scc1 {tag}_x")
        for r in range(3):
            a(f"s_cmp_eq_u32 s{S_LEFT}, {r}")
            a(f"s_cbranch_scc1 {tag}_{r}")
        for r in (3, 2, 1, 0):
            if r < 3: a.label(f"{tag}_{r}")
            emit(body(r))
            if r: a(f"s_branch {tag}_x")
        a.label(f"{tag}_x")
    def main_loop(slow):
        tag = "s" if slow else "f"
        if not slow: stamp()
        single(slow)
        double(0, slow, tag)
        a.raw(".p2align 6")
        a.label(f"L2_loop_{tag}")
        double(1, slow, tag)
        double(2, slow, tag)
        a(f"s_cbranch_scc1 L2_loop_{tag}")
        ready(240, V_TAB, "b" + tag, "@wait vm flag2")
        double(ND - 2, slow, tag)
        double(ND - 1, slow, tag)
        if not slow: a("s_branch L2_epi")
    main_loop(False)

    a.label("L2_slow")
    for k in range(4):
        a(f"v_add_u32 v216, {64*k}, v0")
        a("v_min_u32 v216, 249, v216")
        a("v_lshlrev_b32 v216, 7, v216")
        a(f"buffer_load_dwordx4 v[236:239], v216, s[12:15], s58 offen{PL}")
        ready(236, 216, f"c{k}", "s_waitcnt vmcnt(0)")
    a("s_waitcnt lgkmcnt(0)")
    for ks in range(4): a(f"v_subrev_u32 v{232+ks}, s{S_RING}, v{KA(ks)}")
    for qb in range(5): a(f"v_mov_b32 v{CM(qb)}, 0xff800000")
    a("s_mov_b32 s35, 0")
    a.label("L2_max")
    for ks in range(4): a(f"buffer_load_dwordx4 {vr(KF(1,0,ks),4)}, v{232+ks}, s[8:11], s35 offen{PL}")
    a("s_waitcnt vmcnt(0)")
    for qb in range(5):
        for ks in range(4): a(f"{MF} {vr(160+4*qb,4)}, {vr(KF(1,0,ks),4)}, {ar(Q(qb,ks),4)}, {'0' if ks==0 else vr(160+4*qb,4)}")
    for qb in range(5):
        a(f"v_max3_f32 v{CM(qb)}, v{CM(qb)}, v{160+4*qb}, v{161+4*qb}")
        a(f"v_max3_f32 v{CM(qb)}, v{CM(qb)}, v{162+4*qb}, v{163+4*qb}")
    a("s_add_u32 s35, s35, 4096")
    a(f"s_cmp_lt_u32 s35, {N*256}")
    a("s_cbranch_scc1 L2_max")
    for x in (16, 32):
        a(f"v_xor_b32 v2, {x}, v0")
        a("v_lshlrev_b32 v2, 2, v2")
        for qb in range(5): a(f"ds_bpermute_b32 v{CM(qb)+1}, v2, v{CM(qb)}")
        a("s_waitcnt lgkmcnt(0)")
        for qb in range(5): a(f"v_max_f32 v{CM(qb)}, v{CM(qb)}, v{CM(qb)+1}")
    for qb in range(5):
        a(f"v_sub_f32 v{CM(qb)}, 0, v{CM(qb)}")
        for r in range(1, 4): a(f"v_mov_b32 v{CM(qb)+r}, v{CM(qb)}")
    for j in range(8): a(qk(0, 0, 0, j, True))
    a("s_nop 7")
    main_loop(True)

    a.label("L2_epi")
    stamp()
    R = lambda qb: 32 + qb * 8
    T = lambda k: 72 + k * 8
    AG = lambda j: 96 + 4 * j
    GV = lambda j: 128 + 4 * j
    V_AD, V_OH, V_BA, TMP = 200, 201, 206, 210
    V_OW, V_OR, V_P0, V_P1 = 214, 215, 218, 219
    FLG, SEL = 232, 236
    PK = lambda b: 240 + 4 * b
    GA = lambda k, i: 160 + 8 * k + i
    OH = lambda i: 84 + i
    OB = 92
    BO = lambda b, ks: (b * 4 + ks) * 4
    BP = lambda b, ks: 48 + (b * 4 + ks) * 4
    FO = lambda b, hf: 32 + (b * 2 + hf) * 4
    LD = lambda b: 56 + 4 * b
    def acc_reads(qb): return [f"v_accvgpr_read_b32 v{R(qb)+4*h+r}, a{O(h,qb)+r}" for h in range(2) for r in range(4)]
    def pack(d, qb): return [f"v_cvt_pk_bf16_f32 v{d+c}, v{R(qb)+2*c}, v{R(qb)+2*c+1}" for c in range(4)]
    for s in range(1, 4): a(f"v_xor_b32 v{2+s}, {s*RING}, v{V_RED}")
    a("@wait lg send")
    a("s_barrier")
    stamp()
    def red_read(k, s, qb):
        for h in range(2): a(f"ds_read_b128 {vr(T(k)+4*h,4)}, v{3+s} offset:{red_off(s+1,qb,h)}")
    for qb in range(3):
        for s in range(3): red_read(3 * qb + s, s, qb)
    for s in range(1, 4):
        for h in range(2): a(red_write(s, 4, h))
    emit(acc_reads(0))
    emit([f"s_mul_i32 s42, s{S_PART}, {XCH_WG}", f"s_mul_i32 s43, s{S_W}, 2560", f"s_add_u32 s43, s43, {XCH_OFF}",
          "s_add_u32 s42, s42, s43",
          f"s_mul_i32 s44, s2, {XCH_WG}", "s_add_u32 s43, s43, s44",
          f"v_sub_u32 v6, 23, v{V_Q}", "v_lshlrev_b32 v6, 6, v6", f"v_lshl_add_u32 v6, v{V_G}, 4, v6",
          f"v_cmp_gt_u32 vcc, 8, v{V_Q}", "v_subrev_u32 v7, 1024, v6", f"v_mov_b32 v31, {OOB}", "v_cndmask_b32 v7, v31, v7, vcc"])
    emit(acc_reads(1) + acc_reads(2))
    xst = []
    SK = lambda qb: 240 + 4 * qb
    for qb in range(3):
        for s in range(3):
            k = 3 * qb + s
            a(f"s_waitcnt lgkmcnt({min(15, 2*(8-k) + 6)})")
            for i in range(8): a(f"v_add_f32 v{R(qb)+i}, v{R(qb)+i}, v{T(k)+i}")
        emit(pack(SK(qb), qb))
        va, off = (7, 0) if qb == 2 else (6, (1 - qb) * 1024)
        xst.append(f"buffer_store_dwordx4 {vr(SK(qb),4)}, v{va}, s[12:15], s42 offen offset:{off} sc1 ; #xst")
        if not XLATE: a(xst.pop())
    a("s_waitcnt lgkmcnt(0)")
    a("s_barrier")
    stamp()
    def list_done():
        a(f"s_add_u32 s{S_NB}, s{S_NB}, 31")
        a(f"s_lshr_b32 s{S_NB}, s{S_NB}, 5")
        a(f"v_lshl_add_u32 v{V_AD}, v{V_G}, 5, s{S_LIST}")
        a(f"v_lshl_add_u32 v{V_OH}, v{V_G}, 2, s{S_LIST}")
    def addr_reads(k, off):
        return [f"ds_read_b128 {vr(GA(k,0),4)}, v{V_AD} offset:{off}", f"ds_read_b128 {vr(GA(k,4),4)}, v{V_AD} offset:{off+16}"]
    def fire(k, regs, slot):
        g = [[f"s_add_u32 m0, s{S_RING}, {slot*8192 + i*1024}",
              f"v_bitop3_b32 v{GA(regs,i)}, v{GA(regs,i)}, v{9 + i%2}, s48 bitop3:0x28",
              f"buffer_load_dwordx4 v{GA(regs,i)}, s[52:55], 0 offen{PL} lds ; #b{k}"] for i in range(8)]
        g[0] = [f"s_cmp_gt_u32 s{S_NB}, {k}", f"s_cselect_b32 s54, {N*256}, 0"] + g[0]
        return g
    list_done()
    for k in range(2): emit([x + " ; #ga" for x in addr_reads(k, k * 128)])
    for n, qb in enumerate((3, 4)):
        for s in range(3): red_read(3 * n + s, s, qb)
    emit([f"v_lshrrev_b32 v9, 1, v{V_Q}", f"v_xor_b32 v9, v9, v{V_G}", "v_lshlrev_b32 v9, 5, v9", f"v_and_b32 v10, 1, v{V_Q}",
          "v_lshl_or_b32 v9, v10, 4, v9", "v_xor_b32 v10, 0x80, v9",
          "s_mov_b32 s48, 0xfffffff0", "s_mov_b32 s52, s8", "s_mov_b32 s53, s9", "s_mov_b32 s55, 0x00020000",
          f"s_mul_i32 s41, s{S_W}, 3072", f"s_add_u32 s41, s41, {OFR}", f"v_add_u32 v{V_OW}, s41, v{VOFF0}"])
    a("@wait lg ga")
    if XLATE: weave(acc_reads(3) + acc_reads(4), fire(0, 0, 1))
    else: emit(acc_reads(3) + acc_reads(4))
    own = []
    for n, qb in enumerate((3, 4)):
        for s in range(3):
            k = 3 * n + s
            own.append(f"s_waitcnt lgkmcnt({2*(5-k)})")
            own += [f"v_add_f32 v{R(qb)+i}, v{R(qb)+i}, v{T(k)+i}" for i in range(8)]
    weave(own, fire(1, 1, 2) if XLATE else fire(0, 0, 1))
    emit(xst)
    a("s_barrier")
    stamp()
    GW = lambda p, j: 96 + 32 * p + 4 * j
    OBP = lambda p: (92, 80)[p]
    def loads(k, slot, p, extra=()):
        m = [f"ds_read2_b32 {vr(OH(2*c),2)}, v{V_OH} offset0:{32*k + 16*(c%2) + 4*(c//2)} offset1:{32*k + 16*(c%2) + 4*(c//2) + 8}" for c in range(4)]
        m += list(extra)
        for j in range(16):
            m.append(f"ds_read_b64_tr_b16 {ar(GW(p,j//2)+2*(j%2),2)}, v{VA(j//2)} offset:{slot*8192 + (j%2)*4096}")
            if j == 7: m.append("s_waitcnt lgkmcnt(8)")
            if 8 <= j < 12:
                c = j - 8; o = OBP(p) + c
                m += [f"v_lshlrev_b32 v{o}, v{OH(2*c)}, v{V_HOT}", f"v_lshl_or_b32 v{o}, v11, v{OH(2*c+1)}, v{o}",
                      f"v_pk_ashrrev_i16 v{o}, 15, v{o} op_sel_hi:[0,1]", f"v_and_b32 v{o}, v{V_DEG}, v{o}"]
        return m
    def mults(p, first=False): return [f"{MF} {vr(AG(j),4)}, {ar(GW(p,j),4)}, {vr(OBP(p),4)}, {'0' if first else vr(AG(j),4)}" for j in range(8)]
    def stage(k, slot_next, groups=(), extra=()):
        a("s_waitcnt lgkmcnt(0)")
        mm = mults(k % 2, k == 0)
        emit(mm[:2] + sum(list(groups[:2]), []))
        a(f"@wait vm b{k+1}")
        ld = loads(k + 1, slot_next, (k + 1) % 2, extra)
        main = []
        for x, ins in enumerate(ld):
            main.append(ins)
            if x % 4 == 1 and len(mm) > 2: main.append(mm.pop(2))
        assert len(mm) == 2
        weave(main, list(groups[2:]))
    pre = [f"v_add_u32 v{V_OR}, {OFR}, v{VOFF0}"] + addr_reads(2, 2 * 128) + addr_reads(3, 3 * 128)
    pre += [f"v_lshlrev_b32 v11, 16, v{V_HOT}", f"v_lshl_or_b32 v{V_DEG}, v{V_DEG}, 16, v{V_DEG}",
            f"v_cmp_eq_u32 vcc, 0, v{V_G}", f"v_mov_b32 v{SEL}, 0x3f80", f"v_mov_b32 v{SEL+1}, 0", f"v_mov_b32 v{SEL+2}, 0", f"v_mov_b32 v{SEL+3}, 0",
            f"v_cndmask_b32 v{SEL}, 0, v{SEL}, vcc",
            "s_lshl_b32 s57, s2, 7", f"s_lshl_b32 s50, s{S_W}, 2", f"s_add_u32 s50, s50, {FLX_OFF}", "s_add_u32 s57, s57, s50",
            f"s_lshl_b32 s51, s{S_PART}, 7", "s_add_u32 s51, s51, s50", "s_mov_b32 s49, 0x40000", f"v_mov_b32 v2, s{S_TAG}"]
    pre2 = []
    for b in range(3):
        t = TMP
        pre2 += [f"v_add_u32 v{t}, {16*b-8}, v{V_Q}"] + ([f"v_max_i32 v{t}, 0, v{t}"] if b == 0 else [])
        pre2 += [f"v_mul_u32_u24 v{t+1}, 26, v{t}", f"v_lshrrev_b32 v{t+1}, 8, v{t+1}",
                 f"v_mul_u32_u24 v{t+2}, 10, v{t+1}", f"v_sub_u32 v{t}, v{t}, v{t+2}",
                 f"v_lshl_add_u32 v{t}, v{V_G}, 4, v{t}", f"v_lshlrev_b32 v{t}, 4, v{t}",
                 f"v_lshl_add_u32 v{V_BA+b}, v{t+1}, 15, v{t}"]
    pre2 += [f"v_add_u32 v{V_P1}, 8, v{V_Q}", f"v_lshlrev_b32 v{V_P1}, 6, v{V_P1}", f"v_lshl_add_u32 v{V_P1}, v{V_G}, 4, v{V_P1}",
             f"v_cmp_lt_u32 vcc, 7, v{V_Q}", f"v_subrev_u32 v{V_P0}, 1024, v{V_P1}", "s_mov_b32 s58, 0xffff0000",
             f"v_cndmask_b32 v{V_P0}, v31, v{V_P0}, vcc"]
    for s in range(4):
        pre2 += [f"s_lshl_b32 s41, s{S_W}, 10", f"v_add_u32 v3, s41, v{V_RED}"] if s == 0 else [f"v_xor_b32 v{3+s}, {s*1024}, v3"]
    publish2 = ["@wait vm xst",
                "buffer_store_dword v2, off, s[12:15], s57 sc1"]
    flag = f"buffer_load_dword v{FLG}, off, s[12:15], s51 sc1"
    if XLATE:
        emit(pre)
        a("s_waitcnt lgkmcnt(0)")
        weave(pre2, fire(2, 2, 3))
    else:
        weave(pre, fire(1, 1, 2))
        emit(publish2)
        a("s_waitcnt lgkmcnt(0)")
        weave(pre2, fire(2, 2, 3))
    a("@wait vm b0")
    emit(loads(0, 1, 0, addr_reads(0, 4 * 128) + addr_reads(1, 5 * 128)))
    if XLATE: emit(publish2)
    stamp()
    FD = lambda b, hf: 160 + (b * 2 + hf) * 4
    PX = lambda b: 68 + 4 * b if False else (32, 36, 40)[b]
    xun = [[f"v_lshlrev_b32 v{FD(b,0)+2*c}, 16, v{XR(b)+c}", f"v_and_b32 v{FD(b,0)+2*c+1}, s58, v{XR(b)+c}"] for b in range(3) for c in range(4)]
    pl = [f"buffer_load_dwordx4 {vr(PX(b),4)}, v{V_P0 if b==0 else V_P1}, s[12:15], s43 offen offset:{(b//2)*1024} sc1 ; #p" for b in range(3)]
    def poll():
        a("@wait vm flag")
        a.label("L2_poll")
        a(f"v_readfirstlane_b32 s50, v{FLG}")
        a(f"s_cmp_eq_u32 s50, s{S_TAG}")
        a("s_cbranch_scc1 L2_got")
        a(flag + " ; #offpath")
        a("s_sub_u32 s49, s49, 1")
        a("s_waitcnt vmcnt(0)")
        a("s_cbranch_scc0 L2_poll")
        a.label("L2_got")
        emit(pl)
    merge = []
    for b in range(3):
        for c in range(4):
            merge += [[f"v_dot2_f32_bf16 v{R(2+b)+2*c}, v{PX(b)+c}, s41, v{R(2+b)+2*c}", f"v_dot2_f32_bf16 v{R(2+b)+2*c+1}, v{PX(b)+c}, 1.0, v{R(2+b)+2*c+1}"]]
        merge += [pack(PK(b), 2 + b) + [f"ds_write_b128 v{V_OW}, {vr(PK(b),4)} offset:{b*1024}"]]
    merge = [["s_mov_b32 s41, 0x3f80", "s_mov_b32 s42, 0x3f800000"]] + [[y.replace(", 1.0,", ", s42,") for y in x] for x in merge]
    stage(0, 2, fire(3, 3, 0))
    if not XLATE: a(flag + " ; #flag")
    stage(1, 3, fire(4, 0, 1))
    if XLATE: a(flag + " ; #flag")
    stage(2, 0, fire(5, 1, 2))
    stamp()
    a(f"s_cmp_le_u32 s{S_NB}, 6")
    a("s_cbranch_scc1 L2_no7a")
    emit(addr_reads(3, 6 * 128))
    a("s_waitcnt lgkmcnt(0)")
    for g in fire(6, 3, 3): emit([x.replace("#b6", "#offpath") for x in g])
    a.label("L2_no7a")
    poll()
    stamp()
    stage(3, 1, xun)
    stage(4, 2)
    a("s_waitcnt lgkmcnt(0)")
    emit(mults(1))
    a(f"s_cmp_le_u32 s{S_NB}, 6")
    a("s_cbranch_scc1 L2_aggdone")
    a("s_waitcnt vmcnt(3)")
    emit(loads(6, 3, 0))
    a("s_waitcnt lgkmcnt(0)")
    emit(mults(0))
    a(f"s_mov_b32 s{S_I}, 7")
    a(f"v_add_u32 v{V_AD}, {7*128}, v{V_AD}")
    a(f"v_add_u32 v{V_OH}, {7*128}, v{V_OH}")
    a.label("L2_more")
    a(f"s_cmp_ge_u32 s{S_I}, s{S_NB}")
    a("s_cbranch_scc1 L2_aggdone")
    emit(addr_reads(3, 0))
    a("s_waitcnt lgkmcnt(0)")
    for g in fire(0, 3, 0): emit(g)
    a("s_waitcnt vmcnt(0)")
    emit(loads(0, 0, 0))
    a("s_waitcnt lgkmcnt(0)")
    emit(mults(0))
    a(f"s_add_u32 s{S_I}, s{S_I}, 1")
    a(f"v_add_u32 v{V_AD}, 128, v{V_AD}")
    a(f"v_add_u32 v{V_OH}, 128, v{V_OH}")
    a("s_branch L2_more")
    a.label("L2_aggdone")
    a(f"s_max_u32 s41, s{S_C(0)}, s{S_C(1)}")
    for p in range(2, NPROD): a(f"s_max_u32 s41, s41, s{S_C(p)}")
    a("s_cmp_le_u32 s41, 64")
    a("s_cbranch_scc1 L2_aggend")
    for p in range(NPROD):
        a(f"s_min_u32 s41, s{S_C(p)}, 64")
        a(f"s_sub_u32 s{S_C(p)}, s{S_C(p)}, s41")
        a(f"s_add_u32 s{S_S(p)}, s{S_S(p)}, 256")
    emit(seg_scalars(False))
    a("s_waitcnt vmcnt(0)")
    emit([f"v_add_u32 v{U+6}, 1, v0", f"v_add_u32 v{U+7}, s{S_LIST}, v{V_L4}"])
    for p in range(NPROD): emit(seg_load(p))
    emit([f"v_lshl_add_u32 v{U+8}, s{S_NB}, 2, v{U+7}", f"v_mov_b32 v{U+9}, 0x7fffff0f", f"ds_write_b32 v{U+8}, v{U+9}"])
    a("s_waitcnt vmcnt(0)")
    for p in range(NPROD): emit(seg_store(p))
    list_done()
    a("s_mov_b32 s48, 0xfffffff0")
    a(f"s_mov_b32 s{S_I}, 0")
    a("s_branch L2_more")
    a.label("L2_aggend")
    stamp()
    for s in range(4):
        for c in range(4): a(f"v_cvt_pk_bf16_f32 v{GV(s)+c}, v{AG(2*s)+2*c}, v{AG(2*s)+2*c+1}")
        a(f"ds_write_b128 v{3+s}, {vr(GV(s),4)}")
    a("s_waitcnt vmcnt(0)")
    emit(sum(merge, []))
    a("s_waitcnt lgkmcnt(0)")
    a("s_barrier")
    BA = lambda b, ks: 96 + (b * 4 + ks) * 4
    for b in range(3):
        for ks in range(4): a(f"ds_read_b128 {ar(BO(b,ks),4)}, v{V_OR} offset:{ks*3072 + b*1024}")
        for ks in range(4): a(f"ds_read_b128 {vr(BA(b,ks),4)}, v{V_BA+b} offset:{ks*1024}")
    stamp()
    def finish(b):
        out = [f"v_fmac_f32 v{FD(b,0)+i}, v{FO(b,0)+i}, v{LD(b)}" for i in range(8)]
        out += [f"v_cvt_pk_bf16_f32 v{PK(b)+c}, v{FD(b,0)+2*c}, v{FD(b,0)+2*c+1}" for c in range(4)]
        out += [f"buffer_store_dwordx4 {vr(PK(b),4)}, v{V_ROW(b)}, s[20:23], 0 offen{ST2}"]
        return out
    fz = []
    for b in range(3):
        pj = [f"s_waitcnt lgkmcnt({min(15, 20-8*b)})", f"{MF} {vr(LD(b),4)}, {vr(SEL,4)}, {ar(BO(b,0),4)}, 0"]
        pj += [f"{MF} {vr(FO(b,hf),4)}, {ar(AM(0,hf,ks),4)}, {ar(BO(b,ks),4)}, {'0' if ks==0 else vr(FO(b,hf),4)}" for hf in range(2) for ks in range(4)]
        pj += [f"s_waitcnt lgkmcnt({min(15, 16-8*b)})"]
        pj += [f"{MF} {vr(FD(b,hf),4)}, {ar(AM(1,hf,ks),4)}, {vr(BA(b,ks),4)}, {vr(FD(b,hf),4)}" for hf in range(2) for ks in range(4)]
        for i, x in enumerate(pj):
            a(x)
            if i == 11: a(f"v_rcp_f32 v{LD(b)}, v{LD(b)}")
            elif i >= 3:
                for _ in range(2):
                    if fz: a(fz.pop(0))
        assert not fz
        fz = finish(b)
    stamp()
    emit(fz)
    stamp()
    a(f"s_or_b32 s41, s2, s{S_W}")
    a("s_cbranch_scc1 L2_notag")
    a(f"s_mov_b32 s41, {EPO_OFF}")
    a("s_mov_b64 exec, 1")
    a("buffer_store_dword v2, off, s[12:15], s41 sc1")
    a("s_mov_b64 exec, -1")
    a.label("L2_notag")
    if stamps:
        a("s_waitcnt vmcnt(0)")
        stamp()
        assert nst[0] <= 10
        a("s_memrealtime s[98:99]")
        a("s_waitcnt lgkmcnt(0)")
        a(f"s_lshl_b32 s40, s{S_TILE}, 1")
        a(f"s_add_u32 s40, s40, s{S_SPLIT}")
        a("s_lshl_b32 s40, s40, 2")
        a(f"s_add_u32 s40, s40, s{S_W}")
        a("s_lshl_b32 s40, s40, 6")
        srd(a, 8, 4, 1 << 20, ST_OFF)
        a("s_mov_b64 exec, 1")
        for i, r in enumerate([96, 98] + [64 + 2 * k for k in range(nst[0])]):
            a(f"v_mov_b32 v1, s{r}")
            a(f"buffer_store_dword v1, off, s[8:11], s40 offset:{4*i}")
    a.label("L2_end")
    a("s_endpgm")
    gen_helper(a, S_TAG, WS_BYTES)
def desc_k2(a):
    kernel_desc(a, NAME2, 512, 256, 102)
K2_LAUNCH = f"; @launch grid=({NWG},1,1) block=(256,1,1) lds={LDS2}"
```

```python
import buildf, kf, sys
kf.REAL = 0
keep = (14,15,16,17,18,19,20,22,23,26)
kf.SKIP = tuple(i for i in range(1, 40) if i not in keep)
buildf.build_all(f"fa_st.s", True)
keep = (14,15)
kf.SKIP = tuple(i for i in range(1, 40) if i not in keep)
buildf.build_all(f"fb_st.s", True)
t = open("fb_st.s").read()
t = t.replace("s_memtime s[66:67]", "s_memtime s[72:73]")
t = t.replace(".p2align 6\nL2_loop_f:", "    s_memtime s[66:67]\n.p2align 6\nL2_loop_f:")
t = t.replace("    s_cbranch_scc1 L2_loop_f\n", "    s_cbranch_scc1 L2_loop_f\n    s_memtime s[68:69]\n")
i = t.index("    s_add_u32 m0, s30, 0\n", t.index("L2_go_bf:"))
t = t[:i] + "    s_memtime s[70:71]\n" + t[i:]
old = "    v_mov_b32 v1, s66\n    buffer_store_dword v1, off, s[8:11], s40 offset:12\n"
assert old in t
t = t.replace(old, "".join(f"    v_mov_b32 v1, s{66+2*i}\n    buffer_store_dword v1, off, s[8:11], s40 offset:{12+4*i}\n" for i in range(4)))
open("fb_st.s", "w").write(t)
```

```python
from asmlib import *
from layout import *
from helper import wave_scan, row_sum, gen_helper
NAME2 = "gather_scatter__hybrid_graph_tf_graphgps__graph_kernel"
NWG = 256
NSTEP = 39
RING = 32768
SPARE = 4 * RING
LIST_B = 1088 * 4
LREG = SPARE + 4 * LIST_B
OFR = SPARE + 20480
LDS2 = OFR + 12288
ST2 = ' sc1'
SKIP = ()
PREFETCH = 1
REAL = 0
PUB, POLL, RDY, WK = 2, 2, 5, 0
PUB2, POLL2 = 0, 0
WS_BYTES = XCH_OFF + NWG * XCH_WG
MF = "v_mfma_f32_16x16x32_bf16"
MF16 = "v_mfma_f32_16x16x16_bf16"
OOB = "0x7fffff00"
NORM2_MAX = 48.0
O = lambda j, qb: (qb * 8 + j) * 4
Q = lambda qb, ks: 160 + (qb * 4 + ks) * 4
AM = lambda m, hf, ks: 160 + ((m * 2 + hf) * 4 + ks) * 4
KF = lambda par, kb, ks: 32 + par * 32 + (kb * 4 + ks) * 4
VF = lambda par, j: 96 + par * 32 + j * 4
S = lambda par, kb: 160 + par * 8 + kb * 4
P = lambda n: 176 + (n % 2) * 4 if n % 4 < 2 else 232 + (n % 2) * 4
KA = lambda ks: 8 + ks
VA = lambda j: 12 + j
VOFF0, VOFF1 = 20, 21
V_TAB, V_L4, V_Q, V_G = 22, 23, 24, 25
V_DEG, V_HOT, V_RED = 26, 27, 1
V_ROW = lambda b: 28 + b
ENT = lambda j: 184 + j
CM = lambda qb: 200 + qb * 4
XR = lambda b: 220 + b * 4
LK = lambda ks: 184 + 4 * ks
LV = lambda j: 240 + 2 * j
LS, LP, LA = 200, 204, 244
U = 244
S_W, S_TILE, S_SPLIT, S_RING, S_KOFF, S_CNT, S_LEFT = 3, 28, 29, 30, 31, 33, 34
S_AM, S_LIST, S_NB, S_I, S_PART, S_TAG, S_KEY = 40, 45, 46, 47, 56, 59, 38
S_C = lambda p: 84 + p
S_S = lambda p: 90 + p
PL = ' sc1'
ST_OFF = 0x1000000
def red_off(s, qb, h):
    k = qb * 6 + (s - 1) * 2 + h
    return ((8 + k) % 32) * 1024

def gen_k2(a, stamps=False):
    nst = [0]
    seq = [0]
    def stamp():
        seq[0] += 1
        if not stamps or (SKIP and seq[0] in SKIP): return
        i = nst[0]; nst[0] += 1
        a(f"{'s_memrealtime' if REAL else 's_memtime'} s[{64+2*i}:{65+2*i}]")
    def emit(xs):
        for x in xs: a(x)
    def weave(main, groups, first=0):
        n = len(main) - first
        pos = {first + (k * n) // len(groups): g for k, g in enumerate(groups)} if groups else {}
        assert len(pos) == len(groups)
        for x, ins in enumerate(main):
            a(ins)
            emit(pos.get(x, []))
    kernel_begin(a, NAME2)
    a(f"s_cmp_ge_u32 s2, {NWG}")
    a("s_cbranch_scc1 L2_end")
    a(f"s_load_dwordx2 s[4:5], s[0:1], {A_WS}")
    a("s_cmp_ge_u32 s2, 250")
    a("s_cbranch_scc1 LH")
    a(f"s_load_dwordx2 s[16:17], s[0:1], {A_X}")
    a(f"s_load_dwordx4 s[60:63], s[0:1], {A_WQ}")
    a(f"s_load_dwordx2 s[20:21], s[0:1], {A_OUT}")
    a(f"s_load_dwordx2 s[24:25], s[0:1], {A_DEG}")
    if stamps: a("s_memrealtime s[96:97]")
    stamp()
    if PREFETCH:
        a("s_getpc_b64 s[42:43]")
        a.label("L2_pc")
        a("s_lshr_b32 s35, s2, 3")
        a("v_and_b32 v2, 7, v0")
        a("v_lshl_add_u32 v2, s35, 3, v2")
        a("v_lshlrev_b32 v2, 7, v2")
        a("v_mov_b32 v3, L2_slow-L2_pc")
        a("v_cmp_gt_u32 vcc, v3, v2")
        a("v_add_u32 v3, L2_epi-L2_slow, v2")
        a("v_cndmask_b32 v2, v3, v2, vcc")
        a("v_min_u32 v2, LH-L2_pc, v2")
        a("v_mov_b32 v3, s43")
        a("v_add_co_u32 v2, vcc, s42, v2")
        a("v_addc_co_u32 v3, vcc, 0, v3, vcc")
        a("global_load_dword v160, v[2:3], off")
    a("v_lshrrev_b32 v1, 6, v0")
    a("v_and_b32 v0, 63, v0")
    a(f"s_lshr_b32 s{S_TILE}, s2, 4")
    a(f"v_readfirstlane_b32 s{S_W}, v1")
    a(f"s_lshl_b32 s{S_TILE}, s{S_TILE}, 3")
    a("s_and_b32 s35, s2, 7")
    a(f"s_add_u32 s{S_TILE}, s{S_TILE}, s35")
    a(f"s_bfe_u32 s{S_SPLIT}, s2, 0x10003")
    a(f"s_xor_b32 s{S_PART}, s2, 8")
    a("s_sub_u32 s35, s2, 242")
    a("s_cmp_lt_u32 s35, 6")
    a("s_cbranch_scc0 L2_ids")
    a(f"s_and_b32 s{S_SPLIT}, s2, 1")
    a(f"s_xor_b32 s{S_PART}, s2, 1")
    a("s_lshr_b32 s35, s35, 1")
    a(f"s_add_u32 s{S_TILE}, s35, 122")
    a.label("L2_ids")
    a(f"v_and_b32 v{V_Q}, 15, v0")
    a(f"v_lshrrev_b32 v{V_G}, 4, v0")
    a(f"v_lshlrev_b32 v{VOFF0}, 4, v0")
    a(f"v_add_u32 v{VOFF1}, 4096, v{VOFF0}")
    a(f"s_lshl_b32 s{S_RING}, s{S_W}, 15")
    a(f"s_mul_i32 s36, s{S_TILE}, {80*256}")
    a(f"s_mul_i32 s35, s{S_SPLIT}, 10")
    a(f"s_add_u32 s35, s35, s{S_W}")
    SO = lambda i: 84 + i
    for i in range(5):
        a(f"s_add_u32 s{SO(i)}, s35, {4*i}")
        a(f"s_sub_u32 s41, s{SO(i)}, 20")
        a(f"s_cselect_b32 s{SO(i)}, s{SO(i)}, s41")
        a(f"s_lshl_b32 s{SO(i)}, s{SO(i)}, 10")
    a(f"v_lshrrev_b32 v2, 1, v{V_Q}")
    a(f"v_xor_b32 v2, v2, v{V_G}")
    a("v_lshlrev_b32 v2, 5, v2")
    a(f"v_and_b32 v3, 1, v{V_Q}")
    a("v_lshl_or_b32 v2, v3, 4, v2")
    a(f"v_lshl_or_b32 v218, v{V_G}, 8, v2")
    a("v_xor_b32 v219, 0x80, v218")
    a(f"s_and_b32 s41, s{S_W}, 1")
    a("s_lshl_b32 s41, s41, 7")
    a("v_xor_b32 v4, s41, v218")
    a("s_lshl_b32 s41, s2, 3")
    a("s_and_b32 s41, s41, 0x80")
    a("v_xor_b32 v218, s41, v218")
    a("v_xor_b32 v219, s41, v219")
    a(f"v_lshlrev_b32 v220, 6, v{V_G}")
    a(f"v_xor_b32 v220, v220, v{VOFF0}")
    a(f"s_lshl_b32 s50, s{S_W}, 13")
    a("s_waitcnt lgkmcnt(0)")
    stamp()
    a(f"s_mov_b32 s18, {N*256}")
    a("s_mov_b32 s19, 0x00020000")
    W = lambda i: 32 + 4 * i
    for i in range(5):
        a(f"s_add_u32 s41, s36, s{SO(i)}")
        a(f"buffer_load_dwordx4 {vr(W(i),4)}, v{VOFF0}, s[16:19], s41 offen ; #x{i}")
    a(f"s_add_u32 s48, s4, {EPO_OFF}")
    a("s_addc_u32 s49, s5, 0")
    a(f"s_load_dword s{S_TAG}, s[48:49], 0")
    RT = lambda pc: 90 + pc if pc < 6 else 94 + pc
    a("s_lshr_b32 s35, s2, 4")
    for pc in range(8):
        a(f"s_add_u32 s41, s35, {pc}")
        a("s_and_b32 s41, s41, 7")
        a(f"s_lshl_b32 s{RT(pc)}, s41, 10")
    def w_groups(m):
        tmp = Asm(); srd(tmp, 52, 60 + 2 * m, 32768)
        g = [[f"s_add_u32 m0, s51, s{RT(pc)}", f"s_add_u32 s48, s50, s{RT(pc)}",
              f"buffer_load_dwordx4 v{218 + (pc%2 if m else 2)}, s[52:55], s48 offen lds ; #w{m}"] for pc in range(8)]
        g[0] = [x.strip() for x in tmp.lines] + [f"s_add_u32 s51, s{S_RING}, {m*8192}"] + g[0]
        return g
    def w_dma(m):
        for g in w_groups(m): emit(g)
    w_dma(0)
    stamp()
    srd(a, 12, 4, WS_BYTES)
    srd(a, 8, 4, N * 256, HP_OFF)
    for s, nb in ((20, N * 256), (24, N * 2)):
        a(f"s_mov_b32 s{s+2}, {nb}")
        a(f"s_mov_b32 s{s+3}, 0x00020000")
    a(f"s_lshl_b32 s35, s{S_SPLIT}, 2")
    a(f"s_add_u32 s{S_KEY}, s35, s{S_W}")
    a(f"s_mul_i32 s{S_KOFF}, s{S_KEY}, {NSTEP*8192}")
    a(f"s_lshl_b32 s{S_AM}, s{S_W}, 13")
    a(f"s_add_u32 s{S_AM}, s{S_AM}, {MV_OFF}")
    a(f"s_lshl_b32 s39, s{S_TILE}, 3")
    a("s_add_u32 s39, s39, s35")
    a(f"s_xor_b32 s35, s{S_SPLIT}, 1")
    a("s_mul_i32 s37, s35, 15")
    a(f"v_xor_b32 v3, s37, v{V_Q}")
    a("s_mul_i32 s37, s35, 3")
    a(f"s_xor_b32 s48, s37, s{S_W}")
    a("s_add_u32 s39, s39, s48")
    a(f"s_mul_i32 s49, s35, {4*4096}")
    a("s_add_u32 s42, s36, s49")
    a(f"s_add_u32 s49, s49, {SPARE}")
    a("s_lshl_b32 s37, s35, 13")
    a("s_sub_u32 s37, 4096, s37")
    a(f"s_mul_i32 s{S_LEFT}, s35, 4")
    a(f"s_mul_i32 s{S_LEFT}, s{S_LEFT}, s{S_W}")
    a(f"s_add_u32 s{S_LEFT}, s{S_LEFT}, s{S_W}")
    a(f"s_mul_i32 s{S_LIST}, s{S_W}, {LIST_B}")
    a(f"s_add_u32 s{S_LIST}, s{S_LIST}, {SPARE}")
    a(f"v_lshrrev_b32 v5, 1, v{V_G}")
    a(f"v_and_b32 v6, 1, v{V_G}")
    a(f"v_lshrrev_b32 v2, 2, v{V_Q}")
    a(f"v_and_b32 v7, 3, v{V_Q}")
    a("v_lshlrev_b32 v5, 5, v5")
    a("v_lshl_add_u32 v200, v2, 3, v7")
    a("v_lshl_or_b32 v31, v6, 4, v5")
    a(f"s_add_u32 s41, s{S_RING}, 8192")
    fam = (("v3", "s49", 232), (f"v{V_Q}", f"s{S_RING}", KA(0)), ("v200", "s41", 204))
    for row, base, dst in fam: a(f"v_and_b32 v{dst+1}, 7, {row}")
    for row, base, dst in fam: a(f"v_lshl_add_u32 v{dst}, {row}, 8, {base}")
    for row, base, dst in fam: a(f"v_lshl_or_b32 v{dst}, v{dst+1}, 5, v{dst}")
    for row, base, dst in fam: a(f"v_xor_b32 v{dst}, v{dst}, v31")
    for ks in range(1, 4):
        for row, base, dst in fam: a(f"v_xor_b32 v{dst+ks}, {64*ks}, v{dst}")
    for ks in range(4): a(f"v_xor_b32 v{208+ks}, 0x480, v{204+ks}")
    a(f"v_lshlrev_b32 v5, 4, v7")
    a(f"v_lshl_add_u32 v5, v{V_G}, 11, v5")
    a("v_mul_u32_u24 v6, 0x140, v2")
    a(f"s_lshl_b32 s41, s{S_W}, 6")
    a("v_add_u32 v5, v5, v6")
    a("v_xor_b32 v212, s41, v5")
    a("v_add_u32 v213, 1024, v212")
    a(f"v_add_u32 v214, {2*RING}, v212")
    a(f"v_add_u32 v215, {2*RING+1024}, v212")
    a(f"v_lshl_add_u32 v2, v{V_G}, 2, v2")
    a(f"v_lshl_add_u32 v5, v7, 3, s{S_RING}")
    a("v_and_b32 v6, 7, v2")
    a("v_lshl_add_u32 v5, v2, 8, v5")
    a("v_lshl_or_b32 v5, v6, 5, v5")
    a(f"v_xor_b32 v{VA(0)}, s41, v5")
    for j in range(1, 8): a(f"v_xor_b32 v{VA(j)}, {32*j}, v{VA(0)}")
    a("v_lshlrev_b32 v3, 8, v3")
    a(f"v_lshl_add_u32 v3, v{V_G}, 4, v3")
    a(f"s_lshl_b32 s44, s{S_W}, 6")
    a("s_add_u32 s44, s44, s42")
    a("s_mul_i32 s43, s37, 3")
    a("s_add_u32 s44, s44, s43")
    a(f"v_add_u32 v{V_ROW(1)}, s44, v3")
    a(f"v_mov_b32 v3, {OOB}")
    a(f"v_cmp_lt_u32 vcc, 7, v{V_Q}")
    a(f"v_add_u32 v{V_ROW(2)}, s37, v{V_ROW(1)}")
    a(f"v_subrev_u32 v{V_ROW(0)}, s37, v{V_ROW(1)}")
    a(f"v_cndmask_b32 v{V_ROW(0)}, v3, v{V_ROW(0)}, vcc")
    a(f"v_sub_u32 v2, 9, v{V_Q}")
    a(f"s_cmp_eq_u32 s{S_SPLIT}, 1")
    a("s_cselect_b64 vcc, -1, 0")
    a("s_mul_i32 s44, s39, 10")
    a(f"v_cndmask_b32 v5, v2, v{V_Q}, vcc")
    a(f"v_cmp_gt_u32 vcc, 10, v{V_Q}")
    a("v_add_lshl_u32 v2, v5, s44, 1")
    a("v_sub_u32 v5, 15, v5")
    a("v_lshlrev_b32 v5, v5, 1")
    a(f"v_cndmask_b32 v{V_DEG}, v3, v2, vcc")
    a(f"v_cndmask_b32 v{V_HOT}, 0, v5, vcc")
    a(f"v_lshlrev_b32 v{V_L4}, 2, v0")
    a("s_lshl_b32 s39, s39, 5")
    a(f"s_add_u32 s39, s39, {TAB_OFF}")
    a(f"v_add_u32 v{V_RED}, s{S_RING}, v{VOFF0}")
    a(f"v_add_u32 v6, {2*RING}, v{VOFF0}")
    a(f"s_lshl_b32 s44, s{S_W}, 2")
    a(f"v_add_u32 v5, {OFR}, v{VOFF0}")
    a("v_add_u32 v2, s44, v5")
    def flag_addr(dst, r, tail):
        a(f"s_mul_i32 s41, {r}, 156")
        a("s_mul_i32 s41, s41, 52429")
        a("s_lshr_b32 s41, s41, 18")
        a(f"v_add_u32 v{dst}, s41, v0")
        a(f"v_min_u32 v{dst}, 249, v{dst}")
        a("v_cmp_gt_u32 vcc, 33, v0")
        emit(tail)
        a(f"v_cndmask_b32 v{dst}, v7, v{dst}, vcc")
        a(f"v_lshlrev_b32 v{dst}, 7, v{dst}")
    flag_addr(216, f"s{S_KEY}", ["v_mov_b32 v7, 249", "s_nop 0"])
    a(f"s_xor_b32 s44, s{S_KEY}, 4")
    flag_addr(V_TAB, "s44", ["v_and_b32 v7, 7, v0", "v_min_u32 v7, 5, v7", "v_add_u32 v7, 250, v7"])
    a(f"s_lshl_b32 s57, s{S_TILE}, 1")
    a(f"s_add_u32 s57, s57, s{S_SPLIT}")
    a("s_lshl_b32 s57, s57, 7")
    a(f"s_lshl_b32 s44, s{S_W}, 2")
    a("s_add_u32 s57, s57, s44")
    a(f"s_add_u32 s57, s57, {FLH_OFF}")
    a(f"s_mov_b32 s58, {FLH_OFF}")
    a(f"s_sub_u32 s35, s{S_LIST}, s{S_RING}")
    for i in range(12): a(f"v_add_u32 v{LA+i}, s35, v{KA(0)+i}")
    a(f"v_cmp_eq_u32 vcc, 0, v{V_Q}")
    a(f"s_mov_b32 s41, {f32(1.0/128)}")
    a(f"v_mov_b32 v217, {f32(1e-5)}")
    a("v_mov_b32 v221, 0x3f80")
    a("v_mov_b32 v31, 0xffff")
    a("v_cndmask_b32 v31, 0, v31, vcc")
    a("s_mov_b32 s43, 0xffff0000")
    a(f"s_cmp_lt_u32 s{S_W}, 2")
    a(f"s_cselect_b32 s44, s{SO(2)}, 0x7ff00000")
    if WK == 0: w_dma(1)
    X = lambda i, k: 64 + 8 * i + k
    A_, B_ = (lambda i: 136 + 2 * i), (lambda i: 146 + 2 * i)
    p2 = lambda r: vr(r, 2)
    def layernorm(I, own):
        for i in I:
            a(f"@wait vm x{i}")
            for c in range(4):
                a(f"v_lshlrev_b32 v{X(i,2*c)}, 16, v{W(i)+c}")
                a(f"v_and_b32 v{X(i,2*c+1)}, s43, v{W(i)+c}")
        if own: stamp()
        for i in I: a(f"v_pk_add_f32 {p2(A_(i))}, {p2(X(i,0))}, {p2(X(i,2))}")
        for i in I: a(f"v_pk_add_f32 {p2(B_(i))}, {p2(X(i,4))}, {p2(X(i,6))}")
        for i in I: a(f"v_pk_add_f32 {p2(A_(i))}, {p2(A_(i))}, {p2(B_(i))}")
        for i in I: a(f"v_add_f32 v{A_(i)}, v{A_(i)}, v{A_(i)+1}")
        row_sum(a, [A_(i) for i in I])
        for i in I: a(f"v_mul_f32 v{A_(i)}, s41, v{A_(i)}")
        for k in range(0, 8, 2):
            for i in I: a(f"v_pk_add_f32 {p2(X(i,k))}, {p2(X(i,k))}, {p2(A_(i))} op_sel_hi:[1,0] neg_lo:[0,1] neg_hi:[0,1]")
        for i in I: a(f"v_pk_mul_f32 {p2(B_(i))}, {p2(X(i,0))}, {p2(X(i,0))}")
        for k in range(2, 8, 2):
            for i in I: a(f"v_pk_fma_f32 {p2(B_(i))}, {p2(X(i,k))}, {p2(X(i,k))}, {p2(B_(i))}")
        for i in I: a(f"v_add_f32 v{B_(i)}, v{B_(i)}, v{B_(i)+1}")
        row_sum(a, [B_(i) for i in I])
        for i in I: a(f"v_fma_f32 v{B_(i)}, v{B_(i)}, s41, v217")
        for i in I: a(f"v_rsq_f32 v{B_(i)}, v{B_(i)}")
        for k in range(0, 8, 2):
            for i in I: a(f"v_pk_mul_f32 {p2(X(i,k))}, {p2(X(i,k))}, {p2(B_(i))} op_sel_hi:[1,0]")
        for i in I:
            a(f"s_add_u32 s42, s{SO(i)}, {SPARE}")
            a(f"v_add_u32 v{B_(i)}, s42, v4")
            for c in range(4): a(f"v_cvt_pk_bf16_f32 v{W(i)+c}, v{X(i,2*c)}, v{X(i,2*c+1)}")
            if own:
                a(f"v_bfi_b32 v{X(i,0)}, v31, v221, v{W(i)}")
                for c in range(1, 4): a(f"v_mov_b32 v{X(i,c)}, v{W(i)+c}")
                a(f"s_add_u32 s42, s36, s{SO(i) if i < 2 else 44}")
                a(f"buffer_store_dwordx4 {vr(X(i,0),4)}, v4, s[8:11], s42 offen sc1 ; #hp")
        for i in I: a(f"ds_write_b128 v{B_(i)}, {vr(W(i),4)}")
    layernorm(range(3), True)
    stamp()
    a("@wait vm w0")
    a("s_barrier")
    WQ = lambda hf, ks: 32 + (hf * 4 + ks) * 4
    for hf in range(2):
        for ks in range(4):
            for hh in range(2): a(f"ds_read_b64_tr_b16 {ar(WQ(hf,ks)+2*hh,2)}, v{212 + 2*(ks//2) + hh} offset:{(ks%2)*RING + 8*hf}")
    if WK == 1: w_dma(1)
    layernorm(range(3, 5), False)
    stamp()
    a("s_waitcnt lgkmcnt(0)")
    a(f"s_add_u32 s{S_TAG}, s{S_TAG}, 0x9e3779b1")
    publish = [f"v_mov_b32 v7, s{S_TAG}", "@wait vm hp",
               "buffer_store_dword v7, off, s[12:15], s57 sc1"]
    if PUB < 0: emit(publish)
    stamp()
    a("s_barrier")
    stamp()

    def dma(slot, piece, last=7):
        out = []
        half, sub = piece // 4, piece % 4
        if sub == 0: out.append(f"s_add_u32 m0, s{S_RING}, {slot*8192 + half*4096}")
        out.append(f"buffer_load_dwordx4 v{VOFF0+half}, s[8:11], s{S_KOFF} offen offset:{sub*1024}{PL} lds")
        if piece == last: out.append(f"s_add_u32 s{S_KOFF}, s{S_KOFF}, 8192")
        return out
    tagged = lambda grp, tag: [x + f" ; #{tag}" if x.startswith("buffer_") else x for x in grp]
    HB = lambda qb, ks: 32 + (qb * 4 + ks) * 4
    MA = lambda hf, ks: 112 + (hf * 4 + ks) * 4
    QD = lambda qb, hf: 144 + (qb * 2 + hf) * 4
    def ready(regs, addr, tag, wait):
        a(wait)
        a("s_mov_b32 s49, 0x40000")
        a.label(f"L2_rdy_{tag}")
        for i in range(4): a(f"v_xor_b32 v{regs+i}, s{S_TAG}, v{regs+i}")
        a(f"v_or3_b32 v{regs}, v{regs}, v{regs+1}, v{regs+2}")
        a(f"v_or_b32 v{regs}, v{regs}, v{regs+3}")
        a(f"v_cmp_ne_u32 vcc, 0, v{regs}")
        a("s_sub_u32 s49, s49, 1")
        a("s_cselect_b64 vcc, 0, vcc")
        a(f"s_cbranch_vccz L2_go_{tag}")
        a(f"buffer_load_dwordx4 {vr(regs,4)}, v{addr}, s[12:15], s58 offen{PL} ; #offpath")
        a("s_waitcnt vmcnt(0)")
        a(f"s_branch L2_rdy_{tag}")
        a.label(f"L2_go_{tag}")
    def pack_gaps(mf, mems, vals, vstart=1):
        cost = lambda x: 0 if x.startswith(("s_", "@")) else 8 if x.startswith(("buffer_", "ds_write_b128")) else 4
        for n, m in enumerate(mf):
            a(m)
            room = 8
            while mems and sum(map(cost, mems[0])) <= room and not (mems[0][-1].startswith("ds_write") and vals):
                room -= sum(map(cost, mems[0])); emit(mems.pop(0))
            while vals and room >= 4 and n >= vstart:
                a(vals.pop(0)); room -= 4
        emit(vals)
        for g in mems: emit(g)
    def gemm(blocks, reads, post, extra):
        for qb in range(5):
            x = extra.get(qb, [])
            if callable(x): x = x()
            rd = reads(qb + 2) if qb + 2 < 5 else []
            po = post(qb - 1) if qb else []
            a(f"@wait lg hb{qb}")
            pack_gaps(blocks(qb), [[y] for y in rd if y.startswith("ds_")] + x + [[y] for y in po if y.startswith("ds_")],
                      [y for y in rd + po if y.startswith("v_")], 2)
        x = extra.get(5, [])
        for g in (x() if callable(x) else x): emit(g)
        emit(post(4))
        a("s_waitcnt lgkmcnt(0)")
        a("s_barrier")
    def chain(d, A, qb): return [f"{MF} {vr(d,4)}, {ar(A(ks),4)}, {vr(HB(qb,ks),4)}, {'0' if ks==0 else vr(d,4)}" for ks in range(4)]
    def reads1(qb):
        return [f"ds_read_b128 {vr(HB(qb,ks),4)}, v{232+ks} ; #hb{qb}" for ks in range(4)] + ([f"v_add_u32 v{232+ks}, s37, v{232+ks}" for ks in range(4)] if qb < 4 else [])
    def post1(qb):
        return [f"v_cvt_pk_bf16_f32 v{QD(qb,0)+c}, v{QD(qb,0)+2*c}, v{QD(qb,0)+2*c+1}" for c in range(4)] + [f"ds_write_b128 v{V_RED}, {vr(QD(qb,0),4)} offset:{16384 + qb*1024}"]
    wk_reads = [f"ds_read_b128 {ar((hf*4+ks)*4,4)}, v{204 + 4*hf + ks}" for hf in range(2) for ks in range(4)]
    flag1 = f"buffer_load_dwordx4 v[236:239], v216, s[12:15], s58 offen{PL} ; #flag1"
    xl = [f"buffer_load_dwordx4 {vr(XR(b),4)}, v{V_ROW(b)}, s[16:19], 0 offen" for b in range(3)] + [f"buffer_load_ushort v{V_DEG}, v{V_DEG}, s[24:27], 0 offen"]
    emit(reads1(0) + reads1(1))
    gemm(lambda qb: chain(QD(qb, 0), lambda ks: WQ(0, ks), qb) + chain(QD(qb, 1), lambda ks: WQ(1, ks), qb), reads1, post1,
         {**({0: [publish] + w_groups(1)[:3], 1: w_groups(1)[3:5], 2: w_groups(1)[5:], 5: [["@wait vm w1"] + wk_reads]} if WK == 2 else
             {PUB: [publish], 3: [[y] for y in xl], 4: [["@wait vm w1", wk_reads[0]]] + [[y] for y in wk_reads[1:]]})})
    stamp()
    Z = lambda qb: 184 + 4 * qb
    def reads2(qb): return [f"ds_read_b128 {vr(HB(qb,ks),4)}, v{VOFF0 if ks<2 else 6} offset:{(ks%2)*RING + 16384 + qb*1024} ; #hb{qb}" for ks in range(4)]
    def post2(qb):
        q = QD(qb, 0); z = Z(qb)
        po = [f"v_mul_f32 v{z}, s44, v{z}", f"v_mul_f32 v{z+1}, v{q}, v{q}", f"v_mul_f32 v{z+2}, v{q+1}, v{q+1}"]
        for i in range(2, 8): po.append(f"v_fmac_f32 v{z+1+i%2}, v{q+i}, v{q+i}")
        po += [f"v_fma_f32 v{q+i}, v{q+i}, s41, v{z}" for i in range(8)]
        po += [f"v_add_f32 v{z+1}, v{z+1}, v{z+2}"] + [f"v_cvt_pk_bf16_f32 v{q+c}, v{q+2*c}, v{q+2*c+1}" for c in range(4)]
        po += [f"v_max_f32 v{Z(0)+1}, v{Z(0)+1}, v{z+1}"] if qb else []
        po += [f"ds_write_b128 v{V_RED}, {vr(q,4)} offset:{24576 + qb*1024}"]
        if qb == 4: po += [f"ds_write_b32 v2, v{Z(0)+1}"]
        return po
    def dma_rot(t, pc):
        g = [f"s_add_u32 s51, s{S_RING}, {t*8192}"] if pc == 0 else []
        g += [f"s_add_u32 m0, s51, s{RT(pc)}", f"s_add_u32 s48, s{S_KOFF}, s{RT(pc)}", f"buffer_load_dwordx4 v{VOFF0}, s[8:11], s48 offen{PL} lds ; #t{t}"]
        return g + ([f"s_add_u32 s{S_KOFF}, s{S_KOFF}, 8192"] if pc == 7 else [])
    tl = [dma_rot(pc // 8, pc % 8) for pc in range(24)]
    def first_tile():
        stamp()
        a("@wait vm flag1")
        for i in range(4): a(f"v_xor_b32 v{240+i}, s{S_TAG}, v{236+i}")
        a("v_or3_b32 v240, v240, v241, v242")
        a("v_or_b32 v240, v240, v243")
        a("v_cmp_ne_u32 vcc, 0, v240")
        a(f"s_mov_b32 s{S_CNT}, 0")
        a("s_nop 3")
        a("s_cbranch_vccnz L2_notyet")
        for g in tl[:8]: emit(g)
        a(f"s_mov_b32 s{S_CNT}, 1")
        a.label("L2_notyet")
        stamp()
        return []
    a(f"v_lshlrev_b32 v7, 4, v{V_G}")
    for ks in range(4): a(f"ds_read_b128 {ar(64+4*ks,4)}, v7 offset:{8192 + 64*ks}")
    emit(reads2(0) + reads2(1) + [f"s_mov_b32 s41, {f32(QSCALE)}", f"s_mov_b32 s44, {f32(-QSCALE)}"])
    gemm(lambda qb: chain(Z(qb), lambda ks: 64 + 4 * ks, qb) + chain(QD(qb, 0), lambda ks: 4 * ks, qb) + chain(QD(qb, 1), lambda ks: 16 + 4 * ks, qb),
         reads2, post2, {POLL: [[flag1]], RDY: first_tile})
    stamp()

    def kread(par, slot, j):
        kb, ks = j // 4, j % 4
        return f"ds_read_b128 {vr(KF(par,kb,ks),4)}, v{KA(ks)} offset:{slot*8192 + kb*4096}"
    def vread(par, slot, j):
        db, hf = j // 2, j % 2
        return f"ds_read_b64_tr_b16 {vr(VF(par,db)+2*hf,2)}, v{VA(db)} offset:{slot*8192 + hf*4096}"
    def qk(spar, kpar, qb, j, slow):
        kb, ks = j // 4, j % 4
        c = (vr(CM(qb), 4) if slow else "0") if ks == 0 else vr(S(spar, kb), 4)
        return f"{MF} {vr(S(spar,kb),4)}, {vr(KF(kpar,kb,ks),4)}, {ar(Q(qb,ks),4)}, {c}"
    def pv(n, vpar, qb, j, first=False):
        return f"{MF} {ar(O(j,qb),4)}, {vr(VF(vpar,j),4)}, {vr(P(n),4)}, {'0' if first else ar(O(j,qb),4)}"
    def qread(qb): return [f"ds_read_b128 {ar(Q(qb,ks),4)}, v{VOFF0 if ks<2 else 6} offset:{(ks%2)*RING + 24576 + qb*1024}" for ks in range(4)]
    a(f"ds_read_b128 v[188:191], v5 ; #nq")
    for qb in range(5): emit([x + " ; #q" for x in qread(qb)])
    a(f"s_cmp_eq_u32 s{S_CNT}, 1")
    a("s_cbranch_scc1 L2_fired")
    a(flag1.replace("#flag1", "#offpath"))
    ready(236, 216, "a", "s_waitcnt vmcnt(0)")
    for g in tl[:8]: emit([x.replace("#t0", "#offpath") for x in g])
    a.label("L2_fired")
    for g in tl[8:12]: emit(g)
    a("@wait lg nq")
    emit(["v_add_f32 v188, v188, v189", "v_add_f32 v190, v190, v191", "v_add_f32 v188, v188, v190", "v_mov_b32 v189, v188"])
    emit(tl[12])
    emit(["v_permlane32_swap_b32 v188, v189", "v_add_f32 v188, v188, v189", "v_mov_b32 v189, v188"])
    emit(tl[13])
    emit(["v_permlane16_swap_b32 v188, v189", "v_add_f32 v188, v188, v189", f"v_mov_b32 v189, {f32(NORM2_MAX / QSCALE**2)}", "v_cmp_nle_f32 vcc, v188, v189"])
    emit(tl[14] + tl[15])
    a("@wait vm t0")
    stamp()
    for j in range(8): a(kread(0, 0, j) + f" ; #k0{j//4}")
    vl = [vread(0, 0, j) + " ; #v0" for j in range(16)]
    emit(vl[:4])
    a("@wait lg q")
    a("s_barrier")
    a(f"s_mov_b32 s{S_CNT}, 8")
    for j in range(8):
        if j % 4 == 0: a(f"@wait lg k0{j//4}")
        a(qk(0, 0, 0, j, False))
        emit(tl[16 + j])
        if j < 6: emit(vl[4+2*j:6+2*j])
    a("s_cbranch_vccnz L2_slow")

    def red_write(s, qb, h): return f"ds_write_b128 v{V_RED}, {ar(O(2*s+h,qb),4)} offset:{red_off(s,qb,h)}"
    S_T = lambda p: 60 + p if p < 4 else 46 + p
    S_P = lambda p: 41 + p if p < 4 else 44 + p
    def seg_scalars(first):
        out = []
        for p in range(NPROD):
            if first:
                out += [f"s_and_b32 s{S_S(p)}, s{S_C(p)}, 0xffff", f"s_lshr_b32 s{S_C(p)}, s{S_C(p)}, 16"]
                out += [f"s_lshl2_add_u32 s{S_S(p)}, s{S_S(p)}, {SEG_OFF + p*EPP*4}"]
            out += [f"s_min_u32 s{S_T(p)}, s{S_C(p)}, 64"]
            out += [f"s_mov_b32 s{S_NB}, s{S_T(0)}"] if p == 0 else []
            if p: out += [f"s_lshl_b32 s{S_P(p)}, s{S_NB}, 2", f"s_add_u32 s{S_NB}, s{S_NB}, s{S_T(p)}"]
        return out
    def seg_load(p):
        return [f"v_sub_u32 v{U+p}, v{U+6}, s{S_T(p)} clamp", f"v_lshl_add_u32 v{ENT(8+p)}, v{U+p}, 26, v{V_L4}",
                f"buffer_load_dword v{ENT(p)}, v{ENT(8+p)}, s[12:15], s{S_S(p)} offen{PL} ; #ent"]
    def seg_store(p):
        return [f"v_lshl_add_u32 v{U+p}, v{U+p}, 18, v{U+7}"] + ([f"v_add_u32 v{U+p}, s{S_P(p)}, v{U+p}"] if p else []) + [f"ds_write_b32 v{U+p}, v{ENT(p)}"]
    NU = 5 * NSTEP
    def unit(n): return (0, n) if n < 5 else (1 + 2 * ((n - 5) // 10) + (n - 5) % 2, ((n - 5) % 10) // 2)
    def phase_mfmas(n, slow):
        qks = [None] * 8
        if n + 1 < NU:
            t1, q1 = unit(n + 1)
            qks = [qk((n + 1) % 2, t1 % 2, q1, j, slow) for j in range(8)]
        pvs = [None] * 8
        if 1 <= n <= 5: pvs = [pv(n - 1, 0, n - 1, j, True) for j in range(8)]
        elif n >= 7:
            h = (n - 7) % 2; n0 = n - 2 - h
            pvs = [pv(n0 + k, 1 - k, unit(n0)[1], 4 * h + jj) for jj in range(4) for k in range(2)]
        return qks[:4] + pvs[:4] + qks[4:] + pvs[4:]
    class Block:
        def __init__(b, n0, nph):
            b.n0, b.nph, b.len = n0, nph, 16 * nph
            b.sc = [[] for _ in range(b.len + 1)]; b.mem = [[] for _ in range(b.len)]; b.val = [[] for _ in range(b.len)]
            b.used = [8 if G % 2 == 0 else (4 if G % 4 == 3 else 0) for G in range(b.len)]
            b.hook = {}
        def cost(b, x): return 8 if x.startswith(("buffer_", "v_exp", "ds_write_b128")) else 4
        def put(b, G, x):
            (b.val if x.startswith("v_") else b.mem)[G].append(x); b.used[G] += b.cost(x)
        def place(b, items, G, sep=0, room=8, only=None):
            prev = None
            for x in items:
                grp = x if isinstance(x, list) else [x]
                y = next(z for z in grp if not z.startswith("s_"))
                if prev is not None: G += sep if sep else (1 if prev.startswith("v_") and not y.startswith("v_") else 0)
                while G % 2 == 0 or b.used[G] + b.cost(y) > room or (only and G % 4 != only): G += 1
                b.put(G, y)
                k = grp.index(y)
                b.sc[G - 1] += grp[:k]; b.sc[G + 1] += grp[k + 1:]
                prev = y
            return G
        def emit(b, slow):
            for p in range(b.nph):
                n = b.n0 + p
                mf = phase_mfmas(n, slow)
                if n < NU:
                    for e in range(8): b.val[16*p + 2*e].append(f"v_exp_f32 v{S(n%2,e//4)+e%4}, v{S(n%2,e//4)+e%4}")
                    for c in range(4): b.val[16*p + 4*c + 3].append(f"v_cvt_pk_bf16_f32 v{P(n)+c}, v{S(n%2,c//2)+2*(c%2)}, v{S(n%2,c//2)+2*(c%2)+1}")
                for i in range(16):
                    G = 16 * p + i
                    if mf[i]: a(mf[i])
                    emit(b.sc[G] + b.mem[G] + b.val[G])
                if p in b.hook: b.hook[p]()
            emit(b.sc[b.len])
    tg = lambda grp, tag: [x + f" ; #{tag}" if x.startswith("buffer_") else x for x in grp]
    kr = lambda t: [kread(t % 2, t % 4, j) + f" ; #k{t%2}{'ab'[j//4]}" for j in range(8)]
    def single(slow):
        b = Block(0, 5)
        b.sc[0].append("@wait vm t1")
        b.place(kr(1), 1)
        b.sc[14].append("@wait lg v0")
        b.place([vread(1, 1, j) + " ; #v1" for j in range(16)], 13, only=3)
        b.place([tg(dma(3, pc), "p1") for pc in range(8)] + [tg(dma(0, pc), "p1") for pc in range(4)], 17, 4)
        b.sc[62] += ["@wait lg k1b", "@wait vm t2"]
        b.place(kr(2), 65, only=1)
        b.sc[80].append("@wait lg k0a")
        b.emit(slow)
    def am_stage(slot):
        out = []
        for pc in range(8):
            hf, ks = pc // 4, pc % 4
            g = [f"s_add_u32 m0, s{S_RING}, {slot*8192 + hf*4096}"] if ks == 0 else []
            g.append(f"buffer_load_dwordx4 v{VOFF0+hf}, s[12:15], s{S_AM} offen offset:{ks*1024}{PL} lds ; #am{slot}")
            if pc == 7 and slot == 3: g.append(f"s_add_u32 s{S_AM}, s{S_AM}, {MM_OFF-MV_OFF}")
            out.append(g)
        return out
    ND = (NSTEP - 1) // 2
    def double(D, slow, tag):
        last = D == ND - 1
        tA, tB = 1 + 2 * D, 2 + 2 * D
        b = Block(5 + 10 * D, 10)
        b.sc[6].append("@wait lg k0b")
        lo = (lambda j: (7, 15)[j // 4]) if D == 0 else (lambda j: 7 + 8 * (j // 2))
        G = 7
        for j in range(8):
            for t in ((tB,) if D == 0 else (tA, tB)):
                for hf in range(2): G = b.place([vread(t % 2, t % 4, 2 * j + hf) + f" ; #vv{j//2}"], max(G, lo(j)))
        for k in range(4): b.sc[34 + 8 * k].append(f"@wait lg vv{k}")
        if D == 0:
            b.place([tg(dma(0, pc), "p1") for pc in range(4, 8)], 33, only=1)
        if D + 2 < ND:
            b.place([tg(dma((tA + pc // 8) % 4, pc % 8), f"p{D%2}") for pc in range(16)], 61, 4)
        if not last:
            b.sc[116].append(f"@wait vm p{(D+1)%2}")
            b.place(kr(tA + 2)[:4], 119, only=3)
            b.place(kr(tA + 2)[4:], 129)
            b.sc[142].append("@wait lg k1a")
            b.sc[150].append("@wait lg k1b")
            G = b.place(kr(tB + 2)[:4], 135, only=3)
            b.place(kr(tB + 2)[4:], 145)
            b.sc[158].append("@wait lg k0a")
        if D == 0:
            b.sc[48] += [f"s_mov_b32 s35, {8*NSTEP*8192}", f"s_mov_b32 m0, s{S_LIST}"]
            b.place([f"buffer_load_dwordx4 v{VOFF0}, s[8:11], s35 offen offset:{pc*1024}{PL} lds ; #left" for pc in range(4)], 49, room=12)
            b.sc[82].append("@wait vm left")
            rl = [f"ds_read_b128 {vr(LK(ks),4)}, v{LA+ks} ; #lk" for ks in range(4)] + [f"ds_read_b64_tr_b16 {ar(LV(j),2)}, v{LA+4+j} ; #lv" for j in range(8)]
            b.place(rl[:9], 83, only=3)
            b.place(rl[9:], 125)
            b.hook[6] = lambda: variants(f"L2_lq{tag}", lambda r: [f"{MF} {vr(LS if not slow else 240,4)}, {vr(LK(ks),4)}, {ar(Q(r,ks),4)}, {(vr(CM(r),4) if slow else '0') if ks==0 else vr(LS if not slow else 240,4)}" for ks in range(4)], ["@wait lg lk"])
            ls = LS if not slow else 240
            b.place([f"v_exp_f32 v{ls+e}, v{ls+e}" for e in range(4)] + [f"v_cvt_pk_bf16_f32 v{ls+c}, v{ls+2*c}, v{ls+2*c+1}" for c in range(2)], 137, room=16, only=1)
            b.hook[9] = lambda: variants(f"L2_lv{tag}", lambda r: [f"{MF16} {ar(O(j,r),4)}, {ar(LV(j),2)}, {vr(ls,2)}, {ar(O(j,r),4)}" for j in range(8)], ["@wait lg lv"])
        if D == 2:
            b.put(53, f"buffer_load_dwordx4 v[240:243], v{V_TAB}, s[12:15], s58 offen{PL} ; #flag2")
            b.sc[154].append(f"s_sub_u32 s{S_CNT}, s{S_CNT}, 1")
            b.sc[156].append(f"s_cmp_lg_u32 s{S_CNT}, 0")
        if D == ND - 2:
            b.put(1, f"buffer_load_dword v{V_TAB}, v{V_L4}, s[12:15], s39 offen{PL} ; #tab")
            b.place([f"v_add_u32 v{U+6}, 1, v0", f"v_add_u32 v{U+7}, s{S_LIST}, v{V_L4}"], 5)
            G = b.place(am_stage(3), 61)
            b.sc[48].append("@wait vm tab")
            b.place([f"v_readlane_b32 s{S_C(p)}, v{V_TAB}, {p}" for p in range(NPROD)], 49)
            for k, x in enumerate(seg_scalars(True)): b.sc[60 + 2 * k].append(x)
            for p in range(NPROD): G = b.place(seg_load(p), max(G, 74 + 12 * p), room=12)
        if last:
            b.place(am_stage(0)[:2], 1)
            G = b.place(am_stage(0)[2:], 49, room=12)
            b.place([f"v_lshl_add_u32 v{U+8}, s{S_NB}, 2, v{U+7}", f"v_mov_b32 v{U+9}, 0x7fffff0f", f"ds_write_b32 v{U+8}, v{U+9}"], 51, room=12)
            amr = lambda m: [f"ds_read_b128 {ar(AM(m,hf,ks),4)}, v{V_RED} offset:{(24576,0)[m] + hf*4096 + ks*1024}" for hf in range(2) for ks in range(4)]
            b.sc[62].append("@wait vm ent")
            b.place(amr(0), 63, only=3)
            for qb in range(3):
                b.place([red_write(s, qb, h) + " ; #send" for s in range(1, 4) for h in range(2)], 69 + 32 * qb - 4 * (qb // 2), 4)
            b.place([f"v_xor_b32 v{2+s}, {s*RING}, v{V_RED}" for s in range(1, 4)], 93)
            G = 65
            for p in range(NPROD): G = b.place(seg_store(p), G, room=12)
            b.sc[110].append("@wait vm am0")
            b.place(amr(1), 111, only=3)
        b.emit(slow)

    def variants(tag, body, pre=()):
        emit(pre)
        a(f"s_cmp_ge_u32 s{S_LEFT}, 4")
        a(f"s_cbranch_scc1 {tag}_x")
        for r in range(3):
            a(f"s_cmp_eq_u32 s{S_LEFT}, {r}")
            a(f"s_cbranch_scc1 {tag}_{r}")
        for r in (3, 2, 1, 0):
            if r < 3: a.label(f"{tag}_{r}")
            emit(body(r))
            if r: a(f"s_branch {tag}_x")
        a.label(f"{tag}_x")
    def main_loop(slow):
        tag = "s" if slow else "f"
        if not slow: stamp()
        single(slow)
        double(0, slow, tag)
        a.raw(".p2align 6")
        a.label(f"L2_loop_{tag}")
        double(1, slow, tag)
        double(2, slow, tag)
        a(f"s_cbranch_scc1 L2_loop_{tag}")
        ready(240, V_TAB, "b" + tag, "@wait vm flag2")
        double(ND - 2, slow, tag)
        double(ND - 1, slow, tag)
        if not slow: a("s_branch L2_epi")
    main_loop(False)

    a.label("L2_slow")
    for k in range(4):
        a(f"v_add_u32 v216, {64*k}, v0")
        a("v_min_u32 v216, 249, v216")
        a("v_lshlrev_b32 v216, 7, v216")
        a(f"buffer_load_dwordx4 v[236:239], v216, s[12:15], s58 offen{PL}")
        ready(236, 216, f"c{k}", "s_waitcnt vmcnt(0)")
    a("s_waitcnt lgkmcnt(0)")
    for ks in range(4): a(f"v_subrev_u32 v{232+ks}, s{S_RING}, v{KA(ks)}")
    for qb in range(5): a(f"v_mov_b32 v{CM(qb)}, 0xff800000")
    a("s_mov_b32 s35, 0")
    a.label("L2_max")
    for ks in range(4): a(f"buffer_load_dwordx4 {vr(KF(1,0,ks),4)}, v{232+ks}, s[8:11], s35 offen{PL}")
    a("s_waitcnt vmcnt(0)")
    for qb in range(5):
        for ks in range(4): a(f"{MF} {vr(160+4*qb,4)}, {vr(KF(1,0,ks),4)}, {ar(Q(qb,ks),4)}, {'0' if ks==0 else vr(160+4*qb,4)}")
    for qb in range(5):
        a(f"v_max3_f32 v{CM(qb)}, v{CM(qb)}, v{160+4*qb}, v{161+4*qb}")
        a(f"v_max3_f32 v{CM(qb)}, v{CM(qb)}, v{162+4*qb}, v{163+4*qb}")
    a("s_add_u32 s35, s35, 4096")
    a(f"s_cmp_lt_u32 s35, {N*256}")
    a("s_cbranch_scc1 L2_max")
    for x in (16, 32):
        a(f"v_xor_b32 v2, {x}, v0")
        a("v_lshlrev_b32 v2, 2, v2")
        for qb in range(5): a(f"ds_bpermute_b32 v{CM(qb)+1}, v2, v{CM(qb)}")
        a("s_waitcnt lgkmcnt(0)")
        for qb in range(5): a(f"v_max_f32 v{CM(qb)}, v{CM(qb)}, v{CM(qb)+1}")
    for qb in range(5):
        a(f"v_sub_f32 v{CM(qb)}, 0, v{CM(qb)}")
        for r in range(1, 4): a(f"v_mov_b32 v{CM(qb)+r}, v{CM(qb)}")
    for j in range(8): a(qk(0, 0, 0, j, True))
    a("s_nop 7")
    main_loop(True)

    a.label("L2_epi")
    stamp()
    R = lambda qb: 32 + qb * 8
    T = lambda k: (72, 80, 88, 160, 168, 184, 192, 200, 208)[k]
    AG = lambda j: 96 + 4 * j
    GV = lambda j: 128 + 4 * j
    V_AD, V_OH, V_BA, TMP = 200, 201, 206, 210
    V_OW, V_OR, V_P0, V_P1 = 214, 215, 218, 219
    FLG, SEL = 232, 236
    PK = lambda b: 240 + 4 * b
    GA = lambda k, i: 160 + 8 * k + i
    OH = lambda i: 84 + i
    OB = 92
    BO = lambda b, ks: (b * 4 + ks) * 4
    BP = lambda b, ks: 48 + (b * 4 + ks) * 4
    FO = lambda b, hf: 32 + (b * 2 + hf) * 4
    LD = lambda b: 56 + 4 * b
    def acc_reads(qb): return [f"v_accvgpr_read_b32 v{R(qb)+4*h+r}, a{O(h,qb)+r}" for h in range(2) for r in range(4)]
    def pack(d, qb): return [f"v_cvt_pk_bf16_f32 v{d+c}, v{R(qb)+2*c}, v{R(qb)+2*c+1}" for c in range(4)]
    a("@wait lg send")
    a("s_barrier")
    stamp()
    def red_read(k, s, qb): return [f"ds_read_b128 {vr(T(k)+4*h,4)}, v{3+s} offset:{red_off(s+1,qb,h)} ; #r{k}" for h in range(2)]
    def red_add(k, qb): return [f"@wait lg r{k}"] + [f"v_pk_add_f32 {vr(R(qb)+i,2)}, {vr(R(qb)+i,2)}, {vr(T(k)+i,2)}" for i in range(0, 8, 2)]
    tail = [x for n in (NU, NU + 1) for x in phase_mfmas(n, False) if x]
    pack_gaps(tail, [red_read(3 * qb + s, s, qb) for qb in range(3) for s in range(3)], acc_reads(0) + acc_reads(1)[:6], 9)
    emit(acc_reads(1)[6:] + acc_reads(2))
    emit([f"s_mul_i32 s42, s{S_PART}, {XCH_WG}", f"s_mul_i32 s43, s{S_W}, 2560", f"s_add_u32 s43, s43, {XCH_OFF}",
          "s_add_u32 s42, s42, s43",
          f"s_mul_i32 s44, s2, {XCH_WG}", "s_add_u32 s43, s43, s44",
          f"v_sub_u32 v6, 23, v{V_Q}", "v_lshlrev_b32 v6, 6, v6", f"v_lshl_add_u32 v6, v{V_G}, 4, v6",
          f"v_cmp_gt_u32 vcc, 8, v{V_Q}", "v_subrev_u32 v7, 1024, v6", f"v_mov_b32 v31, {OOB}", "v_cndmask_b32 v7, v31, v7, vcc"])
    SK = lambda qb: 240 + 4 * qb
    wr = [red_write(s, qb, h) for qb in (3, 4) for s in range(1, 4) for h in range(2)]
    for qb in range(3):
        for s in range(3):
            emit(red_add(3 * qb + s, qb))
            a(wr.pop(0))
        emit(pack(SK(qb), qb))
        a(wr.pop(0))
        va, off = (7, 0) if qb == 2 else (6, (1 - qb) * 1024)
        a(f"buffer_store_dwordx4 {vr(SK(qb),4)}, v{va}, s[12:15], s42 offen offset:{off} sc1 ; #xst")
    a("s_waitcnt lgkmcnt(0)")
    a("s_barrier")
    stamp()
    def list_done():
        a(f"s_add_u32 s{S_NB}, s{S_NB}, 31")
        a(f"s_lshr_b32 s{S_NB}, s{S_NB}, 5")
        a(f"v_lshl_add_u32 v{V_AD}, v{V_G}, 5, s{S_LIST}")
        a(f"v_lshl_add_u32 v{V_OH}, v{V_G}, 2, s{S_LIST}")
    def addr_reads(k, off):
        return [f"ds_read_b128 {vr(GA(k,0),4)}, v{V_AD} offset:{off}", f"ds_read_b128 {vr(GA(k,4),4)}, v{V_AD} offset:{off+16}"]
    def fire(k, regs, slot):
        g = [[f"s_add_u32 m0, s{S_RING}, {slot*8192 + i*1024}",
              f"v_bitop3_b32 v{GA(regs,i)}, v{GA(regs,i)}, v{9 + i%2}, s48 bitop3:0x28",
              f"buffer_load_dwordx4 v{GA(regs,i)}, s[52:55], 0 offen{PL} lds ; #b{k}"] for i in range(8)]
        g[0] = [f"s_cmp_gt_u32 s{S_NB}, {k}", f"s_cselect_b32 s54, {N*256}, 0"] + g[0]
        return g
    list_done()
    for k in range(2): emit([x + " ; #ga" for x in addr_reads(k, k * 128)])
    T = lambda k: 72 + 8 * k
    for n, qb in enumerate((3, 4)):
        for s in range(3): emit(red_read(3 * n + s, s, qb))
    emit([f"v_lshrrev_b32 v9, 1, v{V_Q}", f"v_xor_b32 v9, v9, v{V_G}", "v_lshlrev_b32 v9, 5, v9", f"v_and_b32 v10, 1, v{V_Q}",
          "v_lshl_or_b32 v9, v10, 4, v9", "v_xor_b32 v10, 0x80, v9",
          "s_mov_b32 s48, 0xfffffff0", "s_mov_b32 s52, s8", "s_mov_b32 s53, s9", "s_mov_b32 s55, 0x00020000",
          f"s_mul_i32 s41, s{S_W}, 3072", f"s_add_u32 s41, s41, {OFR}", f"v_add_u32 v{V_OW}, s41, v{VOFF0}"])
    a("@wait lg ga")
    own = acc_reads(3) + acc_reads(4)
    for n, qb in enumerate((3, 4)):
        for s in range(3): own += red_add(3 * n + s, qb)
    weave(own, fire(0, 0, 1))
    a("s_barrier")
    stamp()
    GW = lambda p, j: 96 + 32 * p + 4 * j
    OBP = lambda p: (92, 80)[p]
    def loads(k, slot, p, extra=()):
        m = [f"ds_read2_b32 {vr(OH(2*c),2)}, v{V_OH} offset0:{32*k + 16*(c%2) + 4*(c//2)} offset1:{32*k + 16*(c%2) + 4*(c//2) + 8}" for c in range(4)]
        m += list(extra)
        for j in range(16):
            m.append(f"ds_read_b64_tr_b16 {ar(GW(p,j//2)+2*(j%2),2)}, v{VA(j//2)} offset:{slot*8192 + (j%2)*4096}")
            if j == 7: m.append("s_waitcnt lgkmcnt(8)")
            if 8 <= j < 12:
                c = j - 8; o = OBP(p) + c
                m += [f"v_lshlrev_b32 v{o}, v{OH(2*c)}, v{V_HOT}", f"v_lshl_or_b32 v{o}, v11, v{OH(2*c+1)}, v{o}",
                      f"v_pk_ashrrev_i16 v{o}, 15, v{o} op_sel_hi:[0,1]", f"v_and_b32 v{o}, v{V_DEG}, v{o}"]
        return m
    def mults(p, first=False): return [f"{MF} {vr(AG(j),4)}, {ar(GW(p,j),4)}, {vr(OBP(p),4)}, {'0' if first else vr(AG(j),4)}" for j in range(8)]
    def stage(k, slot_next, groups=(), extra=()):
        a("s_waitcnt lgkmcnt(0)")
        mm = mults(k % 2, k == 0)
        emit(mm[:2] + sum(list(groups[:2]), []))
        a(f"@wait vm b{k+1}")
        ld = loads(k + 1, slot_next, (k + 1) % 2, extra)
        main = []
        for x, ins in enumerate(ld):
            main.append(ins)
            if x % 4 == 1 and len(mm) > 2: main.append(mm.pop(2))
        assert len(mm) == 2
        weave(main, list(groups[2:]))
    pre = [f"v_add_u32 v{V_OR}, {OFR}, v{VOFF0}"] + addr_reads(2, 2 * 128) + addr_reads(3, 3 * 128)
    pre += [f"v_lshlrev_b32 v11, 16, v{V_HOT}", f"v_lshl_or_b32 v{V_DEG}, v{V_DEG}, 16, v{V_DEG}",
            f"v_cmp_eq_u32 vcc, 0, v{V_G}", f"v_mov_b32 v{SEL}, 0x3f80", f"v_mov_b32 v{SEL+1}, 0", f"v_mov_b32 v{SEL+2}, 0", f"v_mov_b32 v{SEL+3}, 0",
            f"v_cndmask_b32 v{SEL}, 0, v{SEL}, vcc",
            "s_lshl_b32 s57, s2, 7", f"s_lshl_b32 s50, s{S_W}, 2", f"s_add_u32 s50, s50, {FLX_OFF}", "s_add_u32 s57, s57, s50",
            f"s_lshl_b32 s51, s{S_PART}, 7", "s_add_u32 s51, s51, s50", "s_mov_b32 s49, 0x40000", f"v_mov_b32 v2, s{S_TAG}"]
    pre2 = []
    for b in range(3):
        t = TMP
        pre2 += [f"v_add_u32 v{t}, {16*b-8}, v{V_Q}"] + ([f"v_max_i32 v{t}, 0, v{t}"] if b == 0 else [])
        pre2 += [f"v_mul_u32_u24 v{t+1}, 26, v{t}", f"v_lshrrev_b32 v{t+1}, 8, v{t+1}",
                 f"v_mul_u32_u24 v{t+2}, 10, v{t+1}", f"v_sub_u32 v{t}, v{t}, v{t+2}",
                 f"v_lshl_add_u32 v{t}, v{V_G}, 4, v{t}", f"v_lshlrev_b32 v{t}, 4, v{t}",
                 f"v_lshl_add_u32 v{V_BA+b}, v{t+1}, 15, v{t}"]
    pre2 += [f"v_add_u32 v{V_P1}, 8, v{V_Q}", f"v_lshlrev_b32 v{V_P1}, 6, v{V_P1}", f"v_lshl_add_u32 v{V_P1}, v{V_G}, 4, v{V_P1}",
             f"v_cmp_lt_u32 vcc, 7, v{V_Q}", f"v_subrev_u32 v{V_P0}, 1024, v{V_P1}", "s_mov_b32 s58, 0xffff0000",
             f"v_cndmask_b32 v{V_P0}, v31, v{V_P0}, vcc"]
    for s in range(4):
        pre2 += [f"s_lshl_b32 s41, s{S_W}, 10", f"v_add_u32 v3, s41, v{V_RED}"] if s == 0 else [f"v_xor_b32 v{3+s}, {s*1024}, v3"]
    publish2 = ["@wait vm xst",
                "buffer_store_dword v2, off, s[12:15], s57 sc1"]
    flag = f"buffer_load_dword v{FLG}, off, s[12:15], s51 sc1"
    weave(pre, fire(1, 1, 2))
    if PUB2 == 0: emit(publish2)
    a("s_waitcnt lgkmcnt(0)")
    weave(pre2, fire(2, 2, 3))
    if PUB2 == 1: emit(publish2)
    a("@wait vm b0")
    emit(loads(0, 1, 0, addr_reads(0, 4 * 128) + addr_reads(1, 5 * 128)))
    if PUB2 == 2: emit(publish2)
    stamp()
    FD = lambda b, hf: 160 + (b * 2 + hf) * 4
    PX = lambda b: 68 + 4 * b if False else (32, 36, 40)[b]
    xun = [[f"v_lshlrev_b32 v{FD(b,0)+2*c}, 16, v{XR(b)+c}", f"v_and_b32 v{FD(b,0)+2*c+1}, s58, v{XR(b)+c}"] for b in range(3) for c in range(4)]
    pl = [f"buffer_load_dwordx4 {vr(PX(b),4)}, v{V_P0 if b==0 else V_P1}, s[12:15], s43 offen offset:{(b//2)*1024} sc1 ; #p" for b in range(3)]
    def poll():
        a("@wait vm flag")
        a.label("L2_poll")
        a(f"v_readfirstlane_b32 s50, v{FLG}")
        a(f"s_cmp_eq_u32 s50, s{S_TAG}")
        a("s_cbranch_scc1 L2_got")
        a(flag + " ; #offpath")
        a("s_sub_u32 s49, s49, 1")
        a("s_waitcnt vmcnt(0)")
        a("s_cbranch_scc0 L2_poll")
        a.label("L2_got")
        emit(pl)
    merge = []
    for b in range(3):
        for c in range(4):
            merge += [[f"v_dot2_f32_bf16 v{R(2+b)+2*c}, v{PX(b)+c}, s41, v{R(2+b)+2*c}", f"v_dot2_f32_bf16 v{R(2+b)+2*c+1}, v{PX(b)+c}, 1.0, v{R(2+b)+2*c+1}"]]
        merge += [pack(PK(b), 2 + b) + [f"ds_write_b128 v{V_OW}, {vr(PK(b),4)} offset:{b*1024}"]]
    merge = [["s_mov_b32 s41, 0x3f80", "s_mov_b32 s42, 0x3f800000"]] + [[y.replace(", 1.0,", ", s42,") for y in x] for x in merge]
    stage(0, 2, fire(3, 3, 0))
    if POLL2 == 0: a(flag + " ; #flag")
    stage(1, 3, fire(4, 0, 1))
    if POLL2 == 1: a(flag + " ; #flag")
    stage(2, 0, fire(5, 1, 2))
    stamp()
    a(f"s_cmp_le_u32 s{S_NB}, 6")
    a("s_cbranch_scc1 L2_no7a")
    emit(addr_reads(3, 6 * 128))
    a("s_waitcnt lgkmcnt(0)")
    for g in fire(6, 3, 3): emit([x.replace("#b6", "#offpath") for x in g])
    a.label("L2_no7a")
    poll()
    stamp()
    stage(3, 1, xun)
    stage(4, 2)
    a("s_waitcnt lgkmcnt(0)")
    emit(mults(1))
    a(f"s_cmp_le_u32 s{S_NB}, 6")
    a("s_cbranch_scc1 L2_aggdone")
    a("s_waitcnt vmcnt(3)")
    emit(loads(6, 3, 0))
    a("s_waitcnt lgkmcnt(0)")
    emit(mults(0))
    a(f"s_mov_b32 s{S_I}, 7")
    a(f"v_add_u32 v{V_AD}, {7*128}, v{V_AD}")
    a(f"v_add_u32 v{V_OH}, {7*128}, v{V_OH}")
    a.label("L2_more")
    a(f"s_cmp_ge_u32 s{S_I}, s{S_NB}")
    a("s_cbranch_scc1 L2_aggdone")
    emit(addr_reads(3, 0))
    a("s_waitcnt lgkmcnt(0)")
    for g in fire(0, 3, 0): emit(g)
    a("s_waitcnt vmcnt(0)")
    emit(loads(0, 0, 0))
    a("s_waitcnt lgkmcnt(0)")
    emit(mults(0))
    a(f"s_add_u32 s{S_I}, s{S_I}, 1")
    a(f"v_add_u32 v{V_AD}, 128, v{V_AD}")
    a(f"v_add_u32 v{V_OH}, 128, v{V_OH}")
    a("s_branch L2_more")
    a.label("L2_aggdone")
    a(f"s_max_u32 s41, s{S_C(0)}, s{S_C(1)}")
    for p in range(2, NPROD): a(f"s_max_u32 s41, s41, s{S_C(p)}")
    a("s_cmp_le_u32 s41, 64")
    a("s_cbranch_scc1 L2_aggend")
    for p in range(NPROD):
        a(f"s_min_u32 s41, s{S_C(p)}, 64")
        a(f"s_sub_u32 s{S_C(p)}, s{S_C(p)}, s41")
        a(f"s_add_u32 s{S_S(p)}, s{S_S(p)}, 256")
    emit(seg_scalars(False))
    a("s_waitcnt vmcnt(0)")
    emit([f"v_add_u32 v{U+6}, 1, v0", f"v_add_u32 v{U+7}, s{S_LIST}, v{V_L4}"])
    for p in range(NPROD): emit(seg_load(p))
    emit([f"v_lshl_add_u32 v{U+8}, s{S_NB}, 2, v{U+7}", f"v_mov_b32 v{U+9}, 0x7fffff0f", f"ds_write_b32 v{U+8}, v{U+9}"])
    a("s_waitcnt vmcnt(0)")
    for p in range(NPROD): emit(seg_store(p))
    list_done()
    a("s_mov_b32 s48, 0xfffffff0")
    a(f"s_mov_b32 s{S_I}, 0")
    a("s_branch L2_more")
    a.label("L2_aggend")
    stamp()
    for s in range(4):
        for c in range(4): a(f"v_cvt_pk_bf16_f32 v{GV(s)+c}, v{AG(2*s)+2*c}, v{AG(2*s)+2*c+1}")
        a(f"ds_write_b128 v{3+s}, {vr(GV(s),4)}")
    a("s_waitcnt vmcnt(0)")
    emit(sum(merge, []))
    a("s_waitcnt lgkmcnt(0)")
    a("s_barrier")
    BA = lambda b, ks: 96 + (b * 4 + ks) * 4
    for b in range(3):
        for ks in range(4): a(f"ds_read_b128 {ar(BO(b,ks),4)}, v{V_OR} offset:{ks*3072 + b*1024}")
        for ks in range(4): a(f"ds_read_b128 {vr(BA(b,ks),4)}, v{V_BA+b} offset:{ks*1024}")
    stamp()
    def finish(b):
        out = [f"v_fmac_f32 v{FD(b,0)+i}, v{FO(b,0)+i}, v{LD(b)}" for i in range(8)]
        out += [f"v_cvt_pk_bf16_f32 v{PK(b)+c}, v{FD(b,0)+2*c}, v{FD(b,0)+2*c+1}" for c in range(4)]
        out += [f"buffer_store_dwordx4 {vr(PK(b),4)}, v{V_ROW(b)}, s[20:23], 0 offen{ST2}"]
        return out
    fz = []
    for b in range(3):
        pj = [f"s_waitcnt lgkmcnt({min(15, 20-8*b)})", f"{MF} {vr(LD(b),4)}, {vr(SEL,4)}, {ar(BO(b,0),4)}, 0"]
        pj += [f"{MF} {vr(FO(b,hf),4)}, {ar(AM(0,hf,ks),4)}, {ar(BO(b,ks),4)}, {'0' if ks==0 else vr(FO(b,hf),4)}" for hf in range(2) for ks in range(4)]
        pj += [f"s_waitcnt lgkmcnt({min(15, 16-8*b)})"]
        pj += [f"{MF} {vr(FD(b,hf),4)}, {ar(AM(1,hf,ks),4)}, {vr(BA(b,ks),4)}, {vr(FD(b,hf),4)}" for hf in range(2) for ks in range(4)]
        for i, x in enumerate(pj):
            a(x)
            if i == 11: a(f"v_rcp_f32 v{LD(b)}, v{LD(b)}")
            elif i >= 3:
                for _ in range(2):
                    if fz: a(fz.pop(0))
        assert not fz
        fz = finish(b)
    stamp()
    emit(fz)
    stamp()
    a(f"s_or_b32 s41, s2, s{S_W}")
    a("s_cbranch_scc1 L2_notag")
    a(f"s_mov_b32 s41, {EPO_OFF}")
    a("s_mov_b64 exec, 1")
    a("buffer_store_dword v2, off, s[12:15], s41 sc1")
    a("s_mov_b64 exec, -1")
    a.label("L2_notag")
    if stamps:
        a("s_waitcnt vmcnt(0)")
        stamp()
        assert nst[0] <= 10
        a("s_memrealtime s[98:99]")
        a("s_waitcnt lgkmcnt(0)")
        a(f"s_lshl_b32 s40, s{S_TILE}, 1")
        a(f"s_add_u32 s40, s40, s{S_SPLIT}")
        a("s_lshl_b32 s40, s40, 2")
        a(f"s_add_u32 s40, s40, s{S_W}")
        a("s_lshl_b32 s40, s40, 6")
        srd(a, 8, 4, 1 << 20, ST_OFF)
        a("s_mov_b64 exec, 1")
        for i, r in enumerate([96, 98] + [64 + 2 * k for k in range(nst[0])]):
            a(f"v_mov_b32 v1, s{r}")
            a(f"buffer_store_dword v1, off, s[8:11], s40 offset:{4*i}")
    a.label("L2_end")
    a("s_endpgm")
    gen_helper(a, S_TAG, WS_BYTES)
def desc_k2(a):
    kernel_desc(a, NAME2, 512, 256, 102)
K2_LAUNCH = f"; @launch grid=({NWG},1,1) block=(256,1,1) lds={LDS2}"
```

```python
from asmlib import *
from layout import *
MF = "v_mfma_f32_16x16x32_bf16"
def dpp(op, d, s0, s1, ctl, rm="0xf", bc=False):
    return f"{op}_dpp v{d}, v{s0}, v{s1} {ctl} row_mask:{rm} bank_mask:0xf" + (" bound_ctrl:1" if bc else "")
def wave_scan(a, v):
    for k in (1, 2, 4, 8): a(dpp("v_add_u32", v, v, v, f"row_shr:{k}", bc=True))
    a(dpp("v_add_u32", v, v, v, "row_bcast:15", "0xa"))
    a(dpp("v_add_u32", v, v, v, "row_bcast:31", "0xc"))
def row_sum(a, vs):
    for k in (8, 4, 2, 1):
        for v in vs: a(dpp("v_add_f32", v, v, v, f"row_ror:{k}"))

def gen_helper(a, S_TAG, WS_BYTES, S_TILE, S_SPLIT):
    a.label("LH")
    a(f"s_load_dwordx4 s[8:11], s[0:1], {A_SRC}")
    a(f"s_load_dwordx2 s[16:17], s[0:1], {A_WMSG}")
    a(f"s_load_dwordx4 s[20:23], s[0:1], {A_WV}")
    a("v_mov_b32 v63, v0")
    a("v_lshrrev_b32 v1, 6, v0")
    a("v_and_b32 v0, 63, v0")
    a(f"s_sub_u32 s6, s{S_TILE}, 125")
    a(f"s_lshl1_add_u32 s6, s6, s{S_SPLIT}")
    a("v_readfirstlane_b32 s3, v1")
    a("v_and_b32 v2, 15, v0")
    a("v_lshrrev_b32 v3, 4, v0")
    a("v_lshrrev_b32 v6, 1, v2")
    a("v_xor_b32 v6, v6, v3")
    a("v_lshlrev_b32 v6, 5, v6")
    a("v_and_b32 v7, 1, v2")
    a("v_lshl_or_b32 v6, v7, 4, v6")
    a("v_lshl_or_b32 v56, v3, 8, v6")
    a("v_xor_b32 v57, 0x80, v56")
    a("s_lshl_b32 s34, s3, 13")
    a("s_add_u32 s43, s34, 8192")
    a("s_add_u32 s35, s34, 4096")
    a("v_lshrrev_b32 v6, 1, v3")
    a("v_and_b32 v7, 1, v3")
    a("v_lshlrev_b32 v7, 4, v7")
    a("v_lshl_add_u32 v7, v2, 8, v7")
    a("v_add_u32 v7, s43, v7")
    a("v_and_b32 v4, 7, v2")
    for ks in range(4):
        a(f"v_add_u32 v5, {2*ks}, v6")
        a("v_xor_b32 v5, v5, v4")
        a(f"v_lshl_add_u32 v{52+ks}, v5, 5, v7")
    a("v_lshrrev_b32 v5, 3, v2")
    a("v_and_b32 v6, 3, v2")
    a("v_lshl_add_u32 v5, v5, 2, v6")
    a("v_bfe_u32 v6, v2, 2, 1")
    a("v_lshlrev_b32 v6, 12, v6")
    a("v_lshl_add_u32 v5, v5, 4, v6")
    a("v_lshl_add_u32 v5, v3, 8, v5")
    a("v_lshrrev_b32 v6, 2, v0")
    a("v_lshlrev_b32 v6, 8, v6")
    a("v_and_b32 v7, 3, v0")
    a("v_lshl_add_u32 v58, v7, 3, v6")
    a("s_lshl_b32 s36, s3, 10")
    a("v_lshl_add_u32 v59, v0, 3, s36")
    a("v_lshlrev_b32 v7, 8, v3")
    a("v_lshl_add_u32 v60, v2, 3, v7")
    a("s_lshl_b32 s36, s3, 8")
    a("v_lshl_add_u32 v61, v0, 2, s36")
    a("v_lshlrev_b32 v62, 2, v2")
    a("v_add_u32 v62, 4096, v62")
    a("s_waitcnt lgkmcnt(0)")
    a(f"s_add_u32 s48, s4, {EPO_OFF}")
    a("s_addc_u32 s49, s5, 0")
    a(f"s_load_dword s{S_TAG}, s[48:49], 0")
    srd(a, 12, 4, WS_BYTES)
    srd(a, 24, 22, 32768)
    a("s_mov_b32 s30, 32768")
    a("s_mov_b32 s31, 0x00020000")
    a("s_mov_b32 s7, s6")
    BIG = lambda t, ks: 64 + (t * 4 + ks) * 4
    SM = lambda ks: 16 + ks * 4
    DD = lambda t: 40 + 4 * t
    a.label("LH_task")
    a("s_cmp_lt_u32 s7, 8")
    a("s_cselect_b32 s28, s20, s16")
    a("s_cselect_b32 s29, s21, s17")
    a(f"s_mov_b32 s33, {MM_OFF}")
    a(f"s_cselect_b32 s33, {MV_OFF}, s33")
    a("s_and_b32 s37, s7, 7")
    a("s_lshl_b32 s38, s37, 5")
    a("s_add_u32 s38, s38, s34")
    a("s_add_u32 s39, s38, 4096")
    a("buffer_load_dwordx2 v[8:9], v58, s[24:27], s38 offen")
    a("buffer_load_dwordx2 v[10:11], v58, s[24:27], s39 offen")
    for half in range(2):
        a(f"s_add_u32 m0, s43, {half*4096}")
        for pc in range(4): a(f"buffer_load_dwordx4 v{56+pc%2}, s[28:31], s{34+half} offen offset:{pc*1024} lds")
    a("s_lshr_b32 s38, s37, 1")
    a("s_lshl_b32 s38, s38, 13")
    a("s_add_u32 s33, s33, s38")
    a("s_and_b32 s38, s37, 1")
    a("s_lshl_b32 s38, s38, 7")
    a("s_add_u32 s33, s33, s38")
    a("s_lshl_b32 s38, s3, 10")
    a("s_add_u32 s33, s33, s38")
    a("s_waitcnt vmcnt(8)")
    a("ds_write_b64 v59, v[8:9]")
    a("ds_write_b64 v59, v[10:11] offset:512")
    a("s_waitcnt vmcnt(0) lgkmcnt(0)")
    for t in range(2):
        for ks in range(4): a(f"ds_read_b128 {vr(BIG(t,ks),4)}, v{52+ks} offset:{t*4096}")
    a("s_barrier")
    for ks in range(4):
        for h in range(2): a(f"ds_read_b64_tr_b16 {vr(SM(ks)+2*h,2)}, v60 offset:{ks*1024 + h*128}")
    a("s_waitcnt lgkmcnt(0)")
    for t in range(2):
        for ks in range(4): a(f"{MF} {vr(DD(t),4)}, {vr(BIG(t,ks),4)}, {vr(SM(ks),4)}, {'0' if ks==0 else vr(DD(t),4)}")
    a(f"ds_write_b32 v61, v{DD(0)} offset:4096")
    a("s_waitcnt lgkmcnt(0)")
    a("s_barrier")
    a("ds_read_b32 v16, v62")
    a("s_waitcnt lgkmcnt(0)")
    for i in range(8): a(f"v_sub_f32 v{DD(0)+i}, v{DD(0)+i}, v16")
    for c in range(4): a(f"v_cvt_pk_bf16_f32 v{12+c}, v{DD(0)+2*c}, v{DD(0)+2*c+1}")
    a("buffer_store_dwordx4 v[12:15], v5, s[12:15], s33 offen sc1")
    a("s_add_u32 s7, s7, 6")
    a("s_cmp_lt_u32 s7, 16")
    a("s_barrier")
    a("s_cbranch_scc1 LH_task")
    NR, NI = 35, 3
    assert NR * NI * 256 == EPP
    STG = 8192
    srd(a, 16, 10, E * 4); srd(a, 20, 8, E * 4)
    a("v_lshlrev_b32 v1, 4, v63")
    for i in range(4): a(f"v_mov_b32 v{4+i}, 0")
    a("ds_write_b128 v1, v[4:7]")
    a(f"s_mul_i32 s33, s6, {EPP}")
    a("v_lshlrev_b32 v2, 2, v63")
    a("s_mov_b32 s40, 52429")
    a("v_mov_b32 v8, 1")
    a("v_lshrrev_b32 v3, 6, v63")
    a("v_lshlrev_b32 v3, 2, v3")
    DST = lambda i: 64 + i; SRC = lambda i: 104 + i; BK = lambda i: 144 + i
    def edge_loop(tag, body, with_src):
        a("s_mov_b32 s36, s33")
        a(f"s_mov_b32 s37, {NI}")
        a.label(tag)
        a("s_lshl_b32 s38, s36, 2")
        for i in range(NR):
            if i and i % 4 == 0: a("s_add_u32 s38, s38, 4096")
            a(f"buffer_load_dword v{DST(i)}, v2, s[16:19], s38 offen offset:{(i%4)*1024}")
            if with_src:
                if i == 28: a("s_waitcnt vmcnt(40)")
                a(f"buffer_load_dword v{SRC(i)}, v2, s[20:23], s38 offen offset:{(i%4)*1024}")
        a("v_add_u32 v9, s36, v63")
        a("s_waitcnt vmcnt(0)")
        body()
        a(f"s_add_u32 s36, s36, {NR*256}")
        a("s_sub_u32 s37, s37, 1")
        a("s_cmp_lg_u32 s37, 0")
        a(f"s_cbranch_scc1 {tag}")
    def bucket(i):
        a(f"v_mul_u32_u24 v{BK(i)}, s40, v{DST(i)}")
        a(f"v_lshrrev_b32 v{BK(i)}, 19, v{BK(i)}")
        a(f"v_cmp_gt_u32 vcc, {E - 256*i}, v9")
    def count():
        for i in range(NR):
            bucket(i)
            a(f"v_cndmask_b32 v10, v11, v{BK(i)}, vcc")
            a("v_lshlrev_b32 v10, 2, v10")
            a("ds_add_u32 v10, v8")
    a("v_mov_b32 v11, 1023")
    a("s_waitcnt lgkmcnt(0)")
    a("s_barrier")
    edge_loop("LH_count", count, False)
    a("s_waitcnt lgkmcnt(0)")
    a("s_barrier")
    a("ds_read_b128 v[4:7], v1")
    a("s_waitcnt lgkmcnt(0)")
    a("v_add_u32 v12, v4, v5")
    a("v_add_u32 v13, v12, v6")
    a("v_add_u32 v14, v13, v7")
    a("v_mov_b32 v15, v14")
    wave_scan(a, 15)
    a("v_cmp_eq_u32 vcc, 63, v0")
    a("s_and_saveexec_b64 s[44:45], vcc")
    a("ds_write_b32 v3, v15 offset:4096")
    a("s_mov_b64 exec, -1")
    a("v_mov_b32 v9, 0")
    a("v_sub_u32 v15, v15, v14")
    a("s_waitcnt lgkmcnt(0)")
    a("s_barrier")
    a("ds_read_b128 v[16:19], v9 offset:4096")
    a("s_waitcnt lgkmcnt(0)")
    for w in range(3):
        a(f"s_cmp_gt_u32 s3, {w}")
        a("s_cselect_b32 s39, 1, 0")
        a(f"v_mad_u32_u24 v15, v{16+w}, s39, v15")
    a("v_mov_b32 v16, v15")
    a("v_add_u32 v17, v15, v4")
    a("v_add_u32 v18, v15, v12")
    a("v_add_u32 v19, v15, v13")
    a("ds_write_b128 v1, v[16:19]")
    a("v_lshlrev_b32 v9, 7, v63")
    a("v_mov_b32 v10, 0x7fffff00")
    a("v_cmp_gt_u32 vcc, 250, v63")
    a("s_lshl_b32 s39, s6, 2")
    a(f"s_add_u32 s39, s39, {TAB_OFF}")
    a("v_cndmask_b32 v9, v10, v9, vcc")
    for i in range(4):
        a(f"v_lshl_or_b32 v{20+i}, v{4+i}, 16, v{16+i}")
        a(f"buffer_store_dword v{20+i}, v9, s[12:15], s39 offen offset:{32*i} sc1")
    a("s_waitcnt lgkmcnt(0)")
    a("s_barrier")
    def scatter():
        for i in range(NR):
            bucket(i)
            a(f"v_mul_u32_u24 v10, 10, v{BK(i)}")
            a(f"v_sub_u32 v{DST(i)}, v{DST(i)}, v10")
            a(f"v_cndmask_b32 v10, v11, v{BK(i)}, vcc")
            a("v_lshlrev_b32 v10, 2, v10")
            a(f"ds_add_rtn_u32 v{BK(i)}, v10, v8")
            a(f"v_and_b32 v10, 7, v{SRC(i)}")
            a(f"v_lshl_or_b32 v{DST(i)}, v10, 5, v{DST(i)}")
            a(f"v_lshl_or_b32 v{DST(i)}, v{SRC(i)}, 8, v{DST(i)}")
        a("s_waitcnt lgkmcnt(0)")
        for i in range(NR):
            a(f"v_lshlrev_b32 v{BK(i)}, 2, v{BK(i)}")
            a(f"ds_write_b32 v{BK(i)}, v{DST(i)} offset:{STG}")
    edge_loop("LH_scatter", scatter, True)
    a("s_waitcnt lgkmcnt(0)")
    a("s_barrier")
    a(f"s_mul_i32 s38, s6, {EPP*4}")
    a(f"s_add_u32 s38, s38, {SEG_OFF}")
    nq = EPP // 4
    a("v_mov_b32 v10, 0x7fffff00")
    a(f"v_cmp_gt_u32 vcc, {nq % 256}, v63")
    a("v_add_u32 v2, 65536, v1")
    a("v_cndmask_b32 v9, v10, v1, vcc")
    for i in range(nq // 256 + 1):
        off = STG + 4096 * i
        a(f"ds_read_b128 {vr(64+4*i,4)}, v{1 if off < 65536 else 2} offset:{off % 65536}")
    a("s_waitcnt lgkmcnt(0)")
    for i in range(nq // 256 + 1):
        a(f"buffer_store_dwordx4 {vr(64+4*i,4)}, v{1 if i < nq//256 else 9}, s[12:15], s38 offen sc1")
        a("s_add_u32 s38, s38, 4096")
    a("s_add_u32 s38, s6, 250")
    a("s_lshl_b32 s38, s38, 7")
    a("s_lshl_b32 s39, s3, 2")
    a("s_add_u32 s38, s38, s39")
    a(f"s_add_u32 s38, s38, {FLH_OFF}")
    a(f"s_add_u32 s{S_TAG}, s{S_TAG}, 0x9e3779b1")
    a(f"v_mov_b32 v1, s{S_TAG}")
    a("s_waitcnt vmcnt(0)")
    a("s_mov_b64 exec, 1")
    a("buffer_store_dword v1, off, s[12:15], s38 sc1")
    a("s_endpgm")
```

```python
from asmlib import *
from layout import *
from helper import wave_scan, row_sum, gen_helper
NAME2 = "gather_scatter__hybrid_graph_tf_graphgps__graph_kernel"
NWG = 256
NSTEP = 39
RING = 32768
SPARE = 4 * RING
LIST_B = 1088 * 4
LREG = SPARE + 4 * LIST_B
OFR = SPARE + 20480
LDS2 = OFR + 12288
ST2 = ' sc1'
SKIP = ()
PREFETCH = 1
HOLES = (1, 3, 5)
REAL = 0
PUB, POLL, RDY, WK = 2, 2, 5, 0
PUB2, POLL2 = 0, 0
WS_BYTES = XCH_OFF + NWG * XCH_WG
MF = "v_mfma_f32_16x16x32_bf16"
MF16 = "v_mfma_f32_16x16x16_bf16"
OOB = "0x7fffff00"
NORM2_MAX = 48.0
O = lambda j, qb: (qb * 8 + j) * 4
Q = lambda qb, ks: 160 + (qb * 4 + ks) * 4
AM = lambda m, hf, ks: 160 + ((m * 2 + hf) * 4 + ks) * 4
KF = lambda par, kb, ks: 32 + par * 32 + (kb * 4 + ks) * 4
VF = lambda par, j: 96 + par * 32 + j * 4
S = lambda par, kb: 160 + par * 8 + kb * 4
P = lambda n: 176 + (n % 2) * 4 if n % 4 < 2 else 232 + (n % 2) * 4
KA = lambda ks: 8 + ks
VA = lambda j: 12 + j
VOFF0, VOFF1 = 20, 21
V_TAB, V_L4, V_Q, V_G = 22, 23, 24, 25
V_DEG, V_HOT, V_RED = 26, 27, 1
V_ROW = lambda b: 28 + b
ENT = lambda j: 184 + j
CM = lambda qb: 200 + qb * 4
XR = lambda b: 220 + b * 4
LK = lambda ks: 184 + 4 * ks
LV = lambda j: 240 + 2 * j
LS, LP, LA = 200, 204, 244
U = 244
S_W, S_TILE, S_SPLIT, S_RING, S_KOFF, S_CNT, S_LEFT = 3, 28, 29, 30, 31, 33, 34
S_AM, S_LIST, S_NB, S_I, S_PART, S_TAG, S_KEY = 40, 45, 46, 47, 56, 59, 38
S_C = lambda p: 84 + p
S_S = lambda p: 90 + p
PL = ' sc1'
ST_OFF = 0x1000000
def red_off(s, qb, h):
    k = qb * 6 + (s - 1) * 2 + h
    return ((8 + k) % 32) * 1024

def gen_k2(a, stamps=False):
    nst = [0]
    seq = [0]
    def stamp():
        seq[0] += 1
        if not stamps or (SKIP and seq[0] in SKIP): return
        i = nst[0]; nst[0] += 1
        a(f"{'s_memrealtime' if REAL else 's_memtime'} s[{64+2*i}:{65+2*i}]")
    def emit(xs):
        for x in xs: a(x)
    def weave(main, groups, first=0):
        n = len(main) - first
        pos = {first + (k * n) // len(groups): g for k, g in enumerate(groups)} if groups else {}
        assert len(pos) == len(groups)
        for x, ins in enumerate(main):
            a(ins)
            emit(pos.get(x, []))
    kernel_begin(a, NAME2)
    a(f"s_cmp_ge_u32 s2, {NWG}")
    a("s_cbranch_scc1 L2_end")
    a(f"s_load_dwordx2 s[4:5], s[0:1], {A_WS}")
    a("s_and_b32 s35, s2, 7")
    order = [x for x in range(8) if x not in HOLES] + list(HOLES)
    a("s_lshl_b32 s35, s35, 2")
    a(f"s_lshr_b32 s35, {sum(order.index(x) << (4 * x) for x in range(8)):#x}, s35")
    a("s_and_b32 s35, s35, 7")
    a(f"s_lshr_b32 s{S_TILE}, s2, 4")
    a(f"s_lshl3_add_u32 s{S_TILE}, s{S_TILE}, s35")
    a(f"s_bfe_u32 s{S_SPLIT}, s2, 0x10003")
    a(f"s_cmp_ge_u32 s{S_TILE}, 125")
    a("s_cbranch_scc1 LH")
    a(f"s_load_dwordx2 s[16:17], s[0:1], {A_X}")
    a(f"s_load_dwordx4 s[60:63], s[0:1], {A_WQ}")
    a(f"s_load_dwordx2 s[20:21], s[0:1], {A_OUT}")
    a(f"s_load_dwordx2 s[24:25], s[0:1], {A_DEG}")
    if stamps: a("s_memrealtime s[96:97]")
    stamp()
    if PREFETCH:
        a("s_getpc_b64 s[42:43]")
        a.label("L2_pc")
        a("s_lshr_b32 s35, s2, 3")
        a("v_and_b32 v2, 7, v0")
        a("v_lshl_add_u32 v2, s35, 3, v2")
        a("v_lshlrev_b32 v2, 7, v2")
        a("v_mov_b32 v3, L2_slow-L2_pc")
        a("v_cmp_gt_u32 vcc, v3, v2")
        a("v_add_u32 v3, L2_epi-L2_slow, v2")
        a("v_cndmask_b32 v2, v3, v2, vcc")
        a("v_min_u32 v2, LH-L2_pc, v2")
        a("v_mov_b32 v3, s43")
        a("v_add_co_u32 v2, vcc, s42, v2")
        a("v_addc_co_u32 v3, vcc, 0, v3, vcc")
        a("global_load_dword v160, v[2:3], off")
    a("v_lshrrev_b32 v1, 6, v0")
    a("v_and_b32 v0, 63, v0")
    a(f"s_xor_b32 s{S_PART}, s2, 8")
    a(f"v_readfirstlane_b32 s{S_W}, v1")
    a(f"v_and_b32 v{V_Q}, 15, v0")
    a(f"v_lshrrev_b32 v{V_G}, 4, v0")
    a(f"v_lshlrev_b32 v{VOFF0}, 4, v0")
    a(f"v_add_u32 v{VOFF1}, 4096, v{VOFF0}")
    a(f"s_lshl_b32 s{S_RING}, s{S_W}, 15")
    a(f"s_mul_i32 s36, s{S_TILE}, {80*256}")
    a(f"s_mul_i32 s35, s{S_SPLIT}, 10")
    a(f"s_add_u32 s35, s35, s{S_W}")
    SO = lambda i: 84 + i
    for i in range(5):
        a(f"s_add_u32 s{SO(i)}, s35, {4*i}")
        a(f"s_sub_u32 s41, s{SO(i)}, 20")
        a(f"s_cselect_b32 s{SO(i)}, s{SO(i)}, s41")
        a(f"s_lshl_b32 s{SO(i)}, s{SO(i)}, 10")
    a(f"v_lshrrev_b32 v2, 1, v{V_Q}")
    a(f"v_xor_b32 v2, v2, v{V_G}")
    a("v_lshlrev_b32 v2, 5, v2")
    a(f"v_and_b32 v3, 1, v{V_Q}")
    a("v_lshl_or_b32 v2, v3, 4, v2")
    a(f"v_lshl_or_b32 v218, v{V_G}, 8, v2")
    a("v_xor_b32 v219, 0x80, v218")
    a(f"s_and_b32 s41, s{S_W}, 1")
    a("s_lshl_b32 s41, s41, 7")
    a("v_xor_b32 v4, s41, v218")
    a("s_lshl_b32 s41, s2, 3")
    a("s_and_b32 s41, s41, 0x80")
    a("v_xor_b32 v218, s41, v218")
    a("v_xor_b32 v219, s41, v219")
    a(f"v_lshlrev_b32 v220, 6, v{V_G}")
    a(f"v_xor_b32 v220, v220, v{VOFF0}")
    a(f"s_lshl_b32 s50, s{S_W}, 13")
    a("s_waitcnt lgkmcnt(0)")
    stamp()
    a(f"s_mov_b32 s18, {N*256}")
    a("s_mov_b32 s19, 0x00020000")
    W = lambda i: 32 + 4 * i
    for i in range(5):
        a(f"s_add_u32 s41, s36, s{SO(i)}")
        a(f"buffer_load_dwordx4 {vr(W(i),4)}, v{VOFF0}, s[16:19], s41 offen ; #x{i}")
    a(f"s_add_u32 s48, s4, {EPO_OFF}")
    a("s_addc_u32 s49, s5, 0")
    a(f"s_load_dword s{S_TAG}, s[48:49], 0")
    RT = lambda pc: 90 + pc if pc < 6 else 94 + pc
    a("s_lshr_b32 s35, s2, 4")
    for pc in range(8):
        a(f"s_add_u32 s41, s35, {pc}")
        a("s_and_b32 s41, s41, 7")
        a(f"s_lshl_b32 s{RT(pc)}, s41, 10")
    def w_groups(m):
        tmp = Asm(); srd(tmp, 52, 60 + 2 * m, 32768)
        g = [[f"s_add_u32 m0, s51, s{RT(pc)}", f"s_add_u32 s48, s50, s{RT(pc)}",
              f"buffer_load_dwordx4 v{218 + (pc%2 if m else 2)}, s[52:55], s48 offen lds ; #w{m}"] for pc in range(8)]
        g[0] = [x.strip() for x in tmp.lines] + [f"s_add_u32 s51, s{S_RING}, {m*8192}"] + g[0]
        return g
    def w_dma(m):
        for g in w_groups(m): emit(g)
    w_dma(0)
    stamp()
    srd(a, 12, 4, WS_BYTES)
    srd(a, 8, 4, N * 256, HP_OFF)
    for s, nb in ((20, N * 256), (24, N * 2)):
        a(f"s_mov_b32 s{s+2}, {nb}")
        a(f"s_mov_b32 s{s+3}, 0x00020000")
    a(f"s_lshl_b32 s35, s{S_SPLIT}, 2")
    a(f"s_add_u32 s{S_KEY}, s35, s{S_W}")
    a(f"s_mul_i32 s{S_KOFF}, s{S_KEY}, {NSTEP*8192}")
    a(f"s_lshl_b32 s{S_AM}, s{S_W}, 13")
    a(f"s_add_u32 s{S_AM}, s{S_AM}, {MV_OFF}")
    a(f"s_lshl_b32 s39, s{S_TILE}, 3")
    a("s_add_u32 s39, s39, s35")
    a(f"s_xor_b32 s35, s{S_SPLIT}, 1")
    a("s_mul_i32 s37, s35, 15")
    a(f"v_xor_b32 v3, s37, v{V_Q}")
    a("s_mul_i32 s37, s35, 3")
    a(f"s_xor_b32 s48, s37, s{S_W}")
    a("s_add_u32 s39, s39, s48")
    a(f"s_mul_i32 s49, s35, {4*4096}")
    a("s_add_u32 s42, s36, s49")
    a(f"s_add_u32 s49, s49, {SPARE}")
    a("s_lshl_b32 s37, s35, 13")
    a("s_sub_u32 s37, 4096, s37")
    a(f"s_mul_i32 s{S_LEFT}, s35, 4")
    a(f"s_mul_i32 s{S_LEFT}, s{S_LEFT}, s{S_W}")
    a(f"s_add_u32 s{S_LEFT}, s{S_LEFT}, s{S_W}")
    a(f"s_mul_i32 s{S_LIST}, s{S_W}, {LIST_B}")
    a(f"s_add_u32 s{S_LIST}, s{S_LIST}, {SPARE}")
    a(f"v_lshrrev_b32 v5, 1, v{V_G}")
    a(f"v_and_b32 v6, 1, v{V_G}")
    a(f"v_lshrrev_b32 v2, 2, v{V_Q}")
    a(f"v_and_b32 v7, 3, v{V_Q}")
    a("v_lshlrev_b32 v5, 5, v5")
    a("v_lshl_add_u32 v200, v2, 3, v7")
    a("v_lshl_or_b32 v31, v6, 4, v5")
    a(f"s_add_u32 s41, s{S_RING}, 8192")
    fam = (("v3", "s49", 232), (f"v{V_Q}", f"s{S_RING}", KA(0)), ("v200", "s41", 204))
    for row, base, dst in fam: a(f"v_and_b32 v{dst+1}, 7, {row}")
    for row, base, dst in fam: a(f"v_lshl_add_u32 v{dst}, {row}, 8, {base}")
    for row, base, dst in fam: a(f"v_lshl_or_b32 v{dst}, v{dst+1}, 5, v{dst}")
    for row, base, dst in fam: a(f"v_xor_b32 v{dst}, v{dst}, v31")
    for ks in range(1, 4):
        for row, base, dst in fam: a(f"v_xor_b32 v{dst+ks}, {64*ks}, v{dst}")
    for ks in range(4): a(f"v_xor_b32 v{208+ks}, 0x480, v{204+ks}")
    a(f"v_lshlrev_b32 v5, 4, v7")
    a(f"v_lshl_add_u32 v5, v{V_G}, 11, v5")
    a("v_mul_u32_u24 v6, 0x140, v2")
    a(f"s_lshl_b32 s41, s{S_W}, 6")
    a("v_add_u32 v5, v5, v6")
    a("v_xor_b32 v212, s41, v5")
    a("v_add_u32 v213, 1024, v212")
    a(f"v_add_u32 v214, {2*RING}, v212")
    a(f"v_add_u32 v215, {2*RING+1024}, v212")
    a(f"v_lshl_add_u32 v2, v{V_G}, 2, v2")
    a(f"v_lshl_add_u32 v5, v7, 3, s{S_RING}")
    a("v_and_b32 v6, 7, v2")
    a("v_lshl_add_u32 v5, v2, 8, v5")
    a("v_lshl_or_b32 v5, v6, 5, v5")
    a(f"v_xor_b32 v{VA(0)}, s41, v5")
    for j in range(1, 8): a(f"v_xor_b32 v{VA(j)}, {32*j}, v{VA(0)}")
    a("v_lshlrev_b32 v3, 8, v3")
    a(f"v_lshl_add_u32 v3, v{V_G}, 4, v3")
    a(f"s_lshl_b32 s44, s{S_W}, 6")
    a("s_add_u32 s44, s44, s42")
    a("s_mul_i32 s43, s37, 3")
    a("s_add_u32 s44, s44, s43")
    a(f"v_add_u32 v{V_ROW(1)}, s44, v3")
    a(f"v_mov_b32 v3, {OOB}")
    a(f"v_cmp_lt_u32 vcc, 7, v{V_Q}")
    a(f"v_add_u32 v{V_ROW(2)}, s37, v{V_ROW(1)}")
    a(f"v_subrev_u32 v{V_ROW(0)}, s37, v{V_ROW(1)}")
    a(f"v_cndmask_b32 v{V_ROW(0)}, v3, v{V_ROW(0)}, vcc")
    a(f"v_sub_u32 v2, 9, v{V_Q}")
    a(f"s_cmp_eq_u32 s{S_SPLIT}, 1")
    a("s_cselect_b64 vcc, -1, 0")
    a("s_mul_i32 s44, s39, 10")
    a(f"v_cndmask_b32 v5, v2, v{V_Q}, vcc")
    a(f"v_cmp_gt_u32 vcc, 10, v{V_Q}")
    a("v_add_lshl_u32 v2, v5, s44, 1")
    a("v_sub_u32 v5, 15, v5")
    a("v_lshlrev_b32 v5, v5, 1")
    a(f"v_cndmask_b32 v{V_DEG}, v3, v2, vcc")
    a(f"v_cndmask_b32 v{V_HOT}, 0, v5, vcc")
    a(f"v_lshlrev_b32 v{V_L4}, 2, v0")
    a("s_lshl_b32 s39, s39, 5")
    a(f"s_add_u32 s39, s39, {TAB_OFF}")
    a(f"v_add_u32 v{V_RED}, s{S_RING}, v{VOFF0}")
    a(f"v_add_u32 v6, {2*RING}, v{VOFF0}")
    a(f"s_lshl_b32 s44, s{S_W}, 2")
    a(f"v_add_u32 v5, {OFR}, v{VOFF0}")
    a("v_add_u32 v2, s44, v5")
    def flag_addr(dst, r, tail):
        a(f"s_mul_i32 s41, {r}, 156")
        a("s_mul_i32 s41, s41, 52429")
        a("s_lshr_b32 s41, s41, 18")
        a(f"v_add_u32 v{dst}, s41, v0")
        a(f"v_min_u32 v{dst}, 249, v{dst}")
        a("v_cmp_gt_u32 vcc, 33, v0")
        emit(tail)
        a(f"v_cndmask_b32 v{dst}, v7, v{dst}, vcc")
        a(f"v_lshlrev_b32 v{dst}, 7, v{dst}")
    flag_addr(216, f"s{S_KEY}", ["v_mov_b32 v7, 249", "s_nop 0"])
    a(f"s_xor_b32 s44, s{S_KEY}, 4")
    flag_addr(V_TAB, "s44", ["v_and_b32 v7, 7, v0", "v_min_u32 v7, 5, v7", "v_add_u32 v7, 250, v7"])
    a(f"s_lshl_b32 s57, s{S_TILE}, 1")
    a(f"s_add_u32 s57, s57, s{S_SPLIT}")
    a("s_lshl_b32 s57, s57, 7")
    a(f"s_lshl_b32 s44, s{S_W}, 2")
    a("s_add_u32 s57, s57, s44")
    a(f"s_add_u32 s57, s57, {FLH_OFF}")
    a(f"s_mov_b32 s58, {FLH_OFF}")
    a(f"s_sub_u32 s35, s{S_LIST}, s{S_RING}")
    for i in range(12): a(f"v_add_u32 v{LA+i}, s35, v{KA(0)+i}")
    a(f"v_cmp_eq_u32 vcc, 0, v{V_Q}")
    a(f"s_mov_b32 s41, {f32(1.0/128)}")
    a(f"v_mov_b32 v217, {f32(1e-5)}")
    a("v_mov_b32 v221, 0x3f80")
    a("v_mov_b32 v31, 0xffff")
    a("v_cndmask_b32 v31, 0, v31, vcc")
    a("s_mov_b32 s43, 0xffff0000")
    a(f"s_cmp_lt_u32 s{S_W}, 2")
    a(f"s_cselect_b32 s44, s{SO(2)}, 0x7ff00000")
    if WK == 0: w_dma(1)
    X = lambda i, k: 64 + 8 * i + k
    A_, B_ = (lambda i: 136 + 2 * i), (lambda i: 146 + 2 * i)
    p2 = lambda r: vr(r, 2)
    def layernorm(I, own):
        for i in I:
            a(f"@wait vm x{i}")
            for c in range(4):
                a(f"v_lshlrev_b32 v{X(i,2*c)}, 16, v{W(i)+c}")
                a(f"v_and_b32 v{X(i,2*c+1)}, s43, v{W(i)+c}")
        if own: stamp()
        for i in I: a(f"v_pk_add_f32 {p2(A_(i))}, {p2(X(i,0))}, {p2(X(i,2))}")
        for i in I: a(f"v_pk_add_f32 {p2(B_(i))}, {p2(X(i,4))}, {p2(X(i,6))}")
        for i in I: a(f"v_pk_add_f32 {p2(A_(i))}, {p2(A_(i))}, {p2(B_(i))}")
        for i in I: a(f"v_add_f32 v{A_(i)}, v{A_(i)}, v{A_(i)+1}")
        row_sum(a, [A_(i) for i in I])
        for i in I: a(f"v_mul_f32 v{A_(i)}, s41, v{A_(i)}")
        for k in range(0, 8, 2):
            for i in I: a(f"v_pk_add_f32 {p2(X(i,k))}, {p2(X(i,k))}, {p2(A_(i))} op_sel_hi:[1,0] neg_lo:[0,1] neg_hi:[0,1]")
        for i in I: a(f"v_pk_mul_f32 {p2(B_(i))}, {p2(X(i,0))}, {p2(X(i,0))}")
        for k in range(2, 8, 2):
            for i in I: a(f"v_pk_fma_f32 {p2(B_(i))}, {p2(X(i,k))}, {p2(X(i,k))}, {p2(B_(i))}")
        for i in I: a(f"v_add_f32 v{B_(i)}, v{B_(i)}, v{B_(i)+1}")
        row_sum(a, [B_(i) for i in I])
        for i in I: a(f"v_fma_f32 v{B_(i)}, v{B_(i)}, s41, v217")
        for i in I: a(f"v_rsq_f32 v{B_(i)}, v{B_(i)}")
        for k in range(0, 8, 2):
            for i in I: a(f"v_pk_mul_f32 {p2(X(i,k))}, {p2(X(i,k))}, {p2(B_(i))} op_sel_hi:[1,0]")
        for i in I:
            a(f"s_add_u32 s42, s{SO(i)}, {SPARE}")
            a(f"v_add_u32 v{B_(i)}, s42, v4")
            for c in range(4): a(f"v_cvt_pk_bf16_f32 v{W(i)+c}, v{X(i,2*c)}, v{X(i,2*c+1)}")
            if own:
                a(f"v_bfi_b32 v{X(i,0)}, v31, v221, v{W(i)}")
                for c in range(1, 4): a(f"v_mov_b32 v{X(i,c)}, v{W(i)+c}")
                a(f"s_add_u32 s42, s36, s{SO(i) if i < 2 else 44}")
                a(f"buffer_store_dwordx4 {vr(X(i,0),4)}, v4, s[8:11], s42 offen sc1 ; #hp")
        for i in I: a(f"ds_write_b128 v{B_(i)}, {vr(W(i),4)}")
    layernorm(range(3), True)
    stamp()
    a("@wait vm w0")
    a("s_barrier")
    WQ = lambda hf, ks: 32 + (hf * 4 + ks) * 4
    for hf in range(2):
        for ks in range(4):
            for hh in range(2): a(f"ds_read_b64_tr_b16 {ar(WQ(hf,ks)+2*hh,2)}, v{212 + 2*(ks//2) + hh} offset:{(ks%2)*RING + 8*hf}")
    if WK == 1: w_dma(1)
    layernorm(range(3, 5), False)
    stamp()
    a("s_waitcnt lgkmcnt(0)")
    a(f"s_add_u32 s{S_TAG}, s{S_TAG}, 0x9e3779b1")
    publish = [f"v_mov_b32 v7, s{S_TAG}", "@wait vm hp",
               "buffer_store_dword v7, off, s[12:15], s57 sc1"]
    if PUB < 0: emit(publish)
    stamp()
    a("s_barrier")
    stamp()

    def dma(slot, piece, last=7):
        out = []
        half, sub = piece // 4, piece % 4
        if sub == 0: out.append(f"s_add_u32 m0, s{S_RING}, {slot*8192 + half*4096}")
        out.append(f"buffer_load_dwordx4 v{VOFF0+half}, s[8:11], s{S_KOFF} offen offset:{sub*1024}{PL} lds")
        if piece == last: out.append(f"s_add_u32 s{S_KOFF}, s{S_KOFF}, 8192")
        return out
    tagged = lambda grp, tag: [x + f" ; #{tag}" if x.startswith("buffer_") else x for x in grp]
    HB = lambda qb, ks: 32 + (qb * 4 + ks) * 4
    MA = lambda hf, ks: 112 + (hf * 4 + ks) * 4
    QD = lambda qb, hf: 144 + (qb * 2 + hf) * 4
    def ready(regs, addr, tag, wait):
        a(wait)
        a("s_mov_b32 s49, 0x40000")
        a.label(f"L2_rdy_{tag}")
        for i in range(4): a(f"v_xor_b32 v{regs+i}, s{S_TAG}, v{regs+i}")
        a(f"v_or3_b32 v{regs}, v{regs}, v{regs+1}, v{regs+2}")
        a(f"v_or_b32 v{regs}, v{regs}, v{regs+3}")
        a(f"v_cmp_ne_u32 vcc, 0, v{regs}")
        a("s_sub_u32 s49, s49, 1")
        a("s_cselect_b64 vcc, 0, vcc")
        a(f"s_cbranch_vccz L2_go_{tag}")
        a(f"buffer_load_dwordx4 {vr(regs,4)}, v{addr}, s[12:15], s58 offen{PL} ; #offpath")
        a("s_waitcnt vmcnt(0)")
        a(f"s_branch L2_rdy_{tag}")
        a.label(f"L2_go_{tag}")
    def pack_gaps(mf, mems, vals, vstart=1):
        cost = lambda x: 0 if x.startswith(("s_", "@")) else 8 if x.startswith(("buffer_", "ds_write_b128")) else 4
        for n, m in enumerate(mf):
            a(m)
            room = 8
            while mems and sum(map(cost, mems[0])) <= room and not (mems[0][-1].startswith("ds_write") and vals):
                room -= sum(map(cost, mems[0])); emit(mems.pop(0))
            while vals and room >= 4 and n >= vstart:
                a(vals.pop(0)); room -= 4
        emit(vals)
        for g in mems: emit(g)
    def gemm(blocks, reads, post, extra):
        for qb in range(5):
            x = extra.get(qb, [])
            if callable(x): x = x()
            rd = reads(qb + 2) if qb + 2 < 5 else []
            po = post(qb - 1) if qb else []
            a(f"@wait lg hb{qb}")
            pack_gaps(blocks(qb), [[y] for y in rd if y.startswith("ds_")] + x + [[y] for y in po if y.startswith("ds_")],
                      [y for y in rd + po if y.startswith("v_")], 2)
        x = extra.get(5, [])
        for g in (x() if callable(x) else x): emit(g)
        emit(post(4))
        a("s_waitcnt lgkmcnt(0)")
        a("s_barrier")
    def chain(d, A, qb): return [f"{MF} {vr(d,4)}, {ar(A(ks),4)}, {vr(HB(qb,ks),4)}, {'0' if ks==0 else vr(d,4)}" for ks in range(4)]
    def reads1(qb):
        return [f"ds_read_b128 {vr(HB(qb,ks),4)}, v{232+ks} ; #hb{qb}" for ks in range(4)] + ([f"v_add_u32 v{232+ks}, s37, v{232+ks}" for ks in range(4)] if qb < 4 else [])
    def post1(qb):
        return [f"v_cvt_pk_bf16_f32 v{QD(qb,0)+c}, v{QD(qb,0)+2*c}, v{QD(qb,0)+2*c+1}" for c in range(4)] + [f"ds_write_b128 v{V_RED}, {vr(QD(qb,0),4)} offset:{16384 + qb*1024}"]
    wk_reads = [f"ds_read_b128 {ar((hf*4+ks)*4,4)}, v{204 + 4*hf + ks}" for hf in range(2) for ks in range(4)]
    flag1 = f"buffer_load_dwordx4 v[236:239], v216, s[12:15], s58 offen{PL} ; #flag1"
    xl = [f"buffer_load_dwordx4 {vr(XR(b),4)}, v{V_ROW(b)}, s[16:19], 0 offen" for b in range(3)] + [f"buffer_load_ushort v{V_DEG}, v{V_DEG}, s[24:27], 0 offen"]
    emit(reads1(0) + reads1(1))
    gemm(lambda qb: chain(QD(qb, 0), lambda ks: WQ(0, ks), qb) + chain(QD(qb, 1), lambda ks: WQ(1, ks), qb), reads1, post1,
         {**({0: [publish] + w_groups(1)[:3], 1: w_groups(1)[3:5], 2: w_groups(1)[5:], 5: [["@wait vm w1"] + wk_reads]} if WK == 2 else
             {PUB: [publish], 3: [[y] for y in xl], 4: [["@wait vm w1", wk_reads[0]]] + [[y] for y in wk_reads[1:]]})})
    stamp()
    Z = lambda qb: 184 + 4 * qb
    def reads2(qb): return [f"ds_read_b128 {vr(HB(qb,ks),4)}, v{VOFF0 if ks<2 else 6} offset:{(ks%2)*RING + 16384 + qb*1024} ; #hb{qb}" for ks in range(4)]
    def post2(qb):
        q = QD(qb, 0); z = Z(qb)
        po = [f"v_mul_f32 v{z}, s44, v{z}", f"v_mul_f32 v{z+1}, v{q}, v{q}", f"v_mul_f32 v{z+2}, v{q+1}, v{q+1}"]
        for i in range(2, 8): po.append(f"v_fmac_f32 v{z+1+i%2}, v{q+i}, v{q+i}")
        po += [f"v_fma_f32 v{q+i}, v{q+i}, s41, v{z}" for i in range(8)]
        po += [f"v_add_f32 v{z+1}, v{z+1}, v{z+2}"] + [f"v_cvt_pk_bf16_f32 v{q+c}, v{q+2*c}, v{q+2*c+1}" for c in range(4)]
        po += [f"v_max_f32 v{Z(0)+1}, v{Z(0)+1}, v{z+1}"] if qb else []
        po += [f"ds_write_b128 v{V_RED}, {vr(q,4)} offset:{24576 + qb*1024}"]
        if qb == 4: po += [f"ds_write_b32 v2, v{Z(0)+1}"]
        return po
    def dma_rot(t, pc):
        g = [f"s_add_u32 s51, s{S_RING}, {t*8192}"] if pc == 0 else []
        g += [f"s_add_u32 m0, s51, s{RT(pc)}", f"s_add_u32 s48, s{S_KOFF}, s{RT(pc)}", f"buffer_load_dwordx4 v{VOFF0}, s[8:11], s48 offen{PL} lds ; #t{t}"]
        return g + ([f"s_add_u32 s{S_KOFF}, s{S_KOFF}, 8192"] if pc == 7 else [])
    tl = [dma_rot(pc // 8, pc % 8) for pc in range(24)]
    def first_tile():
        stamp()
        a("@wait vm flag1")
        for i in range(4): a(f"v_xor_b32 v{240+i}, s{S_TAG}, v{236+i}")
        a("v_or3_b32 v240, v240, v241, v242")
        a("v_or_b32 v240, v240, v243")
        a("v_cmp_ne_u32 vcc, 0, v240")
        a(f"s_mov_b32 s{S_CNT}, 0")
        a("s_nop 3")
        a("s_cbranch_vccnz L2_notyet")
        for g in tl[:8]: emit(g)
        a(f"s_mov_b32 s{S_CNT}, 1")
        a.label("L2_notyet")
        stamp()
        return []
    a(f"v_lshlrev_b32 v7, 4, v{V_G}")
    for ks in range(4): a(f"ds_read_b128 {ar(64+4*ks,4)}, v7 offset:{8192 + 64*ks}")
    emit(reads2(0) + reads2(1) + [f"s_mov_b32 s41, {f32(QSCALE)}", f"s_mov_b32 s44, {f32(-QSCALE)}"])
    gemm(lambda qb: chain(Z(qb), lambda ks: 64 + 4 * ks, qb) + chain(QD(qb, 0), lambda ks: 4 * ks, qb) + chain(QD(qb, 1), lambda ks: 16 + 4 * ks, qb),
         reads2, post2, {POLL: [[flag1]], RDY: first_tile})
    stamp()

    def kread(par, slot, j):
        kb, ks = j // 4, j % 4
        return f"ds_read_b128 {vr(KF(par,kb,ks),4)}, v{KA(ks)} offset:{slot*8192 + kb*4096}"
    def vread(par, slot, j):
        db, hf = j // 2, j % 2
        return f"ds_read_b64_tr_b16 {vr(VF(par,db)+2*hf,2)}, v{VA(db)} offset:{slot*8192 + hf*4096}"
    def qk(spar, kpar, qb, j, slow):
        kb, ks = j // 4, j % 4
        c = (vr(CM(qb), 4) if slow else "0") if ks == 0 else vr(S(spar, kb), 4)
        return f"{MF} {vr(S(spar,kb),4)}, {vr(KF(kpar,kb,ks),4)}, {ar(Q(qb,ks),4)}, {c}"
    def pv(n, vpar, qb, j, first=False):
        return f"{MF} {ar(O(j,qb),4)}, {vr(VF(vpar,j),4)}, {vr(P(n),4)}, {'0' if first else ar(O(j,qb),4)}"
    def qread(qb): return [f"ds_read_b128 {ar(Q(qb,ks),4)}, v{VOFF0 if ks<2 else 6} offset:{(ks%2)*RING + 24576 + qb*1024}" for ks in range(4)]
    a(f"ds_read_b128 v[188:191], v5 ; #nq")
    for qb in range(5): emit([x + " ; #q" for x in qread(qb)])
    a(f"s_cmp_eq_u32 s{S_CNT}, 1")
    a("s_cbranch_scc1 L2_fired")
    a(flag1.replace("#flag1", "#offpath"))
    ready(236, 216, "a", "s_waitcnt vmcnt(0)")
    for g in tl[:8]: emit([x.replace("#t0", "#offpath") for x in g])
    a.label("L2_fired")
    for g in tl[8:12]: emit(g)
    a("@wait lg nq")
    emit(["v_add_f32 v188, v188, v189", "v_add_f32 v190, v190, v191", "v_add_f32 v188, v188, v190", "v_mov_b32 v189, v188"])
    emit(tl[12])
    emit(["v_permlane32_swap_b32 v188, v189", "v_add_f32 v188, v188, v189", "v_mov_b32 v189, v188"])
    emit(tl[13])
    emit(["v_permlane16_swap_b32 v188, v189", "v_add_f32 v188, v188, v189", f"v_mov_b32 v189, {f32(NORM2_MAX / QSCALE**2)}", "v_cmp_nle_f32 vcc, v188, v189"])
    emit(tl[14] + tl[15])
    a("@wait vm t0")
    stamp()
    for j in range(8): a(kread(0, 0, j) + f" ; #k0{j//4}")
    vl = [vread(0, 0, j) + " ; #v0" for j in range(16)]
    emit(vl[:4])
    a("@wait lg q")
    a("s_barrier")
    a(f"s_mov_b32 s{S_CNT}, 8")
    for j in range(8):
        if j % 4 == 0: a(f"@wait lg k0{j//4}")
        a(qk(0, 0, 0, j, False))
        emit(tl[16 + j])
        if j < 6: emit(vl[4+2*j:6+2*j])
    a("s_cbranch_vccnz L2_slow")

    def red_write(s, qb, h): return f"ds_write_b128 v{V_RED}, {ar(O(2*s+h,qb),4)} offset:{red_off(s,qb,h)}"
    S_T = lambda p: 60 + p if p < 4 else 46 + p
    S_P = lambda p: 41 + p if p < 4 else 44 + p
    def seg_scalars(first):
        out = []
        for p in range(NPROD):
            if first:
                out += [f"s_and_b32 s{S_S(p)}, s{S_C(p)}, 0xffff", f"s_lshr_b32 s{S_C(p)}, s{S_C(p)}, 16"]
                out += [f"s_lshl2_add_u32 s{S_S(p)}, s{S_S(p)}, {SEG_OFF + p*EPP*4}"]
            out += [f"s_min_u32 s{S_T(p)}, s{S_C(p)}, 64"]
            out += [f"s_mov_b32 s{S_NB}, s{S_T(0)}"] if p == 0 else []
            if p: out += [f"s_lshl_b32 s{S_P(p)}, s{S_NB}, 2", f"s_add_u32 s{S_NB}, s{S_NB}, s{S_T(p)}"]
        return out
    def seg_load(p):
        return [f"v_sub_u32 v{U+p}, v{U+6}, s{S_T(p)} clamp", f"v_lshl_add_u32 v{ENT(8+p)}, v{U+p}, 26, v{V_L4}",
                f"buffer_load_dword v{ENT(p)}, v{ENT(8+p)}, s[12:15], s{S_S(p)} offen{PL} ; #ent"]
    def seg_store(p):
        return [f"v_lshl_add_u32 v{U+p}, v{U+p}, 18, v{U+7}"] + ([f"v_add_u32 v{U+p}, s{S_P(p)}, v{U+p}"] if p else []) + [f"ds_write_b32 v{U+p}, v{ENT(p)}"]
    NU = 5 * NSTEP
    def unit(n): return (0, n) if n < 5 else (1 + 2 * ((n - 5) // 10) + (n - 5) % 2, ((n - 5) % 10) // 2)
    def phase_mfmas(n, slow):
        qks = [None] * 8
        if n + 1 < NU:
            t1, q1 = unit(n + 1)
            qks = [qk((n + 1) % 2, t1 % 2, q1, j, slow) for j in range(8)]
        pvs = [None] * 8
        if 1 <= n <= 5: pvs = [pv(n - 1, 0, n - 1, j, True) for j in range(8)]
        elif n >= 7:
            h = (n - 7) % 2; n0 = n - 2 - h
            pvs = [pv(n0 + k, 1 - k, unit(n0)[1], 4 * h + jj) for jj in range(4) for k in range(2)]
        return qks[:4] + pvs[:4] + qks[4:] + pvs[4:]
    class Block:
        def __init__(b, n0, nph):
            b.n0, b.nph, b.len = n0, nph, 16 * nph
            b.sc = [[] for _ in range(b.len + 1)]; b.mem = [[] for _ in range(b.len)]; b.val = [[] for _ in range(b.len)]
            b.used = [8 if G % 2 == 0 else (4 if G % 4 == 3 else 0) for G in range(b.len)]
            b.hook = {}
        def cost(b, x): return 8 if x.startswith(("buffer_", "v_exp", "ds_write_b128")) else 4
        def put(b, G, x):
            (b.val if x.startswith("v_") else b.mem)[G].append(x); b.used[G] += b.cost(x)
        def place(b, items, G, sep=0, room=8, only=None):
            prev = None
            for x in items:
                grp = x if isinstance(x, list) else [x]
                y = next(z for z in grp if not z.startswith("s_"))
                if prev is not None: G += sep if sep else (1 if prev.startswith("v_") and not y.startswith("v_") else 0)
                while G % 2 == 0 or b.used[G] + b.cost(y) > room or (only and G % 4 != only): G += 1
                b.put(G, y)
                k = grp.index(y)
                b.sc[G - 1] += grp[:k]; b.sc[G + 1] += grp[k + 1:]
                prev = y
            return G
        def emit(b, slow):
            for p in range(b.nph):
                n = b.n0 + p
                mf = phase_mfmas(n, slow)
                if n < NU:
                    for e in range(8): b.val[16*p + 2*e].append(f"v_exp_f32 v{S(n%2,e//4)+e%4}, v{S(n%2,e//4)+e%4}")
                    for c in range(4): b.val[16*p + 4*c + 3].append(f"v_cvt_pk_bf16_f32 v{P(n)+c}, v{S(n%2,c//2)+2*(c%2)}, v{S(n%2,c//2)+2*(c%2)+1}")
                for i in range(16):
                    G = 16 * p + i
                    if mf[i]: a(mf[i])
                    emit(b.sc[G] + b.mem[G] + b.val[G])
                if p in b.hook: b.hook[p]()
            emit(b.sc[b.len])
    tg = lambda grp, tag: [x + f" ; #{tag}" if x.startswith("buffer_") else x for x in grp]
    kr = lambda t: [kread(t % 2, t % 4, j) + f" ; #k{t%2}{'ab'[j//4]}" for j in range(8)]
    def single(slow):
        b = Block(0, 5)
        b.sc[0].append("@wait vm t1")
        b.place(kr(1), 1)
        b.sc[14].append("@wait lg v0")
        b.place([vread(1, 1, j) + " ; #v1" for j in range(16)], 13, only=3)
        b.place([tg(dma(3, pc), "p1") for pc in range(8)] + [tg(dma(0, pc), "p1") for pc in range(4)], 17, 4)
        b.sc[62] += ["@wait lg k1b", "@wait vm t2"]
        b.place(kr(2), 65, only=1)
        b.sc[80].append("@wait lg k0a")
        b.emit(slow)
    def am_stage(slot):
        out = []
        for pc in range(8):
            hf, ks = pc // 4, pc % 4
            g = [f"s_add_u32 m0, s{S_RING}, {slot*8192 + hf*4096}"] if ks == 0 else []
            g.append(f"buffer_load_dwordx4 v{VOFF0+hf}, s[12:15], s{S_AM} offen offset:{ks*1024}{PL} lds ; #am{slot}")
            if pc == 7 and slot == 3: g.append(f"s_add_u32 s{S_AM}, s{S_AM}, {MM_OFF-MV_OFF}")
            out.append(g)
        return out
    ND = (NSTEP - 1) // 2
    def double(D, slow, tag):
        last = D == ND - 1
        tA, tB = 1 + 2 * D, 2 + 2 * D
        b = Block(5 + 10 * D, 10)
        b.sc[6].append("@wait lg k0b")
        lo = (lambda j: (7, 15)[j // 4]) if D == 0 else (lambda j: 7 + 8 * (j // 2))
        G = 7
        for j in range(8):
            for t in ((tB,) if D == 0 else (tA, tB)):
                for hf in range(2): G = b.place([vread(t % 2, t % 4, 2 * j + hf) + f" ; #vv{j//2}"], max(G, lo(j)))
        for k in range(4): b.sc[34 + 8 * k].append(f"@wait lg vv{k}")
        if D == 0:
            b.place([tg(dma(0, pc), "p1") for pc in range(4, 8)], 33, only=1)
        if D + 2 < ND:
            b.place([tg(dma((tA + pc // 8) % 4, pc % 8), f"p{D%2}") for pc in range(16)], 61, 4)
        if not last:
            b.sc[116].append(f"@wait vm p{(D+1)%2}")
            b.place(kr(tA + 2)[:4], 119, only=3)
            b.place(kr(tA + 2)[4:], 129)
            b.sc[142].append("@wait lg k1a")
            b.sc[150].append("@wait lg k1b")
            G = b.place(kr(tB + 2)[:4], 135, only=3)
            b.place(kr(tB + 2)[4:], 145)
            b.sc[158].append("@wait lg k0a")
        if D == 0:
            b.sc[48] += [f"s_mov_b32 s35, {8*NSTEP*8192}", f"s_mov_b32 m0, s{S_LIST}"]
            b.place([f"buffer_load_dwordx4 v{VOFF0}, s[8:11], s35 offen offset:{pc*1024}{PL} lds ; #left" for pc in range(4)], 49, room=12)
            b.sc[82].append("@wait vm left")
            rl = [f"ds_read_b128 {vr(LK(ks),4)}, v{LA+ks} ; #lk" for ks in range(4)] + [f"ds_read_b64_tr_b16 {ar(LV(j),2)}, v{LA+4+j} ; #lv" for j in range(8)]
            b.place(rl[:9], 83, only=3)
            b.place(rl[9:], 125)
            b.hook[6] = lambda: variants(f"L2_lq{tag}", lambda r: [f"{MF} {vr(LS if not slow else 240,4)}, {vr(LK(ks),4)}, {ar(Q(r,ks),4)}, {(vr(CM(r),4) if slow else '0') if ks==0 else vr(LS if not slow else 240,4)}" for ks in range(4)], ["@wait lg lk"])
            ls = LS if not slow else 240
            b.place([f"v_exp_f32 v{ls+e}, v{ls+e}" for e in range(4)] + [f"v_cvt_pk_bf16_f32 v{ls+c}, v{ls+2*c}, v{ls+2*c+1}" for c in range(2)], 137, room=16, only=1)
            b.hook[9] = lambda: variants(f"L2_lv{tag}", lambda r: [f"{MF16} {ar(O(j,r),4)}, {ar(LV(j),2)}, {vr(ls,2)}, {ar(O(j,r),4)}" for j in range(8)], ["@wait lg lv"])
        if D == 2:
            b.put(53, f"buffer_load_dwordx4 v[240:243], v{V_TAB}, s[12:15], s58 offen{PL} ; #flag2")
            b.sc[154].append(f"s_sub_u32 s{S_CNT}, s{S_CNT}, 1")
            b.sc[156].append(f"s_cmp_lg_u32 s{S_CNT}, 0")
        if D == ND - 2:
            b.put(1, f"buffer_load_dword v{V_TAB}, v{V_L4}, s[12:15], s39 offen{PL} ; #tab")
            b.place([f"v_add_u32 v{U+6}, 1, v0", f"v_add_u32 v{U+7}, s{S_LIST}, v{V_L4}"], 5)
            G = b.place(am_stage(3), 61)
            b.sc[48].append("@wait vm tab")
            b.place([f"v_readlane_b32 s{S_C(p)}, v{V_TAB}, {p}" for p in range(NPROD)], 49)
            for k, x in enumerate(seg_scalars(True)): b.sc[60 + 2 * k].append(x)
            for p in range(NPROD): G = b.place(seg_load(p), max(G, 74 + 12 * p), room=12)
        if last:
            b.place(am_stage(0)[:2], 1)
            G = b.place(am_stage(0)[2:], 49, room=12)
            b.place([f"v_lshl_add_u32 v{U+8}, s{S_NB}, 2, v{U+7}", f"v_mov_b32 v{U+9}, 0x7fffff0f", f"ds_write_b32 v{U+8}, v{U+9}"], 51, room=12)
            amr = lambda m: [f"ds_read_b128 {ar(AM(m,hf,ks),4)}, v{V_RED} offset:{(24576,0)[m] + hf*4096 + ks*1024}" for hf in range(2) for ks in range(4)]
            b.sc[62].append("@wait vm ent")
            b.place(amr(0), 63, only=3)
            for qb in range(3):
                b.place([red_write(s, qb, h) + " ; #send" for s in range(1, 4) for h in range(2)], 69 + 32 * qb - 4 * (qb // 2), 4)
            b.place([f"v_xor_b32 v{2+s}, {s*RING}, v{V_RED}" for s in range(1, 4)], 93)
            G = 65
            for p in range(NPROD): G = b.place(seg_store(p), G, room=12)
            b.sc[110].append("@wait vm am0")
            b.place(amr(1), 111, only=3)
        b.emit(slow)

    def variants(tag, body, pre=()):
        emit(pre)
        a(f"s_cmp_ge_u32 s{S_LEFT}, 4")
        a(f"s_cbranch_scc1 {tag}_x")
        for r in range(3):
            a(f"s_cmp_eq_u32 s{S_LEFT}, {r}")
            a(f"s_cbranch_scc1 {tag}_{r}")
        for r in (3, 2, 1, 0):
            if r < 3: a.label(f"{tag}_{r}")
            emit(body(r))
            if r: a(f"s_branch {tag}_x")
        a.label(f"{tag}_x")
    def main_loop(slow):
        tag = "s" if slow else "f"
        if not slow: stamp()
        single(slow)
        double(0, slow, tag)
        a.raw(".p2align 6")
        a.label(f"L2_loop_{tag}")
        double(1, slow, tag)
        double(2, slow, tag)
        a(f"s_cbranch_scc1 L2_loop_{tag}")
        ready(240, V_TAB, "b" + tag, "@wait vm flag2")
        double(ND - 2, slow, tag)
        double(ND - 1, slow, tag)
        if not slow: a("s_branch L2_epi")
    main_loop(False)

    a.label("L2_slow")
    for k in range(4):
        a(f"v_add_u32 v216, {64*k}, v0")
        a("v_min_u32 v216, 249, v216")
        a("v_lshlrev_b32 v216, 7, v216")
        a(f"buffer_load_dwordx4 v[236:239], v216, s[12:15], s58 offen{PL}")
        ready(236, 216, f"c{k}", "s_waitcnt vmcnt(0)")
    a("s_waitcnt lgkmcnt(0)")
    for ks in range(4): a(f"v_subrev_u32 v{232+ks}, s{S_RING}, v{KA(ks)}")
    for qb in range(5): a(f"v_mov_b32 v{CM(qb)}, 0xff800000")
    a("s_mov_b32 s35, 0")
    a.label("L2_max")
    for ks in range(4): a(f"buffer_load_dwordx4 {vr(KF(1,0,ks),4)}, v{232+ks}, s[8:11], s35 offen{PL}")
    a("s_waitcnt vmcnt(0)")
    for qb in range(5):
        for ks in range(4): a(f"{MF} {vr(160+4*qb,4)}, {vr(KF(1,0,ks),4)}, {ar(Q(qb,ks),4)}, {'0' if ks==0 else vr(160+4*qb,4)}")
    for qb in range(5):
        a(f"v_max3_f32 v{CM(qb)}, v{CM(qb)}, v{160+4*qb}, v{161+4*qb}")
        a(f"v_max3_f32 v{CM(qb)}, v{CM(qb)}, v{162+4*qb}, v{163+4*qb}")
    a("s_add_u32 s35, s35, 4096")
    a(f"s_cmp_lt_u32 s35, {N*256}")
    a("s_cbranch_scc1 L2_max")
    for x in (16, 32):
        a(f"v_xor_b32 v2, {x}, v0")
        a("v_lshlrev_b32 v2, 2, v2")
        for qb in range(5): a(f"ds_bpermute_b32 v{CM(qb)+1}, v2, v{CM(qb)}")
        a("s_waitcnt lgkmcnt(0)")
        for qb in range(5): a(f"v_max_f32 v{CM(qb)}, v{CM(qb)}, v{CM(qb)+1}")
    for qb in range(5):
        a(f"v_sub_f32 v{CM(qb)}, 0, v{CM(qb)}")
        for r in range(1, 4): a(f"v_mov_b32 v{CM(qb)+r}, v{CM(qb)}")
    for j in range(8): a(qk(0, 0, 0, j, True))
    a("s_nop 7")
    main_loop(True)

    a.label("L2_epi")
    stamp()
    R = lambda qb: 32 + qb * 8
    T = lambda k: (72, 80, 88, 160, 168, 184, 192, 200, 208)[k]
    AG = lambda j: 96 + 4 * j
    GV = lambda j: 128 + 4 * j
    V_AD, V_OH, V_BA, TMP = 200, 201, 206, 210
    V_OW, V_OR, V_P0, V_P1 = 214, 215, 218, 219
    FLG, SEL = 232, 236
    PK = lambda b: 240 + 4 * b
    GA = lambda k, i: 160 + 8 * k + i
    OH = lambda i: 84 + i
    OB = 92
    BO = lambda b, ks: (b * 4 + ks) * 4
    BP = lambda b, ks: 48 + (b * 4 + ks) * 4
    FO = lambda b, hf: 32 + (b * 2 + hf) * 4
    LD = lambda b: 56 + 4 * b
    def acc_reads(qb): return [f"v_accvgpr_read_b32 v{R(qb)+4*h+r}, a{O(h,qb)+r}" for h in range(2) for r in range(4)]
    def pack(d, qb): return [f"v_cvt_pk_bf16_f32 v{d+c}, v{R(qb)+2*c}, v{R(qb)+2*c+1}" for c in range(4)]
    a("@wait lg send")
    a("s_barrier")
    stamp()
    def red_read(k, s, qb): return [f"ds_read_b128 {vr(T(k)+4*h,4)}, v{3+s} offset:{red_off(s+1,qb,h)} ; #r{k}" for h in range(2)]
    def red_add(k, qb): return [f"@wait lg r{k}"] + [f"v_pk_add_f32 {vr(R(qb)+i,2)}, {vr(R(qb)+i,2)}, {vr(T(k)+i,2)}" for i in range(0, 8, 2)]
    tail = [x for n in (NU, NU + 1) for x in phase_mfmas(n, False) if x]
    pack_gaps(tail, [red_read(3 * qb + s, s, qb) for qb in range(3) for s in range(3)], acc_reads(0) + acc_reads(1)[:6], 9)
    emit(acc_reads(1)[6:] + acc_reads(2))
    emit([f"s_mul_i32 s42, s{S_PART}, {XCH_WG}", f"s_mul_i32 s43, s{S_W}, 2560", f"s_add_u32 s43, s43, {XCH_OFF}",
          "s_add_u32 s42, s42, s43",
          f"s_mul_i32 s44, s2, {XCH_WG}", "s_add_u32 s43, s43, s44",
          f"v_sub_u32 v6, 23, v{V_Q}", "v_lshlrev_b32 v6, 6, v6", f"v_lshl_add_u32 v6, v{V_G}, 4, v6",
          f"v_cmp_gt_u32 vcc, 8, v{V_Q}", "v_subrev_u32 v7, 1024, v6", f"v_mov_b32 v31, {OOB}", "v_cndmask_b32 v7, v31, v7, vcc"])
    SK = lambda qb: 240 + 4 * qb
    wr = [red_write(s, qb, h) for qb in (3, 4) for s in range(1, 4) for h in range(2)]
    for qb in range(3):
        for s in range(3):
            emit(red_add(3 * qb + s, qb))
            a(wr.pop(0))
        emit(pack(SK(qb), qb))
        a(wr.pop(0))
        va, off = (7, 0) if qb == 2 else (6, (1 - qb) * 1024)
        a(f"buffer_store_dwordx4 {vr(SK(qb),4)}, v{va}, s[12:15], s42 offen offset:{off} sc1 ; #xst")
    a("s_waitcnt lgkmcnt(0)")
    a("s_barrier")
    stamp()
    def list_done():
        a(f"s_add_u32 s{S_NB}, s{S_NB}, 31")
        a(f"s_lshr_b32 s{S_NB}, s{S_NB}, 5")
        a(f"v_lshl_add_u32 v{V_AD}, v{V_G}, 5, s{S_LIST}")
        a(f"v_lshl_add_u32 v{V_OH}, v{V_G}, 2, s{S_LIST}")
    def addr_reads(k, off):
        return [f"ds_read_b128 {vr(GA(k,0),4)}, v{V_AD} offset:{off}", f"ds_read_b128 {vr(GA(k,4),4)}, v{V_AD} offset:{off+16}"]
    def fire(k, regs, slot):
        g = [[f"s_add_u32 m0, s{S_RING}, {slot*8192 + i*1024}",
              f"v_bitop3_b32 v{GA(regs,i)}, v{GA(regs,i)}, v{9 + i%2}, s48 bitop3:0x28",
              f"buffer_load_dwordx4 v{GA(regs,i)}, s[52:55], 0 offen{PL} lds ; #b{k}"] for i in range(8)]
        g[0] = [f"s_cmp_gt_u32 s{S_NB}, {k}", f"s_cselect_b32 s54, {N*256}, 0"] + g[0]
        return g
    list_done()
    for k in range(2): emit([x + " ; #ga" for x in addr_reads(k, k * 128)])
    T = lambda k: 72 + 8 * k
    for n, qb in enumerate((3, 4)):
        for s in range(3): emit(red_read(3 * n + s, s, qb))
    emit([f"v_lshrrev_b32 v9, 1, v{V_Q}", f"v_xor_b32 v9, v9, v{V_G}", "v_lshlrev_b32 v9, 5, v9", f"v_and_b32 v10, 1, v{V_Q}",
          "v_lshl_or_b32 v9, v10, 4, v9", "v_xor_b32 v10, 0x80, v9",
          "s_mov_b32 s48, 0xfffffff0", "s_mov_b32 s52, s8", "s_mov_b32 s53, s9", "s_mov_b32 s55, 0x00020000",
          f"s_mul_i32 s41, s{S_W}, 3072", f"s_add_u32 s41, s41, {OFR}", f"v_add_u32 v{V_OW}, s41, v{VOFF0}"])
    a("@wait lg ga")
    own = acc_reads(3) + acc_reads(4)
    for n, qb in enumerate((3, 4)):
        for s in range(3): own += red_add(3 * n + s, qb)
    weave(own, fire(0, 0, 1))
    a("s_barrier")
    stamp()
    GW = lambda p, j: 96 + 32 * p + 4 * j
    OBP = lambda p: (92, 80)[p]
    def loads(k, slot, p, extra=()):
        m = [f"ds_read2_b32 {vr(OH(2*c),2)}, v{V_OH} offset0:{32*k + 16*(c%2) + 4*(c//2)} offset1:{32*k + 16*(c%2) + 4*(c//2) + 8}" for c in range(4)]
        m += list(extra)
        for j in range(16):
            m.append(f"ds_read_b64_tr_b16 {ar(GW(p,j//2)+2*(j%2),2)}, v{VA(j//2)} offset:{slot*8192 + (j%2)*4096}")
            if j == 7: m.append("s_waitcnt lgkmcnt(8)")
            if 8 <= j < 12:
                c = j - 8; o = OBP(p) + c
                m += [f"v_lshlrev_b32 v{o}, v{OH(2*c)}, v{V_HOT}", f"v_lshl_or_b32 v{o}, v11, v{OH(2*c+1)}, v{o}",
                      f"v_pk_ashrrev_i16 v{o}, 15, v{o} op_sel_hi:[0,1]", f"v_and_b32 v{o}, v{V_DEG}, v{o}"]
        return m
    def mults(p, first=False): return [f"{MF} {vr(AG(j),4)}, {ar(GW(p,j),4)}, {vr(OBP(p),4)}, {'0' if first else vr(AG(j),4)}" for j in range(8)]
    def stage(k, slot_next, groups=(), extra=()):
        a("s_waitcnt lgkmcnt(0)")
        mm = mults(k % 2, k == 0)
        emit(mm[:2] + sum(list(groups[:2]), []))
        a(f"@wait vm b{k+1}")
        ld = loads(k + 1, slot_next, (k + 1) % 2, extra)
        main = []
        for x, ins in enumerate(ld):
            main.append(ins)
            if x % 4 == 1 and len(mm) > 2: main.append(mm.pop(2))
        assert len(mm) == 2
        weave(main, list(groups[2:]))
    pre = [f"v_add_u32 v{V_OR}, {OFR}, v{VOFF0}"] + addr_reads(2, 2 * 128) + addr_reads(3, 3 * 128)
    pre += [f"v_lshlrev_b32 v11, 16, v{V_HOT}", f"v_lshl_or_b32 v{V_DEG}, v{V_DEG}, 16, v{V_DEG}",
            f"v_cmp_eq_u32 vcc, 0, v{V_G}", f"v_mov_b32 v{SEL}, 0x3f80", f"v_mov_b32 v{SEL+1}, 0", f"v_mov_b32 v{SEL+2}, 0", f"v_mov_b32 v{SEL+3}, 0",
            f"v_cndmask_b32 v{SEL}, 0, v{SEL}, vcc",
            "s_lshl_b32 s57, s2, 7", f"s_lshl_b32 s50, s{S_W}, 2", f"s_add_u32 s50, s50, {FLX_OFF}", "s_add_u32 s57, s57, s50",
            f"s_lshl_b32 s51, s{S_PART}, 7", "s_add_u32 s51, s51, s50", "s_mov_b32 s49, 0x40000", f"v_mov_b32 v2, s{S_TAG}"]
    pre2 = []
    for b in range(3):
        t = TMP
        pre2 += [f"v_add_u32 v{t}, {16*b-8}, v{V_Q}"] + ([f"v_max_i32 v{t}, 0, v{t}"] if b == 0 else [])
        pre2 += [f"v_mul_u32_u24 v{t+1}, 26, v{t}", f"v_lshrrev_b32 v{t+1}, 8, v{t+1}",
                 f"v_mul_u32_u24 v{t+2}, 10, v{t+1}", f"v_sub_u32 v{t}, v{t}, v{t+2}",
                 f"v_lshl_add_u32 v{t}, v{V_G}, 4, v{t}", f"v_lshlrev_b32 v{t}, 4, v{t}",
                 f"v_lshl_add_u32 v{V_BA+b}, v{t+1}, 15, v{t}"]
    pre2 += [f"v_add_u32 v{V_P1}, 8, v{V_Q}", f"v_lshlrev_b32 v{V_P1}, 6, v{V_P1}", f"v_lshl_add_u32 v{V_P1}, v{V_G}, 4, v{V_P1}",
             f"v_cmp_lt_u32 vcc, 7, v{V_Q}", f"v_subrev_u32 v{V_P0}, 1024, v{V_P1}", "s_mov_b32 s58, 0xffff0000",
             f"v_cndmask_b32 v{V_P0}, v31, v{V_P0}, vcc"]
    for s in range(4):
        pre2 += [f"s_lshl_b32 s41, s{S_W}, 10", f"v_add_u32 v3, s41, v{V_RED}"] if s == 0 else [f"v_xor_b32 v{3+s}, {s*1024}, v3"]
    publish2 = ["@wait vm xst",
                "buffer_store_dword v2, off, s[12:15], s57 sc1"]
    flag = f"buffer_load_dword v{FLG}, off, s[12:15], s51 sc1"
    weave(pre, fire(1, 1, 2))
    if PUB2 == 0: emit(publish2)
    a("s_waitcnt lgkmcnt(0)")
    weave(pre2, fire(2, 2, 3))
    if PUB2 == 1: emit(publish2)
    a("@wait vm b0")
    emit(loads(0, 1, 0, addr_reads(0, 4 * 128) + addr_reads(1, 5 * 128)))
    if PUB2 == 2: emit(publish2)
    stamp()
    FD = lambda b, hf: 160 + (b * 2 + hf) * 4
    PX = lambda b: 68 + 4 * b if False else (32, 36, 40)[b]
    xun = [[f"v_lshlrev_b32 v{FD(b,0)+2*c}, 16, v{XR(b)+c}", f"v_and_b32 v{FD(b,0)+2*c+1}, s58, v{XR(b)+c}"] for b in range(3) for c in range(4)]
    pl = [f"buffer_load_dwordx4 {vr(PX(b),4)}, v{V_P0 if b==0 else V_P1}, s[12:15], s43 offen offset:{(b//2)*1024} sc1 ; #p" for b in range(3)]
    def poll():
        a("@wait vm flag")
        a.label("L2_poll")
        a(f"v_readfirstlane_b32 s50, v{FLG}")
        a(f"s_cmp_eq_u32 s50, s{S_TAG}")
        a("s_cbranch_scc1 L2_got")
        a(flag + " ; #offpath")
        a("s_sub_u32 s49, s49, 1")
        a("s_waitcnt vmcnt(0)")
        a("s_cbranch_scc0 L2_poll")
        a.label("L2_got")
        emit(pl)
    merge = []
    for b in range(3):
        for c in range(4):
            merge += [[f"v_dot2_f32_bf16 v{R(2+b)+2*c}, v{PX(b)+c}, s41, v{R(2+b)+2*c}", f"v_dot2_f32_bf16 v{R(2+b)+2*c+1}, v{PX(b)+c}, 1.0, v{R(2+b)+2*c+1}"]]
        merge += [pack(PK(b), 2 + b) + [f"ds_write_b128 v{V_OW}, {vr(PK(b),4)} offset:{b*1024}"]]
    merge = [["s_mov_b32 s41, 0x3f80", "s_mov_b32 s42, 0x3f800000"]] + [[y.replace(", 1.0,", ", s42,") for y in x] for x in merge]
    stage(0, 2, fire(3, 3, 0))
    if POLL2 == 0: a(flag + " ; #flag")
    stage(1, 3, fire(4, 0, 1))
    if POLL2 == 1: a(flag + " ; #flag")
    stage(2, 0, fire(5, 1, 2))
    stamp()
    a(f"s_cmp_le_u32 s{S_NB}, 6")
    a("s_cbranch_scc1 L2_no7a")
    emit(addr_reads(3, 6 * 128))
    a("s_waitcnt lgkmcnt(0)")
    for g in fire(6, 3, 3): emit([x.replace("#b6", "#offpath") for x in g])
    a.label("L2_no7a")
    poll()
    stamp()
    stage(3, 1, xun)
    stage(4, 2)
    a("s_waitcnt lgkmcnt(0)")
    emit(mults(1))
    a(f"s_cmp_le_u32 s{S_NB}, 6")
    a("s_cbranch_scc1 L2_aggdone")
    a("s_waitcnt vmcnt(3)")
    emit(loads(6, 3, 0))
    a("s_waitcnt lgkmcnt(0)")
    emit(mults(0))
    a(f"s_mov_b32 s{S_I}, 7")
    a(f"v_add_u32 v{V_AD}, {7*128}, v{V_AD}")
    a(f"v_add_u32 v{V_OH}, {7*128}, v{V_OH}")
    a.label("L2_more")
    a(f"s_cmp_ge_u32 s{S_I}, s{S_NB}")
    a("s_cbranch_scc1 L2_aggdone")
    emit(addr_reads(3, 0))
    a("s_waitcnt lgkmcnt(0)")
    for g in fire(0, 3, 0): emit(g)
    a("s_waitcnt vmcnt(0)")
    emit(loads(0, 0, 0))
    a("s_waitcnt lgkmcnt(0)")
    emit(mults(0))
    a(f"s_add_u32 s{S_I}, s{S_I}, 1")
    a(f"v_add_u32 v{V_AD}, 128, v{V_AD}")
    a(f"v_add_u32 v{V_OH}, 128, v{V_OH}")
    a("s_branch L2_more")
    a.label("L2_aggdone")
    a(f"s_max_u32 s41, s{S_C(0)}, s{S_C(1)}")
    for p in range(2, NPROD): a(f"s_max_u32 s41, s41, s{S_C(p)}")
    a("s_cmp_le_u32 s41, 64")
    a("s_cbranch_scc1 L2_aggend")
    for p in range(NPROD):
        a(f"s_min_u32 s41, s{S_C(p)}, 64")
        a(f"s_sub_u32 s{S_C(p)}, s{S_C(p)}, s41")
        a(f"s_add_u32 s{S_S(p)}, s{S_S(p)}, 256")
    emit(seg_scalars(False))
    a("s_waitcnt vmcnt(0)")
    emit([f"v_add_u32 v{U+6}, 1, v0", f"v_add_u32 v{U+7}, s{S_LIST}, v{V_L4}"])
    for p in range(NPROD): emit(seg_load(p))
    emit([f"v_lshl_add_u32 v{U+8}, s{S_NB}, 2, v{U+7}", f"v_mov_b32 v{U+9}, 0x7fffff0f", f"ds_write_b32 v{U+8}, v{U+9}"])
    a("s_waitcnt vmcnt(0)")
    for p in range(NPROD): emit(seg_store(p))
    list_done()
    a("s_mov_b32 s48, 0xfffffff0")
    a(f"s_mov_b32 s{S_I}, 0")
    a("s_branch L2_more")
    a.label("L2_aggend")
    stamp()
    for s in range(4):
        for c in range(4): a(f"v_cvt_pk_bf16_f32 v{GV(s)+c}, v{AG(2*s)+2*c}, v{AG(2*s)+2*c+1}")
        a(f"ds_write_b128 v{3+s}, {vr(GV(s),4)}")
    a("s_waitcnt vmcnt(0)")
    emit(sum(merge, []))
    a("s_waitcnt lgkmcnt(0)")
    a("s_barrier")
    BA = lambda b, ks: 96 + (b * 4 + ks) * 4
    for b in range(3):
        for ks in range(4): a(f"ds_read_b128 {ar(BO(b,ks),4)}, v{V_OR} offset:{ks*3072 + b*1024}")
        for ks in range(4): a(f"ds_read_b128 {vr(BA(b,ks),4)}, v{V_BA+b} offset:{ks*1024}")
    stamp()
    def finish(b):
        out = [f"v_fmac_f32 v{FD(b,0)+i}, v{FO(b,0)+i}, v{LD(b)}" for i in range(8)]
        out += [f"v_cvt_pk_bf16_f32 v{PK(b)+c}, v{FD(b,0)+2*c}, v{FD(b,0)+2*c+1}" for c in range(4)]
        out += [f"buffer_store_dwordx4 {vr(PK(b),4)}, v{V_ROW(b)}, s[20:23], 0 offen{ST2}"]
        return out
    fz = []
    for b in range(3):
        pj = [f"s_waitcnt lgkmcnt({min(15, 20-8*b)})", f"{MF} {vr(LD(b),4)}, {vr(SEL,4)}, {ar(BO(b,0),4)}, 0"]
        pj += [f"{MF} {vr(FO(b,hf),4)}, {ar(AM(0,hf,ks),4)}, {ar(BO(b,ks),4)}, {'0' if ks==0 else vr(FO(b,hf),4)}" for hf in range(2) for ks in range(4)]
        pj += [f"s_waitcnt lgkmcnt({min(15, 16-8*b)})"]
        pj += [f"{MF} {vr(FD(b,hf),4)}, {ar(AM(1,hf,ks),4)}, {vr(BA(b,ks),4)}, {vr(FD(b,hf),4)}" for hf in range(2) for ks in range(4)]
        for i, x in enumerate(pj):
            a(x)
            if i == 11: a(f"v_rcp_f32 v{LD(b)}, v{LD(b)}")
            elif i >= 3:
                for _ in range(2):
                    if fz: a(fz.pop(0))
        assert not fz
        fz = finish(b)
    stamp()
    emit(fz)
    stamp()
    a(f"s_or_b32 s41, s2, s{S_W}")
    a("s_cbranch_scc1 L2_notag")
    a(f"s_mov_b32 s41, {EPO_OFF}")
    a("s_mov_b64 exec, 1")
    a("buffer_store_dword v2, off, s[12:15], s41 sc1")
    a("s_mov_b64 exec, -1")
    a.label("L2_notag")
    if stamps:
        a("s_waitcnt vmcnt(0)")
        stamp()
        assert nst[0] <= 10
        a("s_memrealtime s[98:99]")
        a("s_waitcnt lgkmcnt(0)")
        a(f"s_lshl_b32 s40, s{S_TILE}, 1")
        a(f"s_add_u32 s40, s40, s{S_SPLIT}")
        a("s_lshl_b32 s40, s40, 2")
        a(f"s_add_u32 s40, s40, s{S_W}")
        a("s_lshl_b32 s40, s40, 6")
        srd(a, 8, 4, 1 << 20, ST_OFF)
        a("s_getreg_b32 s41, hwreg(HW_REG_XCC_ID)")
        a("v_mov_b32 v1, s41")
        a("buffer_store_dword v1, off, s[8:11], s40 offset:60")
        a("s_mov_b64 exec, 1")
        for i, r in enumerate([96, 98] + [64 + 2 * k for k in range(nst[0])]):
            a(f"v_mov_b32 v1, s{r}")
            a(f"buffer_store_dword v1, off, s[8:11], s40 offset:{4*i}")
    a.label("L2_end")
    a("s_endpgm")
    gen_helper(a, S_TAG, WS_BYTES, S_TILE, S_SPLIT)
def desc_k2(a):
    kernel_desc(a, NAME2, 512, 256, 102)
K2_LAUNCH = f"; @launch grid=({NWG},1,1) block=(256,1,1) lds={LDS2}"
```

```python
from asmlib import *
from layout import *
from helper import wave_scan, row_sum, gen_helper
NAME2 = "gather_scatter__hybrid_graph_tf_graphgps__graph_kernel"
NWG = 256
NSTEP = 39
RING = 32768
SPARE = 4 * RING
LIST_B = 8192
OFR = SPARE + 20480
LDS2 = SPARE + 4 * LIST_B
ST2 = ' sc1'
SKIP = ()
PREFETCH = 1
REAL = 0
PUB, POLL, RDY, WK = 2, 2, 5, 0
P2 = 0
WS_BYTES = XCH_OFF + NWG * XCH_WG
MF = "v_mfma_f32_16x16x32_bf16"
MF16 = "v_mfma_f32_16x16x16_bf16"
OOB = "0x7fffff00"
NORM2_MAX = 48.0
O = lambda j, qb: (qb * 8 + j) * 4
Q = lambda qb, ks: 160 + (qb * 4 + ks) * 4
AM = lambda m, hf, ks: 160 + ((m * 2 + hf) * 4 + ks) * 4
KF = lambda par, kb, ks: 32 + par * 32 + (kb * 4 + ks) * 4
VF = lambda par, j: 96 + par * 32 + j * 4
S = lambda par, kb: 160 + par * 8 + kb * 4
P = lambda n: 176 + (n % 2) * 4 if n % 4 < 2 else 232 + (n % 2) * 4
KA = lambda ks: 8 + ks
VA = lambda j: 12 + j
VOFF0, VOFF1 = 20, 21
V_TAB, V_L4, V_Q, V_G = 22, 23, 24, 25
V_DEG, V_HOT, V_RED = 26, 27, 1
V_ROW = lambda b: 28 + b
ENT = lambda j: 184 + j
CM = lambda qb: 200 + qb * 4
XR = lambda b: 220 + b * 4
LK = lambda ks: 184 + 4 * ks
LV = lambda j: 240 + 2 * j
LS, LP, LA = 200, 204, 244
U = 244
S_W, S_TILE, S_SPLIT, S_RING, S_KOFF, S_CNT, S_LEFT = 3, 28, 29, 30, 31, 33, 34
S_AM, S_LIST, S_NB, S_I, S_PART, S_TAG, S_KEY = 40, 45, 46, 47, 56, 59, 38
S_C = lambda p: 84 + p
S_S = lambda p: 90 + p
PL = ' sc1'
ST_OFF = 0x1000000
def red_off(s, qb, h):
    k = qb * 6 + (s - 1) * 2 + h
    return (8 + k) * 1024 if qb < 4 else (k - 22) * 1024

def gen_k2(a, stamps=False):
    nst = [0]
    seq = [0]
    def stamp():
        seq[0] += 1
        if not stamps or (SKIP and seq[0] in SKIP): return
        i = nst[0]; nst[0] += 1
        a(f"{'s_memrealtime' if REAL else 's_memtime'} s[{64+2*i}:{65+2*i}]")
    def emit(xs):
        for x in xs: a(x)
    def weave(main, groups, first=0):
        n = len(main) - first
        pos = {first + (k * n) // len(groups): g for k, g in enumerate(groups)} if groups else {}
        assert len(pos) == len(groups)
        for x, ins in enumerate(main):
            a(ins)
            emit(pos.get(x, []))
    kernel_begin(a, NAME2)
    a(f"s_cmp_ge_u32 s2, {NWG}")
    a("s_cbranch_scc1 L2_end")
    a(f"s_load_dwordx2 s[4:5], s[0:1], {A_WS}")
    a("s_cmp_ge_u32 s2, 250")
    a("s_cbranch_scc1 LH")
    a(f"s_load_dwordx2 s[16:17], s[0:1], {A_X}")
    a(f"s_load_dwordx4 s[60:63], s[0:1], {A_WQ}")
    a(f"s_load_dwordx2 s[20:21], s[0:1], {A_OUT}")
    a(f"s_load_dwordx2 s[24:25], s[0:1], {A_DEG}")
    if stamps: a("s_memrealtime s[96:97]")
    stamp()
    if PREFETCH:
        a("s_getpc_b64 s[42:43]")
        a.label("L2_pc")
        a("s_lshr_b32 s35, s2, 3")
        a("v_and_b32 v2, 7, v0")
        a("v_lshl_add_u32 v2, s35, 3, v2")
        a("v_lshlrev_b32 v2, 7, v2")
        a("v_mov_b32 v3, L2_slow-L2_pc")
        a("v_cmp_gt_u32 vcc, v3, v2")
        a("v_add_u32 v3, L2_epi-L2_slow, v2")
        a("v_cndmask_b32 v2, v3, v2, vcc")
        a("v_min_u32 v2, LH-L2_pc, v2")
        a("v_mov_b32 v3, s43")
        a("v_add_co_u32 v2, vcc, s42, v2")
        a("v_addc_co_u32 v3, vcc, 0, v3, vcc")
        a("global_load_dword v160, v[2:3], off")
    a("v_lshrrev_b32 v1, 6, v0")
    a("v_and_b32 v0, 63, v0")
    a(f"s_lshr_b32 s{S_TILE}, s2, 4")
    a(f"v_readfirstlane_b32 s{S_W}, v1")
    a(f"s_lshl_b32 s{S_TILE}, s{S_TILE}, 3")
    a("s_and_b32 s35, s2, 7")
    a(f"s_add_u32 s{S_TILE}, s{S_TILE}, s35")
    a(f"s_bfe_u32 s{S_SPLIT}, s2, 0x10003")
    a(f"s_xor_b32 s{S_PART}, s2, 8")
    a("s_sub_u32 s35, s2, 242")
    a("s_cmp_lt_u32 s35, 6")
    a("s_cbranch_scc0 L2_ids")
    a(f"s_and_b32 s{S_SPLIT}, s2, 1")
    a(f"s_xor_b32 s{S_PART}, s2, 1")
    a("s_lshr_b32 s35, s35, 1")
    a(f"s_add_u32 s{S_TILE}, s35, 122")
    a.label("L2_ids")
    a(f"v_and_b32 v{V_Q}, 15, v0")
    a(f"v_lshrrev_b32 v{V_G}, 4, v0")
    a(f"v_lshlrev_b32 v{VOFF0}, 4, v0")
    a(f"v_add_u32 v{VOFF1}, 4096, v{VOFF0}")
    a(f"s_lshl_b32 s{S_RING}, s{S_W}, 15")
    a(f"s_mul_i32 s36, s{S_TILE}, {80*256}")
    a(f"s_mul_i32 s35, s{S_SPLIT}, 10")
    a(f"s_add_u32 s35, s35, s{S_W}")
    SO = lambda i: 84 + i
    for i in range(5):
        a(f"s_add_u32 s{SO(i)}, s35, {4*i}")
        a(f"s_sub_u32 s41, s{SO(i)}, 20")
        a(f"s_cselect_b32 s{SO(i)}, s{SO(i)}, s41")
        a(f"s_lshl_b32 s{SO(i)}, s{SO(i)}, 10")
    a(f"v_lshrrev_b32 v2, 1, v{V_Q}")
    a(f"v_xor_b32 v2, v2, v{V_G}")
    a("v_lshlrev_b32 v2, 5, v2")
    a(f"v_and_b32 v3, 1, v{V_Q}")
    a("v_lshl_or_b32 v2, v3, 4, v2")
    a(f"v_lshl_or_b32 v218, v{V_G}, 8, v2")
    a("v_xor_b32 v219, 0x80, v218")
    a(f"s_and_b32 s41, s{S_W}, 1")
    a("s_lshl_b32 s41, s41, 7")
    a("v_xor_b32 v4, s41, v218")
    a("s_lshl_b32 s41, s2, 3")
    a("s_and_b32 s41, s41, 0x80")
    a("v_xor_b32 v218, s41, v218")
    a("v_xor_b32 v219, s41, v219")
    a(f"v_lshlrev_b32 v220, 6, v{V_G}")
    a(f"v_xor_b32 v220, v220, v{VOFF0}")
    a(f"s_lshl_b32 s50, s{S_W}, 13")
    a("s_waitcnt lgkmcnt(0)")
    stamp()
    a(f"s_mov_b32 s18, {N*256}")
    a("s_mov_b32 s19, 0x00020000")
    W = lambda i: 32 + 4 * i
    for i in range(5):
        a(f"s_add_u32 s41, s36, s{SO(i)}")
        a(f"buffer_load_dwordx4 {vr(W(i),4)}, v{VOFF0}, s[16:19], s41 offen ; #x{i}")
    a(f"s_add_u32 s48, s4, {EPO_OFF}")
    a("s_addc_u32 s49, s5, 0")
    a(f"s_load_dword s{S_TAG}, s[48:49], 0")
    RT = lambda pc: 90 + pc if pc < 6 else 94 + pc
    a("s_lshr_b32 s35, s2, 4")
    for pc in range(8):
        a(f"s_add_u32 s41, s35, {pc}")
        a("s_and_b32 s41, s41, 7")
        a(f"s_lshl_b32 s{RT(pc)}, s41, 10")
    def w_groups(m):
        tmp = Asm(); srd(tmp, 52, 60 + 2 * m, 32768)
        g = [[f"s_add_u32 m0, s51, s{RT(pc)}", f"s_add_u32 s48, s50, s{RT(pc)}",
              f"buffer_load_dwordx4 v{218 + (pc%2 if m else 2)}, s[52:55], s48 offen lds ; #w{m}"] for pc in range(8)]
        g[0] = [x.strip() for x in tmp.lines] + [f"s_add_u32 s51, s{S_RING}, {m*8192}"] + g[0]
        return g
    def w_dma(m):
        for g in w_groups(m): emit(g)
    w_dma(0)
    stamp()
    srd(a, 12, 4, WS_BYTES)
    srd(a, 8, 4, N * 256, HP_OFF)
    for s, nb in ((20, N * 256), (24, N * 2)):
        a(f"s_mov_b32 s{s+2}, {nb}")
        a(f"s_mov_b32 s{s+3}, 0x00020000")
    a(f"s_lshl_b32 s35, s{S_SPLIT}, 2")
    a(f"s_add_u32 s{S_KEY}, s35, s{S_W}")
    a(f"s_mul_i32 s{S_KOFF}, s{S_KEY}, {NSTEP*8192}")
    a(f"s_lshl_b32 s{S_AM}, s{S_W}, 13")
    a(f"s_add_u32 s{S_AM}, s{S_AM}, {MV_OFF}")
    a(f"s_lshl_b32 s39, s{S_TILE}, 3")
    a("s_add_u32 s39, s39, s35")
    a(f"s_xor_b32 s35, s{S_SPLIT}, 1")
    a("s_mul_i32 s37, s35, 15")
    a(f"v_xor_b32 v3, s37, v{V_Q}")
    a("s_mul_i32 s37, s35, 3")
    a(f"s_xor_b32 s48, s37, s{S_W}")
    a("s_add_u32 s39, s39, s48")
    a(f"s_mul_i32 s49, s35, {4*4096}")
    a("s_add_u32 s42, s36, s49")
    a(f"s_add_u32 s49, s49, {SPARE}")
    a("s_lshl_b32 s37, s35, 13")
    a("s_sub_u32 s37, 4096, s37")
    a(f"s_mul_i32 s{S_LEFT}, s35, 4")
    a(f"s_mul_i32 s{S_LEFT}, s{S_LEFT}, s{S_W}")
    a(f"s_add_u32 s{S_LEFT}, s{S_LEFT}, s{S_W}")
    a(f"s_mul_i32 s{S_LIST}, s{S_W}, {LIST_B}")
    a(f"s_add_u32 s{S_LIST}, s{S_LIST}, {SPARE}")
    a(f"v_lshrrev_b32 v5, 1, v{V_G}")
    a(f"v_and_b32 v6, 1, v{V_G}")
    a(f"v_lshrrev_b32 v2, 2, v{V_Q}")
    a(f"v_and_b32 v7, 3, v{V_Q}")
    a("v_lshlrev_b32 v5, 5, v5")
    a("v_lshl_add_u32 v200, v2, 3, v7")
    a("v_lshl_or_b32 v31, v6, 4, v5")
    a(f"s_add_u32 s41, s{S_RING}, 8192")
    fam = (("v3", "s49", 232), (f"v{V_Q}", f"s{S_RING}", KA(0)), ("v200", "s41", 204))
    for row, base, dst in fam: a(f"v_and_b32 v{dst+1}, 7, {row}")
    for row, base, dst in fam: a(f"v_lshl_add_u32 v{dst}, {row}, 8, {base}")
    for row, base, dst in fam: a(f"v_lshl_or_b32 v{dst}, v{dst+1}, 5, v{dst}")
    for row, base, dst in fam: a(f"v_xor_b32 v{dst}, v{dst}, v31")
    for ks in range(1, 4):
        for row, base, dst in fam: a(f"v_xor_b32 v{dst+ks}, {64*ks}, v{dst}")
    for ks in range(4): a(f"v_xor_b32 v{208+ks}, 0x480, v{204+ks}")
    a(f"v_lshlrev_b32 v5, 4, v7")
    a(f"v_lshl_add_u32 v5, v{V_G}, 11, v5")
    a("v_mul_u32_u24 v6, 0x140, v2")
    a(f"s_lshl_b32 s41, s{S_W}, 6")
    a("v_add_u32 v5, v5, v6")
    a("v_xor_b32 v212, s41, v5")
    a("v_add_u32 v213, 1024, v212")
    a(f"v_add_u32 v214, {2*RING}, v212")
    a(f"v_add_u32 v215, {2*RING+1024}, v212")
    a(f"v_lshl_add_u32 v2, v{V_G}, 2, v2")
    a(f"v_lshl_add_u32 v5, v7, 3, s{S_RING}")
    a("v_and_b32 v6, 7, v2")
    a("v_lshl_add_u32 v5, v2, 8, v5")
    a("v_lshl_or_b32 v5, v6, 5, v5")
    a(f"v_xor_b32 v{VA(0)}, s41, v5")
    for j in range(1, 8): a(f"v_xor_b32 v{VA(j)}, {32*j}, v{VA(0)}")
    a("v_lshlrev_b32 v3, 8, v3")
    a(f"v_lshl_add_u32 v3, v{V_G}, 4, v3")
    a(f"s_lshl_b32 s44, s{S_W}, 6")
    a("s_add_u32 s44, s44, s42")
    a("s_mul_i32 s43, s37, 3")
    a("s_add_u32 s44, s44, s43")
    a(f"v_add_u32 v{V_ROW(1)}, s44, v3")
    a(f"v_mov_b32 v3, {OOB}")
    a(f"v_cmp_lt_u32 vcc, 7, v{V_Q}")
    a(f"v_add_u32 v{V_ROW(2)}, s37, v{V_ROW(1)}")
    a(f"v_subrev_u32 v{V_ROW(0)}, s37, v{V_ROW(1)}")
    a(f"v_cndmask_b32 v{V_ROW(0)}, v3, v{V_ROW(0)}, vcc")
    a(f"v_sub_u32 v2, 9, v{V_Q}")
    a(f"s_cmp_eq_u32 s{S_SPLIT}, 1")
    a("s_cselect_b64 vcc, -1, 0")
    a("s_mul_i32 s44, s39, 10")
    a(f"v_cndmask_b32 v5, v2, v{V_Q}, vcc")
    a(f"v_cmp_gt_u32 vcc, 10, v{V_Q}")
    a("v_add_lshl_u32 v2, v5, s44, 1")
    a("v_sub_u32 v5, 15, v5")
    a("v_lshlrev_b32 v5, v5, 1")
    a(f"v_cndmask_b32 v{V_DEG}, v3, v2, vcc")
    a(f"v_cndmask_b32 v{V_HOT}, 0, v5, vcc")
    a(f"v_lshlrev_b32 v{V_L4}, 2, v0")
    a("s_lshl_b32 s39, s39, 5")
    a(f"s_add_u32 s39, s39, {TAB_OFF}")
    a(f"v_add_u32 v{V_RED}, s{S_RING}, v{VOFF0}")
    a(f"v_add_u32 v6, {2*RING}, v{VOFF0}")
    a(f"s_lshl_b32 s44, s{S_W}, 2")
    a(f"v_add_u32 v5, {OFR}, v{VOFF0}")
    a("v_add_u32 v2, s44, v5")
    def flag_addr(dst, r, tail):
        a(f"s_mul_i32 s41, {r}, 156")
        a("s_mul_i32 s41, s41, 52429")
        a("s_lshr_b32 s41, s41, 18")
        a(f"v_add_u32 v{dst}, s41, v0")
        a(f"v_min_u32 v{dst}, 249, v{dst}")
        a("v_cmp_gt_u32 vcc, 33, v0")
        emit(tail)
        a(f"v_cndmask_b32 v{dst}, v7, v{dst}, vcc")
        a(f"v_lshlrev_b32 v{dst}, 7, v{dst}")
    flag_addr(216, f"s{S_KEY}", ["v_mov_b32 v7, 249", "s_nop 0"])
    a(f"s_xor_b32 s44, s{S_KEY}, 4")
    flag_addr(V_TAB, "s44", ["v_and_b32 v7, 7, v0", "v_min_u32 v7, 5, v7", "v_add_u32 v7, 250, v7"])
    a(f"s_lshl_b32 s57, s{S_TILE}, 1")
    a(f"s_add_u32 s57, s57, s{S_SPLIT}")
    a("s_lshl_b32 s57, s57, 7")
    a(f"s_lshl_b32 s44, s{S_W}, 2")
    a("s_add_u32 s57, s57, s44")
    a(f"s_add_u32 s57, s57, {FLH_OFF}")
    a(f"s_mov_b32 s58, {FLH_OFF}")
    a(f"s_sub_u32 s35, s{S_LIST}, s{S_RING}")
    for i in range(12): a(f"v_add_u32 v{LA+i}, s35, v{KA(0)+i}")
    a(f"v_cmp_eq_u32 vcc, 0, v{V_Q}")
    a(f"s_mov_b32 s41, {f32(1.0/128)}")
    a(f"v_mov_b32 v217, {f32(1e-5)}")
    a("v_mov_b32 v221, 0x3f80")
    a("v_mov_b32 v31, 0xffff")
    a("v_cndmask_b32 v31, 0, v31, vcc")
    a("s_mov_b32 s43, 0xffff0000")
    a(f"s_cmp_lt_u32 s{S_W}, 2")
    a(f"s_cselect_b32 s44, s{SO(2)}, 0x7ff00000")
    if WK == 0: w_dma(1)
    X = lambda i, k: 64 + 8 * i + k
    A_, B_ = (lambda i: 136 + 2 * i), (lambda i: 146 + 2 * i)
    p2 = lambda r: vr(r, 2)
    def layernorm(I, own):
        for i in I:
            a(f"@wait vm x{i}")
            for c in range(4):
                a(f"v_lshlrev_b32 v{X(i,2*c)}, 16, v{W(i)+c}")
                a(f"v_and_b32 v{X(i,2*c+1)}, s43, v{W(i)+c}")
        if own: stamp()
        for i in I: a(f"v_pk_add_f32 {p2(A_(i))}, {p2(X(i,0))}, {p2(X(i,2))}")
        for i in I: a(f"v_pk_add_f32 {p2(B_(i))}, {p2(X(i,4))}, {p2(X(i,6))}")
        for i in I: a(f"v_pk_add_f32 {p2(A_(i))}, {p2(A_(i))}, {p2(B_(i))}")
        for i in I: a(f"v_add_f32 v{A_(i)}, v{A_(i)}, v{A_(i)+1}")
        row_sum(a, [A_(i) for i in I])
        for i in I: a(f"v_mul_f32 v{A_(i)}, s41, v{A_(i)}")
        for k in range(0, 8, 2):
            for i in I: a(f"v_pk_add_f32 {p2(X(i,k))}, {p2(X(i,k))}, {p2(A_(i))} op_sel_hi:[1,0] neg_lo:[0,1] neg_hi:[0,1]")
        for i in I: a(f"v_pk_mul_f32 {p2(B_(i))}, {p2(X(i,0))}, {p2(X(i,0))}")
        for k in range(2, 8, 2):
            for i in I: a(f"v_pk_fma_f32 {p2(B_(i))}, {p2(X(i,k))}, {p2(X(i,k))}, {p2(B_(i))}")
        for i in I: a(f"v_add_f32 v{B_(i)}, v{B_(i)}, v{B_(i)+1}")
        row_sum(a, [B_(i) for i in I])
        for i in I: a(f"v_fma_f32 v{B_(i)}, v{B_(i)}, s41, v217")
        for i in I: a(f"v_rsq_f32 v{B_(i)}, v{B_(i)}")
        for k in range(0, 8, 2):
            for i in I: a(f"v_pk_mul_f32 {p2(X(i,k))}, {p2(X(i,k))}, {p2(B_(i))} op_sel_hi:[1,0]")
        for i in I:
            a(f"s_add_u32 s42, s{SO(i)}, {SPARE}")
            a(f"v_add_u32 v{B_(i)}, s42, v4")
            for c in range(4): a(f"v_cvt_pk_bf16_f32 v{W(i)+c}, v{X(i,2*c)}, v{X(i,2*c+1)}")
            if own:
                a(f"v_bfi_b32 v{X(i,0)}, v31, v221, v{W(i)}")
                for c in range(1, 4): a(f"v_mov_b32 v{X(i,c)}, v{W(i)+c}")
                a(f"s_add_u32 s42, s36, s{SO(i) if i < 2 else 44}")
                a(f"buffer_store_dwordx4 {vr(X(i,0),4)}, v4, s[8:11], s42 offen sc1 ; #hp")
        for i in I: a(f"ds_write_b128 v{B_(i)}, {vr(W(i),4)}")
    layernorm(range(3), True)
    stamp()
    a("@wait vm w0")
    a("s_barrier")
    WQ = lambda hf, ks: 32 + (hf * 4 + ks) * 4
    for hf in range(2):
        for ks in range(4):
            for hh in range(2): a(f"ds_read_b64_tr_b16 {ar(WQ(hf,ks)+2*hh,2)}, v{212 + 2*(ks//2) + hh} offset:{(ks%2)*RING + 8*hf}")
    if WK == 1: w_dma(1)
    layernorm(range(3, 5), False)
    stamp()
    a("s_waitcnt lgkmcnt(0)")
    a(f"s_add_u32 s{S_TAG}, s{S_TAG}, 0x9e3779b1")
    publish = [f"v_mov_b32 v7, s{S_TAG}", "@wait vm hp",
               "buffer_store_dword v7, off, s[12:15], s57 sc1"]
    if PUB < 0: emit(publish)
    stamp()
    a("s_barrier")
    stamp()

    def dma(slot, piece, last=7):
        out = []
        half, sub = piece // 4, piece % 4
        if sub == 0: out.append(f"s_add_u32 m0, s{S_RING}, {slot*8192 + half*4096}")
        out.append(f"buffer_load_dwordx4 v{VOFF0+half}, s[8:11], s{S_KOFF} offen offset:{sub*1024}{PL} lds")
        if piece == last: out.append(f"s_add_u32 s{S_KOFF}, s{S_KOFF}, 8192")
        return out
    tagged = lambda grp, tag: [x + f" ; #{tag}" if x.startswith("buffer_") else x for x in grp]
    HB = lambda qb, ks: 32 + (qb * 4 + ks) * 4
    MA = lambda hf, ks: 112 + (hf * 4 + ks) * 4
    QD = lambda qb, hf: 144 + (qb * 2 + hf) * 4
    def ready(regs, addr, tag, wait):
        a(wait)
        a("s_mov_b32 s49, 0x40000")
        a.label(f"L2_rdy_{tag}")
        for i in range(4): a(f"v_xor_b32 v{regs+i}, s{S_TAG}, v{regs+i}")
        a(f"v_or3_b32 v{regs}, v{regs}, v{regs+1}, v{regs+2}")
        a(f"v_or_b32 v{regs}, v{regs}, v{regs+3}")
        a(f"v_cmp_ne_u32 vcc, 0, v{regs}")
        a("s_sub_u32 s49, s49, 1")
        a("s_cselect_b64 vcc, 0, vcc")
        a(f"s_cbranch_vccz L2_go_{tag}")
        a(f"buffer_load_dwordx4 {vr(regs,4)}, v{addr}, s[12:15], s58 offen{PL} ; #offpath")
        a("s_waitcnt vmcnt(0)")
        a(f"s_branch L2_rdy_{tag}")
        a.label(f"L2_go_{tag}")
    def pack_gaps(mf, mems, vals, vstart=1):
        cost = lambda x: 0 if x.startswith(("s_", "@")) else 8 if x.startswith(("buffer_", "ds_write_b128")) else 4
        for n, m in enumerate(mf):
            a(m)
            room = 8
            while mems and sum(map(cost, mems[0])) <= room and not (mems[0][-1].startswith("ds_write") and vals):
                room -= sum(map(cost, mems[0])); emit(mems.pop(0))
            while vals and room >= 4 and n >= vstart:
                a(vals.pop(0)); room -= 4
        emit(vals)
        for g in mems: emit(g)
    def gemm(blocks, reads, post, extra):
        for qb in range(5):
            x = extra.get(qb, [])
            if callable(x): x = x()
            rd = reads(qb + 2) if qb + 2 < 5 else []
            po = post(qb - 1) if qb else []
            a(f"@wait lg hb{qb}")
            pack_gaps(blocks(qb), [[y] for y in rd if y.startswith("ds_")] + x + [[y] for y in po if y.startswith("ds_")],
                      [y for y in rd + po if y.startswith("v_")], 2)
        x = extra.get(5, [])
        for g in (x() if callable(x) else x): emit(g)
        emit(post(4))
        a("s_waitcnt lgkmcnt(0)")
        a("s_barrier")
    def chain(d, A, qb): return [f"{MF} {vr(d,4)}, {ar(A(ks),4)}, {vr(HB(qb,ks),4)}, {'0' if ks==0 else vr(d,4)}" for ks in range(4)]
    def reads1(qb):
        return [f"ds_read_b128 {vr(HB(qb,ks),4)}, v{232+ks} ; #hb{qb}" for ks in range(4)] + ([f"v_add_u32 v{232+ks}, s37, v{232+ks}" for ks in range(4)] if qb < 4 else [])
    def post1(qb):
        return [f"v_cvt_pk_bf16_f32 v{QD(qb,0)+c}, v{QD(qb,0)+2*c}, v{QD(qb,0)+2*c+1}" for c in range(4)] + [f"ds_write_b128 v{V_RED}, {vr(QD(qb,0),4)} offset:{16384 + qb*1024}"]
    wk_reads = [f"ds_read_b128 {ar((hf*4+ks)*4,4)}, v{204 + 4*hf + ks}" for hf in range(2) for ks in range(4)]
    flag1 = f"buffer_load_dwordx4 v[236:239], v216, s[12:15], s58 offen{PL} ; #flag1"
    xl = [f"buffer_load_dwordx4 {vr(XR(b),4)}, v{V_ROW(b)}, s[16:19], 0 offen" for b in range(3)] + [f"buffer_load_ushort v{V_DEG}, v{V_DEG}, s[24:27], 0 offen"]
    emit(reads1(0) + reads1(1))
    gemm(lambda qb: chain(QD(qb, 0), lambda ks: WQ(0, ks), qb) + chain(QD(qb, 1), lambda ks: WQ(1, ks), qb), reads1, post1,
         {**({0: [publish] + w_groups(1)[:3], 1: w_groups(1)[3:5], 2: w_groups(1)[5:], 5: [["@wait vm w1"] + wk_reads]} if WK == 2 else
             {PUB: [publish], 3: [[y] for y in xl], 4: [["@wait vm w1", wk_reads[0]]] + [[y] for y in wk_reads[1:]]})})
    stamp()
    Z = lambda qb: 184 + 4 * qb
    def reads2(qb): return [f"ds_read_b128 {vr(HB(qb,ks),4)}, v{VOFF0 if ks<2 else 6} offset:{(ks%2)*RING + 16384 + qb*1024} ; #hb{qb}" for ks in range(4)]
    def post2(qb):
        q = QD(qb, 0); z = Z(qb)
        po = [f"v_mul_f32 v{z}, s44, v{z}", f"v_mul_f32 v{z+1}, v{q}, v{q}", f"v_mul_f32 v{z+2}, v{q+1}, v{q+1}"]
        for i in range(2, 8): po.append(f"v_fmac_f32 v{z+1+i%2}, v{q+i}, v{q+i}")
        po += [f"v_fma_f32 v{q+i}, v{q+i}, s41, v{z}" for i in range(8)]
        po += [f"v_add_f32 v{z+1}, v{z+1}, v{z+2}"] + [f"v_cvt_pk_bf16_f32 v{q+c}, v{q+2*c}, v{q+2*c+1}" for c in range(4)]
        po += [f"v_max_f32 v{Z(0)+1}, v{Z(0)+1}, v{z+1}"] if qb else []
        po += [f"ds_write_b128 v{V_RED}, {vr(q,4)} offset:{24576 + qb*1024}"]
        if qb == 4: po += [f"ds_write_b32 v2, v{Z(0)+1}"]
        return po
    def dma_rot(t, pc):
        g = [f"s_add_u32 s51, s{S_RING}, {t*8192}"] if pc == 0 else []
        g += [f"s_add_u32 m0, s51, s{RT(pc)}", f"s_add_u32 s48, s{S_KOFF}, s{RT(pc)}", f"buffer_load_dwordx4 v{VOFF0}, s[8:11], s48 offen{PL} lds ; #t{t}"]
        return g + ([f"s_add_u32 s{S_KOFF}, s{S_KOFF}, 8192"] if pc == 7 else [])
    tl = [dma_rot(pc // 8, pc % 8) for pc in range(24)]
    def first_tile():
        stamp()
        a("@wait vm flag1")
        for i in range(4): a(f"v_xor_b32 v{240+i}, s{S_TAG}, v{236+i}")
        a("v_or3_b32 v240, v240, v241, v242")
        a("v_or_b32 v240, v240, v243")
        a("v_cmp_ne_u32 vcc, 0, v240")
        a(f"s_mov_b32 s{S_CNT}, 0")
        a("s_nop 3")
        a("s_cbranch_vccnz L2_notyet")
        for g in tl[:8]: emit(g)
        a(f"s_mov_b32 s{S_CNT}, 1")
        a.label("L2_notyet")
        stamp()
        return []
    a(f"v_lshlrev_b32 v7, 4, v{V_G}")
    for ks in range(4): a(f"ds_read_b128 {ar(64+4*ks,4)}, v7 offset:{8192 + 64*ks}")
    emit(reads2(0) + reads2(1) + [f"s_mov_b32 s41, {f32(QSCALE)}", f"s_mov_b32 s44, {f32(-QSCALE)}"])
    gemm(lambda qb: chain(Z(qb), lambda ks: 64 + 4 * ks, qb) + chain(QD(qb, 0), lambda ks: 4 * ks, qb) + chain(QD(qb, 1), lambda ks: 16 + 4 * ks, qb),
         reads2, post2, {POLL: [[flag1]], RDY: first_tile})
    stamp()

    def kread(par, slot, j):
        kb, ks = j // 4, j % 4
        return f"ds_read_b128 {vr(KF(par,kb,ks),4)}, v{KA(ks)} offset:{slot*8192 + kb*4096}"
    def vread(par, slot, j):
        db, hf = j // 2, j % 2
        return f"ds_read_b64_tr_b16 {vr(VF(par,db)+2*hf,2)}, v{VA(db)} offset:{slot*8192 + hf*4096}"
    def qk(spar, kpar, qb, j, slow):
        kb, ks = j // 4, j % 4
        c = (vr(CM(qb), 4) if slow else "0") if ks == 0 else vr(S(spar, kb), 4)
        return f"{MF} {vr(S(spar,kb),4)}, {vr(KF(kpar,kb,ks),4)}, {ar(Q(qb,ks),4)}, {c}"
    def pv(n, vpar, qb, j, first=False):
        return f"{MF} {ar(O(j,qb),4)}, {vr(VF(vpar,j),4)}, {vr(P(n),4)}, {'0' if first else ar(O(j,qb),4)}"
    def qread(qb): return [f"ds_read_b128 {ar(Q(qb,ks),4)}, v{VOFF0 if ks<2 else 6} offset:{(ks%2)*RING + 24576 + qb*1024}" for ks in range(4)]
    a(f"ds_read_b128 v[188:191], v5 ; #nq")
    for qb in range(5): emit([x + " ; #q" for x in qread(qb)])
    a(f"s_cmp_eq_u32 s{S_CNT}, 1")
    a("s_cbranch_scc1 L2_fired")
    a(flag1.replace("#flag1", "#offpath"))
    ready(236, 216, "a", "s_waitcnt vmcnt(0)")
    for g in tl[:8]: emit([x.replace("#t0", "#offpath") for x in g])
    a.label("L2_fired")
    for g in tl[8:12]: emit(g)
    a("@wait lg nq")
    emit(["v_add_f32 v188, v188, v189", "v_add_f32 v190, v190, v191", "v_add_f32 v188, v188, v190", "v_mov_b32 v189, v188"])
    emit(tl[12])
    emit(["v_permlane32_swap_b32 v188, v189", "v_add_f32 v188, v188, v189", "v_mov_b32 v189, v188"])
    emit(tl[13])
    emit(["v_permlane16_swap_b32 v188, v189", "v_add_f32 v188, v188, v189", f"v_mov_b32 v189, {f32(NORM2_MAX / QSCALE**2)}", "v_cmp_nle_f32 vcc, v188, v189"])
    emit(tl[14] + tl[15])
    a("@wait vm t0")
    stamp()
    for j in range(8): a(kread(0, 0, j) + f" ; #k0{j//4}")
    vl = [vread(0, 0, j) + " ; #v0" for j in range(16)]
    emit(vl[:4])
    a("@wait lg q")
    a("s_barrier")
    a(f"s_mov_b32 s{S_CNT}, 8")
    for j in range(8):
        if j % 4 == 0: a(f"@wait lg k0{j//4}")
        a(qk(0, 0, 0, j, False))
        emit(tl[16 + j])
        if j < 6: emit(vl[4+2*j:6+2*j])
    a("s_cbranch_vccnz L2_slow")

    V_R4, V_AD, V_OH, S_MASK = 216, 254, 255, 7
    def red_write(s, qb, h): return f"ds_write_b128 v{V_RED if qb < 4 else V_R4}, {ar(O(2*s+h,qb),4)} offset:{red_off(s,qb,h)}"
    def gather(k, regs, slot):
        g = [[f"s_add_u32 m0, s{S_RING}, {slot*8192 + i*1024}",
              f"v_bitop3_b32 v{regs+i}, v{regs+i}, v{9 + i%2}, s{S_MASK} bitop3:0x28",
              f"buffer_load_dwordx4 v{regs+i}, s[52:55], 0 offen{PL} lds ; #b{k}"] for i in range(8)]
        g[0] = [f"s_cmp_gt_u32 s{S_NB}, {k}", f"s_cselect_b32 s54, {N*256}, 0"] + g[0]
        return g
    S_T = lambda p: 60 + p if p < 4 else 46 + p
    S_P = lambda p: 41 + p if p < 4 else 44 + p
    def seg_scalars(first):
        out = []
        for p in range(NPROD):
            if first:
                out += [f"s_and_b32 s{S_S(p)}, s{S_C(p)}, 0xffff", f"s_lshr_b32 s{S_C(p)}, s{S_C(p)}, 16"]
                out += [f"s_lshl2_add_u32 s{S_S(p)}, s{S_S(p)}, {SEG_OFF + p*EPP*4}"]
            out += [f"s_min_u32 s{S_T(p)}, s{S_C(p)}, 64"]
            out += [f"s_mov_b32 s{S_NB}, s{S_T(0)}"] if p == 0 else []
            if p: out += [f"s_lshl_b32 s{S_P(p)}, s{S_NB}, 2", f"s_add_u32 s{S_NB}, s{S_NB}, s{S_T(p)}"]
        return out
    def seg_load(p):
        return [f"v_sub_u32 v{U+p}, v{U+6}, s{S_T(p)} clamp", f"v_lshl_add_u32 v{ENT(8+p)}, v{U+p}, 26, v{V_L4}",
                f"buffer_load_dword v{ENT(p)}, v{ENT(8+p)}, s[12:15], s{S_S(p)} offen{PL} ; #ent"]
    def seg_store(p):
        return [f"v_lshl_add_u32 v{U+p}, v{U+p}, 18, v{U+7}"] + ([f"v_add_u32 v{U+p}, s{S_P(p)}, v{U+p}"] if p else []) + [f"ds_write_b32 v{U+p}, v{ENT(p)}"]
    NU = 5 * NSTEP
    def unit(n): return (0, n) if n < 5 else (1 + 2 * ((n - 5) // 10) + (n - 5) % 2, ((n - 5) % 10) // 2)
    def phase_mfmas(n, slow):
        qks = [None] * 8
        if n + 1 < NU:
            t1, q1 = unit(n + 1)
            qks = [qk((n + 1) % 2, t1 % 2, q1, j, slow) for j in range(8)]
        pvs = [None] * 8
        if 1 <= n <= 5: pvs = [pv(n - 1, 0, n - 1, j, True) for j in range(8)]
        elif n >= 7:
            h = (n - 7) % 2; n0 = n - 2 - h
            pvs = [pv(n0 + k, 1 - k, unit(n0)[1], 4 * h + jj) for jj in range(4) for k in range(2)]
        return qks[:4] + pvs[:4] + qks[4:] + pvs[4:]
    class Block:
        def __init__(b, n0, nph):
            b.n0, b.nph, b.len = n0, nph, 16 * nph
            b.sc = [[] for _ in range(b.len + 1)]; b.mem = [[] for _ in range(b.len)]; b.val = [[] for _ in range(b.len)]
            b.used = [8 if G % 2 == 0 else (4 if G % 4 == 3 else 0) for G in range(b.len)]
            b.hook = {}
        def cost(b, x): return 8 if x.startswith(("buffer_", "v_exp", "ds_write_b128")) else 4
        def put(b, G, x):
            (b.val if x.startswith("v_") else b.mem)[G].append(x); b.used[G] += b.cost(x)
        def place(b, items, G, sep=0, room=8, only=None):
            prev = None
            for x in items:
                grp = x if isinstance(x, list) else [x]
                y = next(z for z in grp if not z.startswith("s_"))
                if prev is not None: G += sep if sep else (1 if prev.startswith("v_") and not y.startswith("v_") else 0)
                while G % 2 == 0 or b.used[G] + b.cost(y) > room or (only and G % 4 != only): G += 1
                b.put(G, y)
                k = grp.index(y)
                b.sc[G - 1] += grp[:k]; b.sc[G + 1] += grp[k + 1:]
                prev = y
            return G
        def emit(b, slow):
            for p in range(b.nph):
                n = b.n0 + p
                mf = phase_mfmas(n, slow)
                if n < NU:
                    for e in range(8): b.val[16*p + 2*e].append(f"v_exp_f32 v{S(n%2,e//4)+e%4}, v{S(n%2,e//4)+e%4}")
                    for c in range(4): b.val[16*p + 4*c + 3].append(f"v_cvt_pk_bf16_f32 v{P(n)+c}, v{S(n%2,c//2)+2*(c%2)}, v{S(n%2,c//2)+2*(c%2)+1}")
                for i in range(16):
                    G = 16 * p + i
                    if mf[i]: a(mf[i])
                    emit(b.sc[G] + b.mem[G] + b.val[G])
                if p in b.hook: b.hook[p]()
            emit(b.sc[b.len])
    tg = lambda grp, tag: [x + f" ; #{tag}" if x.startswith("buffer_") else x for x in grp]
    kr = lambda t: [kread(t % 2, t % 4, j) + f" ; #k{t%2}{'ab'[j//4]}" for j in range(8)]
    def single(slow):
        b = Block(0, 5)
        b.sc[0].append("@wait vm t1")
        b.place(kr(1), 1)
        b.sc[14].append("@wait lg v0")
        b.place([vread(1, 1, j) + " ; #v1" for j in range(16)], 13, only=3)
        b.place([tg(dma(3, pc), "p1") for pc in range(8)] + [tg(dma(0, pc), "p1") for pc in range(4)], 17, 4)
        b.sc[62] += ["@wait lg k1b", "@wait vm t2"]
        b.place(kr(2), 65, only=1)
        b.sc[80].append("@wait lg k0a")
        b.emit(slow)
    def am_load(m): return [f"buffer_load_dwordx4 {ar(AM(m,hf,ks),4)}, v{VOFF0+hf}, s[12:15], s{(S_AM,6)[m]} offen offset:{ks*1024}{PL}" for hf in range(2) for ks in range(4)]
    ND = (NSTEP - 1) // 2
    def double(D, slow, tag):
        last = D == ND - 1
        tA, tB = 1 + 2 * D, 2 + 2 * D
        b = Block(5 + 10 * D, 10)
        b.sc[6].append("@wait lg k0b")
        lo = (lambda j: (7, 15)[j // 4]) if D == 0 else (lambda j: 7 + 8 * (j // 2))
        G = 7
        for j in range(8):
            for t in ((tB,) if D == 0 else (tA, tB)):
                for hf in range(2): G = b.place([vread(t % 2, t % 4, 2 * j + hf) + f" ; #vv{j//2}"], max(G, lo(j)))
        for k in range(4): b.sc[34 + 8 * k].append(f"@wait lg vv{k}")
        if D == 0:
            b.place([tg(dma(0, pc), "p1") for pc in range(4, 8)], 33, only=1)
        if D + 2 < ND:
            b.place([tg(dma((tA + pc // 8) % 4, pc % 8), f"p{D%2}") for pc in range(16)], 61, 4)
        if not last:
            b.sc[116].append(f"@wait vm p{(D+1)%2}")
            b.place(kr(tA + 2)[:4], 119, only=3)
            b.place(kr(tA + 2)[4:], 129)
            b.sc[142].append("@wait lg k1a")
            b.sc[150].append("@wait lg k1b")
            G = b.place(kr(tB + 2)[:4], 135, only=3)
            b.place(kr(tB + 2)[4:], 145)
            b.sc[158].append("@wait lg k0a")
        if D == 0:
            b.sc[48] += [f"s_mov_b32 s35, {8*NSTEP*8192}", f"s_mov_b32 m0, s{S_LIST}"]
            b.place([f"buffer_load_dwordx4 v{VOFF0}, s[8:11], s35 offen offset:{pc*1024}{PL} lds ; #left" for pc in range(4)], 49, room=12)
            b.sc[82].append("@wait vm left")
            rl = [f"ds_read_b128 {vr(LK(ks),4)}, v{LA+ks} ; #lk" for ks in range(4)] + [f"ds_read_b64_tr_b16 {ar(LV(j),2)}, v{LA+4+j} ; #lv" for j in range(8)]
            b.place(rl[:9], 83, only=3)
            b.place(rl[9:], 125)
            b.hook[6] = lambda: variants(f"L2_lq{tag}", lambda r: [f"{MF} {vr(LS if not slow else 240,4)}, {vr(LK(ks),4)}, {ar(Q(r,ks),4)}, {(vr(CM(r),4) if slow else '0') if ks==0 else vr(LS if not slow else 240,4)}" for ks in range(4)], ["@wait lg lk"])
            ls = LS if not slow else 240
            b.place([f"v_exp_f32 v{ls+e}, v{ls+e}" for e in range(4)] + [f"v_cvt_pk_bf16_f32 v{ls+c}, v{ls+2*c}, v{ls+2*c+1}" for c in range(2)], 137, room=16, only=1)
            b.hook[9] = lambda: variants(f"L2_lv{tag}", lambda r: [f"{MF16} {ar(O(j,r),4)}, {ar(LV(j),2)}, {vr(ls,2)}, {ar(O(j,r),4)}" for j in range(8)], ["@wait lg lv"])
        if D == 2:
            b.put(53, f"buffer_load_dwordx4 v[240:243], v{V_TAB}, s[12:15], s58 offen{PL} ; #flag2")
            b.sc[154].append(f"s_sub_u32 s{S_CNT}, s{S_CNT}, 1")
            b.sc[156].append(f"s_cmp_lg_u32 s{S_CNT}, 0")
        if D == ND - 2:
            b.put(1, f"buffer_load_dword v{V_TAB}, v{V_L4}, s[12:15], s39 offen{PL} ; #tab")
            b.place([f"v_add_u32 v{U+6}, 1, v0", f"v_add_u32 v{U+7}, s{S_LIST}, v{V_L4}"], 5)
            b.sc[56].append("@wait vm tab")
            G = b.place([f"v_readlane_b32 s{S_C(p)}, v{V_TAB}, {p}" for p in range(NPROD)], 57)
            for k, x in enumerate(seg_scalars(True)): b.sc[64 + 2 * (k // 2) + 2 * (k // 6)].append(x)
            for p in range(NPROD): G = b.place(seg_load(p), max(G, 73 + 8 * p))
            b.place([f"v_lshl_add_u32 v{U+8}, s{S_NB}, 2, v{U+7}", f"v_mov_b32 v{U+9}, 0x7fffff0f", f"ds_write_b32 v{U+8}, v{U+9}"], 125)
            b.sc[128] += [f"s_add_u32 s6, s{S_AM}, {MM_OFF-MV_OFF}"]
            b.sc[130] += [f"s_mov_b32 s{S_MASK}, 0xfffffff0"]
            b.sc[132] += ["s_mov_b32 s52, s8"]
            b.sc[134] += ["s_mov_b32 s53, s9"]
            b.sc[136] += ["s_mov_b32 s55, 0x00020000"]
        if last:
            cst = [f"v_lshrrev_b32 v9, 1, v{V_Q}", f"v_and_b32 v10, 1, v{V_Q}", f"v_xor_b32 v9, v9, v{V_G}", "v_lshlrev_b32 v10, 4, v10",
                   "v_lshl_or_b32 v9, v9, 5, v10", f"v_lshl_add_u32 v{V_AD}, v{V_G}, 5, s{S_LIST}", "v_xor_b32 v10, 0x80, v9"]
            b.place(cst[:4], 1)
            b.sc[48].append("@wait vm ent")
            G = 49
            for p in range(NPROD): G = b.place(seg_store(p), G, room=12)
            b.place(cst[4:], 49, room=12)
            G = b.place([f"ds_read_b128 v[192:195], v{V_AD} ; #ga", f"ds_read_b128 v[196:199], v{V_AD} offset:16 ; #ga"], G + 1, only=3)
            for qb in range(3):
                b.place([red_write(s, qb, h) + " ; #send" for s in range(1, 4) for h in range(2)], 69 + 32 * qb - 4 * (qb // 2), 4, room=12)
            b.sc[G + 5].append("@wait lg ga")
            g0 = gather(0, 192, 0)
            Gv = b.place([x[-2] for x in g0], G + 6, only=3, room=12)
            b.place([[y for y in x if not y.startswith("v_")] for x in g0], Gv - 8, room=16, only=3, sep=4)
            b.place(am_load(0), 93, room=16, only=1, sep=4)
            b.place(am_load(1), 125, room=16, only=1, sep=4)
            b.place([f"v_xor_b32 v{2+s}, {s*RING}, v{V_RED}" for s in range(1, 4)] + [f"v_add_u32 v{V_R4}, s{S_LIST}, v{VOFF0}"], 143, room=12)
        b.emit(slow)

    def variants(tag, body, pre=()):
        emit(pre)
        a(f"s_cmp_ge_u32 s{S_LEFT}, 4")
        a(f"s_cbranch_scc1 {tag}_x")
        for r in range(3):
            a(f"s_cmp_eq_u32 s{S_LEFT}, {r}")
            a(f"s_cbranch_scc1 {tag}_{r}")
        for r in (3, 2, 1, 0):
            if r < 3: a.label(f"{tag}_{r}")
            emit(body(r))
            if r: a(f"s_branch {tag}_x")
        a.label(f"{tag}_x")
    def main_loop(slow):
        tag = "s" if slow else "f"
        if not slow: stamp()
        single(slow)
        double(0, slow, tag)
        a.raw(".p2align 6")
        a.label(f"L2_loop_{tag}")
        double(1, slow, tag)
        double(2, slow, tag)
        a(f"s_cbranch_scc1 L2_loop_{tag}")
        ready(240, V_TAB, "b" + tag, "@wait vm flag2")
        double(ND - 2, slow, tag)
        double(ND - 1, slow, tag)
        if not slow: a("s_branch L2_epi")
    main_loop(False)

    a.label("L2_slow")
    for k in range(4):
        a(f"v_add_u32 v216, {64*k}, v0")
        a("v_min_u32 v216, 249, v216")
        a("v_lshlrev_b32 v216, 7, v216")
        a(f"buffer_load_dwordx4 v[236:239], v216, s[12:15], s58 offen{PL}")
        ready(236, 216, f"c{k}", "s_waitcnt vmcnt(0)")
    a("s_waitcnt lgkmcnt(0)")
    for ks in range(4): a(f"v_subrev_u32 v{232+ks}, s{S_RING}, v{KA(ks)}")
    for qb in range(5): a(f"v_mov_b32 v{CM(qb)}, 0xff800000")
    a("s_mov_b32 s35, 0")
    a.label("L2_max")
    for ks in range(4): a(f"buffer_load_dwordx4 {vr(KF(1,0,ks),4)}, v{232+ks}, s[8:11], s35 offen{PL}")
    a("s_waitcnt vmcnt(0)")
    for qb in range(5):
        for ks in range(4): a(f"{MF} {vr(160+4*qb,4)}, {vr(KF(1,0,ks),4)}, {ar(Q(qb,ks),4)}, {'0' if ks==0 else vr(160+4*qb,4)}")
    for qb in range(5):
        a(f"v_max3_f32 v{CM(qb)}, v{CM(qb)}, v{160+4*qb}, v{161+4*qb}")
        a(f"v_max3_f32 v{CM(qb)}, v{CM(qb)}, v{162+4*qb}, v{163+4*qb}")
    a("s_add_u32 s35, s35, 4096")
    a(f"s_cmp_lt_u32 s35, {N*256}")
    a("s_cbranch_scc1 L2_max")
    for x in (16, 32):
        a(f"v_xor_b32 v2, {x}, v0")
        a("v_lshlrev_b32 v2, 2, v2")
        for qb in range(5): a(f"ds_bpermute_b32 v{CM(qb)+1}, v2, v{CM(qb)}")
        a("s_waitcnt lgkmcnt(0)")
        for qb in range(5): a(f"v_max_f32 v{CM(qb)}, v{CM(qb)}, v{CM(qb)+1}")
    for qb in range(5):
        a(f"v_sub_f32 v{CM(qb)}, 0, v{CM(qb)}")
        for r in range(1, 4): a(f"v_mov_b32 v{CM(qb)+r}, v{CM(qb)}")
    for j in range(8): a(qk(0, 0, 0, j, True))
    a("s_nop 7")
    main_loop(True)

    a.label("L2_epi")
    stamp()
    R = lambda qb: 32 + qb * 8
    T = lambda k: (72, 80, 88, 160, 168, 184, 192, 200, 208)[k]
    AG = lambda j: 96 + 4 * j
    GV = lambda j: 128 + 4 * j
    V_BA, TMP = 206, 210
    V_OW, V_OR, V_P0, V_P1 = 214, 215, 218, 219
    FLG, SEL = 232, 236
    PK = lambda b: 240 + 4 * b
    GA = lambda k, i: 160 + 8 * k + i
    OH = lambda i: 84 + i
    OB = 92
    BO = lambda b, ks: (b * 4 + ks) * 4
    BP = lambda b, ks: 48 + (b * 4 + ks) * 4
    FO = lambda b, hf: 32 + (b * 2 + hf) * 4
    LD = lambda b: 56 + 4 * b
    def acc_reads(qb): return [f"v_accvgpr_read_b32 v{R(qb)+4*h+r}, a{O(h,qb)+r}" for h in range(2) for r in range(4)]
    def pack(d, qb): return [f"v_cvt_pk_bf16_f32 v{d+c}, v{R(qb)+2*c}, v{R(qb)+2*c+1}" for c in range(4)]
    a("@wait lg send")
    a("s_barrier")
    stamp()
    def red_read(k, s, qb): return [f"ds_read_b128 {vr(T(k)+4*h,4)}, v{3+s if qb < 4 else 200+s} offset:{red_off(s+1,qb,h)} ; #r{k}" for h in range(2)]
    def red_add(k, qb): return [f"@wait lg r{k}"] + [f"v_pk_add_f32 {vr(R(qb)+i,2)}, {vr(R(qb)+i,2)}, {vr(T(k)+i,2)}" for i in range(0, 8, 2)]
    tail = [x for n in (NU, NU + 1) for x in phase_mfmas(n, False) if x]
    pack_gaps(tail, [red_read(3 * qb + s, s, qb) for qb in range(3) for s in range(3)], acc_reads(0) + acc_reads(1)[:6], 9)
    emit(acc_reads(1)[6:] + acc_reads(2))
    emit([f"s_mul_i32 s42, s{S_PART}, {XCH_WG}", f"s_mul_i32 s43, s{S_W}, 2560", f"s_add_u32 s43, s43, {XCH_OFF}",
          "s_add_u32 s42, s42, s43",
          f"s_mul_i32 s44, s2, {XCH_WG}", "s_add_u32 s43, s43, s44",
          f"v_sub_u32 v6, 23, v{V_Q}", "v_lshlrev_b32 v6, 6, v6", f"v_lshl_add_u32 v6, v{V_G}, 4, v6",
          f"v_cmp_gt_u32 vcc, 8, v{V_Q}", "v_subrev_u32 v7, 1024, v6", f"v_mov_b32 v31, {OOB}", "v_cndmask_b32 v7, v31, v7, vcc"])
    SK = lambda qb: 240 + 4 * qb
    wr = [red_write(s, qb, h) for qb in (3, 4) for s in range(1, 4) for h in range(2)]
    for qb in range(3):
        for s in range(3):
            emit(red_add(3 * qb + s, qb))
            a(wr.pop(0))
        emit(pack(SK(qb), qb))
        a(wr.pop(0))
        va, off = (7, 0) if qb == 2 else (6, (1 - qb) * 1024)
        a(f"buffer_store_dwordx4 {vr(SK(qb),4)}, v{va}, s[12:15], s42 offen offset:{off} sc1 ; #xst")
    a("s_waitcnt lgkmcnt(0)")
    a("s_barrier")
    stamp()
    def list_done():
        a(f"s_add_u32 s{S_NB}, s{S_NB}, 31")
        a(f"s_lshr_b32 s{S_NB}, s{S_NB}, 5")
        a(f"v_lshl_add_u32 v{V_AD}, v{V_G}, 5, s{S_LIST}")
        a(f"v_lshl_add_u32 v{V_OH}, v{V_G}, 2, s{S_LIST}")
    def addr_reads(k, off):
        return [f"ds_read_b128 {vr(GA(k,0),4)}, v{V_AD} offset:{off}", f"ds_read_b128 {vr(GA(k,4),4)}, v{V_AD} offset:{off+16}"]
    def fire(k, regs, slot): return gather(k, GA(regs, 0), slot)
    GW = lambda p, j: 96 + 32 * p + 4 * j
    OBP = lambda p: (92, 80)[p]
    def loads(k, slot, p, extra=()):
        m = [f"ds_read2_b32 {vr(OH(2*c),2)}, v{V_OH} offset0:{32*k + 16*(c%2) + 4*(c//2)} offset1:{32*k + 16*(c%2) + 4*(c//2) + 8}" for c in range(4)]
        m += list(extra)
        for j in range(16):
            m.append(f"ds_read_b64_tr_b16 {ar(GW(p,j//2)+2*(j%2),2)}, v{VA(j//2)} offset:{slot*8192 + (j%2)*4096}")
            if j == 7: m.append("s_waitcnt lgkmcnt(8)")
            if 8 <= j < 12:
                c = j - 8; o = OBP(p) + c
                m += [f"v_lshlrev_b32 v{o}, v{OH(2*c)}, v{V_HOT}", f"v_lshl_or_b32 v{o}, v11, v{OH(2*c+1)}, v{o}",
                      f"v_pk_ashrrev_i16 v{o}, 15, v{o} op_sel_hi:[0,1]", f"v_and_b32 v{o}, v{V_DEG}, v{o}"]
        return m
    def mults(p, first=False): return [f"{MF} {vr(AG(j),4)}, {ar(GW(p,j),4)}, {vr(OBP(p),4)}, {'0' if first else vr(AG(j),4)}" for j in range(8)]
    def stage(k, slot_next, groups=(), extra=()):
        a("s_waitcnt lgkmcnt(0)")
        mm = mults(k % 2, k == 0)
        emit(mm[:2] + sum(list(groups[:2]), []))
        a(f"@wait vm b{k+1}")
        ld = loads(k + 1, slot_next, (k + 1) % 2, extra)
        main = []
        for x, ins in enumerate(ld):
            main.append(ins)
            if x % 4 == 1 and len(mm) > 2: main.append(mm.pop(2))
        assert len(mm) == 2
        weave(main, list(groups[2:]))
    list_done()
    for k in range(2): emit([x + " ; #ga" for x in addr_reads(k, (k + 1) * 128)])
    for s in range(1, 4): a(f"v_xor_b32 v{199+s}, {s*LIST_B}, v{V_R4}")
    T = lambda k: 96 + 8 * k
    for n, qb in enumerate((3, 4)):
        for s in range(3): emit(red_read(3 * n + s, s, qb))
    emit([f"v_lshlrev_b32 v11, 16, v{V_HOT}", f"v_lshl_or_b32 v{V_DEG}, v{V_DEG}, 16, v{V_DEG}"])
    a("@wait lg ga")
    own = acc_reads(3) + acc_reads(4)
    for n, qb in enumerate((3, 4)):
        for s in range(3): own += red_add(3 * n + s, qb)
    weave(own, fire(1, 0, 1))
    a("s_barrier")
    stamp()
    pre = [f"v_add_u32 v{V_OR}, {SPARE+2048}, v{VOFF0}"] + addr_reads(2, 3 * 128) + addr_reads(3, 4 * 128)
    pre += [f"v_cmp_eq_u32 vcc, 0, v{V_G}", f"v_mov_b32 v{SEL}, 0x3f80", f"v_mov_b32 v{SEL+1}, 0", f"v_mov_b32 v{SEL+2}, 0", f"v_mov_b32 v{SEL+3}, 0",
            f"v_cndmask_b32 v{SEL}, 0, v{SEL}, vcc",
            "s_lshl_b32 s57, s2, 7", f"s_lshl_b32 s50, s{S_W}, 2", f"s_add_u32 s50, s50, {FLX_OFF}", "s_add_u32 s57, s57, s50",
            f"s_lshl_b32 s51, s{S_PART}, 7", "s_add_u32 s51, s51, s50", "s_mov_b32 s49, 0x40000", f"v_mov_b32 v2, s{S_TAG}"]
    pre2 = []
    for b in range(3):
        t = TMP
        pre2 += [f"v_add_u32 v{t}, {16*b-8}, v{V_Q}"] + ([f"v_max_i32 v{t}, 0, v{t}"] if b == 0 else [])
        pre2 += [f"v_mul_u32_u24 v{t+1}, 26, v{t}", f"v_lshrrev_b32 v{t+1}, 8, v{t+1}",
                 f"v_mul_u32_u24 v{t+2}, 10, v{t+1}", f"v_sub_u32 v{t}, v{t}, v{t+2}",
                 f"v_lshl_add_u32 v{t}, v{V_G}, 4, v{t}", f"v_lshlrev_b32 v{t}, 4, v{t}",
                 f"v_lshl_add_u32 v{V_BA+b}, v{t+1}, 15, v{t}"]
    prep = [f"v_add_u32 v{V_P1}, 8, v{V_Q}", f"v_lshlrev_b32 v{V_P1}, 6, v{V_P1}", f"v_lshl_add_u32 v{V_P1}, v{V_G}, 4, v{V_P1}",
             f"v_cmp_lt_u32 vcc, 7, v{V_Q}", f"v_subrev_u32 v{V_P0}, 1024, v{V_P1}", "s_mov_b32 s58, 0xffff0000",
             f"v_cndmask_b32 v{V_P0}, v31, v{V_P0}, vcc"]
    for s in range(4):
        pre2 += [f"s_lshl_b32 s41, s{S_W}, 10", f"v_add_u32 v3, s41, v{V_RED}"] if s == 0 else [f"v_xor_b32 v{3+s}, {s*1024}, v3"]
    publish2 = ["@wait vm xst",
                "buffer_store_dword v2, off, s[12:15], s57 sc1"]
    flag = f"buffer_load_dword v{FLG}, off, s[12:15], s51 sc1"
    weave(pre, fire(2, 1, 2))
    emit(publish2)
    a("s_waitcnt lgkmcnt(0)")
    weave(loads(0, 0, 0, addr_reads(0, 5 * 128)), fire(3, 2, 3))
    stamp()
    FD = lambda b, hf: 160 + (b * 2 + hf) * 4
    PX = lambda b: 68 + 4 * b if False else (32, 36, 40)[b]
    xun = [[f"v_lshlrev_b32 v{FD(b,0)+2*c}, 16, v{XR(b)+c}", f"v_and_b32 v{FD(b,0)+2*c+1}, s58, v{XR(b)+c}"] for b in range(3) for c in range(4)]
    pl = [f"buffer_load_dwordx4 {vr(PX(b),4)}, v{V_P0 if b==0 else V_P1}, s[12:15], s43 offen offset:{(b//2)*1024} sc1 ; #p" for b in range(3)]
    def poll():
        a("@wait vm flag")
        a.label("L2_poll")
        a(f"v_readfirstlane_b32 s50, v{FLG}")
        a(f"s_cmp_eq_u32 s50, s{S_TAG}")
        a("s_cbranch_scc1 L2_got")
        a(flag + " ; #offpath")
        a("s_sub_u32 s49, s49, 1")
        a("s_waitcnt vmcnt(0)")
        a("s_cbranch_scc0 L2_poll")
        a.label("L2_got")
        emit(pl)
    merge = []
    for b in range(3):
        for c in range(4):
            merge += [[f"v_dot2_f32_bf16 v{R(2+b)+2*c}, v{PX(b)+c}, s41, v{R(2+b)+2*c}", f"v_dot2_f32_bf16 v{R(2+b)+2*c+1}, v{PX(b)+c}, 1.0, v{R(2+b)+2*c+1}"]]
        merge += [pack(PK(b), 2 + b) + [f"ds_write_b128 v{V_R4}, {vr(PK(b),4)} offset:{2048 + b*1024}"]]
    merge = [["s_mov_b32 s41, 0x3f80", "s_mov_b32 s42, 0x3f800000"]] + [[y.replace(", 1.0,", ", s42,") for y in x] for x in merge]
    stage(0, 1, fire(4, 3, 0))
    a(flag + " ; #flag")
    stage(1, 2, fire(5, 0, 1))
    emit(prep if P2 else prep + pre2)
    stamp()
    poll()
    stamp()
    stage(2, 3, [pre2[k:k+4] for k in range(0, len(pre2), 4)] if P2 else ())
    a(f"s_cmp_le_u32 s{S_NB}, 6")
    a("s_cbranch_scc1 L2_no7a")
    emit(addr_reads(3, 6 * 128))
    a("s_waitcnt lgkmcnt(0)")
    for g in fire(6, 3, 2): emit([x.replace("#b6", "#offpath") for x in g])
    a.label("L2_no7a")
    stage(3, 0, xun)
    stage(4, 1)
    a("s_waitcnt lgkmcnt(0)")
    emit(mults(1))
    a(f"s_cmp_le_u32 s{S_NB}, 6")
    a("s_cbranch_scc1 L2_aggdone")
    a("s_waitcnt vmcnt(0)")
    emit(loads(6, 2, 0))
    a("s_waitcnt lgkmcnt(0)")
    emit(mults(0))
    a(f"s_mov_b32 s{S_I}, 7")
    a(f"v_add_u32 v{V_AD}, {7*128}, v{V_AD}")
    a(f"v_add_u32 v{V_OH}, {7*128}, v{V_OH}")
    a.label("L2_more")
    a(f"s_cmp_ge_u32 s{S_I}, s{S_NB}")
    a("s_cbranch_scc1 L2_aggdone")
    emit(addr_reads(3, 0))
    a("s_waitcnt lgkmcnt(0)")
    for g in fire(0, 3, 0): emit(g)
    a("s_waitcnt vmcnt(0)")
    emit(loads(0, 0, 0))
    a("s_waitcnt lgkmcnt(0)")
    emit(mults(0))
    a(f"s_add_u32 s{S_I}, s{S_I}, 1")
    a(f"v_add_u32 v{V_AD}, 128, v{V_AD}")
    a(f"v_add_u32 v{V_OH}, 128, v{V_OH}")
    a("s_branch L2_more")
    a.label("L2_aggdone")
    a(f"s_max_u32 s41, s{S_C(0)}, s{S_C(1)}")
    for p in range(2, NPROD): a(f"s_max_u32 s41, s41, s{S_C(p)}")
    a("s_cmp_le_u32 s41, 64")
    a("s_cbranch_scc1 L2_aggend")
    for p in range(NPROD):
        a(f"s_min_u32 s41, s{S_C(p)}, 64")
        a(f"s_sub_u32 s{S_C(p)}, s{S_C(p)}, s41")
        a(f"s_add_u32 s{S_S(p)}, s{S_S(p)}, 256")
    emit(seg_scalars(False))
    a("s_waitcnt vmcnt(0)")
    emit([f"v_add_u32 v{U+6}, 1, v0", f"v_add_u32 v{U+7}, s{S_LIST}, v{V_L4}"])
    for p in range(NPROD): emit(seg_load(p))
    emit([f"v_lshl_add_u32 v{U+8}, s{S_NB}, 2, v{U+7}", f"v_mov_b32 v{U+9}, 0x7fffff0f", f"ds_write_b32 v{U+8}, v{U+9}"])
    a("s_waitcnt vmcnt(0)")
    for p in range(NPROD): emit(seg_store(p))
    list_done()
    a(f"s_mov_b32 s{S_I}, 0")
    a("s_branch L2_more")
    a.label("L2_aggend")
    stamp()
    for s in range(4):
        for c in range(4): a(f"v_cvt_pk_bf16_f32 v{GV(s)+c}, v{AG(2*s)+2*c}, v{AG(2*s)+2*c+1}")
        a(f"ds_write_b128 v{3+s}, {vr(GV(s),4)}")
    a("s_waitcnt vmcnt(0)")
    emit(sum(merge, []))
    a("s_waitcnt lgkmcnt(0)")
    a("s_barrier")
    BA = lambda b, ks: 96 + (b * 4 + ks) * 4
    for b in range(3):
        for ks in range(4): a(f"ds_read_b128 {ar(BO(b,ks),4)}, v{V_OR} offset:{ks*LIST_B + b*1024}")
        for ks in range(4): a(f"ds_read_b128 {vr(BA(b,ks),4)}, v{V_BA+b} offset:{ks*1024}")
    stamp()
    def finish(b):
        out = [f"v_fmac_f32 v{FD(b,0)+i}, v{FO(b,0)+i}, v{LD(b)}" for i in range(8)]
        out += [f"v_cvt_pk_bf16_f32 v{PK(b)+c}, v{FD(b,0)+2*c}, v{FD(b,0)+2*c+1}" for c in range(4)]
        out += [f"buffer_store_dwordx4 {vr(PK(b),4)}, v{V_ROW(b)}, s[20:23], 0 offen{ST2}"]
        return out
    fz = []
    for b in range(3):
        pj = [f"s_waitcnt lgkmcnt({min(15, 20-8*b)})", f"{MF} {vr(LD(b),4)}, {vr(SEL,4)}, {ar(BO(b,0),4)}, 0"]
        pj += [f"{MF} {vr(FO(b,hf),4)}, {ar(AM(0,hf,ks),4)}, {ar(BO(b,ks),4)}, {'0' if ks==0 else vr(FO(b,hf),4)}" for hf in range(2) for ks in range(4)]
        pj += [f"s_waitcnt lgkmcnt({min(15, 16-8*b)})"]
        pj += [f"{MF} {vr(FD(b,hf),4)}, {ar(AM(1,hf,ks),4)}, {vr(BA(b,ks),4)}, {vr(FD(b,hf),4)}" for hf in range(2) for ks in range(4)]
        for i, x in enumerate(pj):
            a(x)
            if i == 11: a(f"v_rcp_f32 v{LD(b)}, v{LD(b)}")
            elif i >= 3:
                for _ in range(2):
                    if fz: a(fz.pop(0))
        assert not fz
        fz = finish(b)
    stamp()
    emit(fz)
    stamp()
    a(f"s_or_b32 s41, s2, s{S_W}")
    a("s_cbranch_scc1 L2_notag")
    a(f"s_mov_b32 s41, {EPO_OFF}")
    a("s_mov_b64 exec, 1")
    a("buffer_store_dword v2, off, s[12:15], s41 sc1")
    a("s_mov_b64 exec, -1")
    a.label("L2_notag")
    if stamps:
        a("s_waitcnt vmcnt(0)")
        stamp()
        assert nst[0] <= 10
        a("s_memrealtime s[98:99]")
        a("s_waitcnt lgkmcnt(0)")
        a(f"s_lshl_b32 s40, s{S_TILE}, 1")
        a(f"s_add_u32 s40, s40, s{S_SPLIT}")
        a("s_lshl_b32 s40, s40, 2")
        a(f"s_add_u32 s40, s40, s{S_W}")
        a("s_lshl_b32 s40, s40, 6")
        srd(a, 8, 4, 1 << 20, ST_OFF)
        a("s_mov_b64 exec, 1")
        for i, r in enumerate([96, 98] + [64 + 2 * k for k in range(nst[0])]):
            a(f"v_mov_b32 v1, s{r}")
            a(f"buffer_store_dword v1, off, s[8:11], s40 offset:{4*i}")
    a.label("L2_end")
    a("s_endpgm")
    gen_helper(a, S_TAG, WS_BYTES)
def desc_k2(a):
    kernel_desc(a, NAME2, 512, 256, 102)
K2_LAUNCH = f"; @launch grid=({NWG},1,1) block=(256,1,1) lds={LDS2}"
```

```python
import sys
from kf import *
import hazard
import re
def resolve_waits(text):
    lines = text.split("\n")
    for i, l in enumerate(lines):
        m = re.match(r"\s*@wait (vm|lg) (\S+)", l)
        if not m: continue
        pre = ("buffer_", "global_") if m.group(1) == "vm" else ("ds_",)
        n = 0
        k = i - 1
        while True:
            if k < 0: raise Exception("tag not found: " + l)
            x = lines[k].strip()
            if x.endswith(":") and lines[k-1].strip().startswith(("s_branch", "s_endpgm")):
                k = max(q for q in range(k) if re.match(r"\s*s_c?branch\S*\s+" + x[:-1] + "$", lines[q]))
            if x.startswith(pre):
                if x.endswith("#" + m.group(2)): break
                if not x.endswith("#offpath"): n += 1
            k -= 1
        lines[i] = f"    s_waitcnt vmcnt({min(n,63)})" if m.group(1) == "vm" else f"    s_waitcnt lgkmcnt({min(n,15)})"
    return "\n".join(re.sub(r"\s*; #\S+$", "", l) for l in lines)
def build_all(path, stamps=False, verbose=False):
    a = Asm()
    hdr = open("gather_scatter__hybrid_graph_tf_graphgps__graph.s.ref").read().split("\n")
    for l in hdr:
        if l.startswith("; Override") : break
        a.raw(l)
    a.raw(K2_LAUNCH)
    a.raw('.amdgcn_target "amdgcn-amd-amdhsa--gfx950"')
    gen_k2(a, stamps); desc_k2(a)
    rep = []
    t = hazard.fix(resolve_waits(a.text()), rep)
    if verbose:
        for r in rep: print(r)
    open(path, "w").write(t)
if __name__ == "__main__":
    build_all("gather_scatter__hybrid_graph_tf_graphgps__graph.s", False, True)
    import kf
    kf.SKIP = tuple(int(x) for x in sys.argv[1].split(",")) if len(sys.argv) > 1 else ()
    build_all("full_st.s", True)
```

```python
from asmlib import *
from layout import *
from helper import wave_scan, row_sum, gen_helper
NAME2 = "gather_scatter__hybrid_graph_tf_graphgps__graph_kernel"
NWG = 256
NSTEP = 39
RING = 32768
SPARE = 4 * RING
LIST_B = 8192
OFR = SPARE + 20480
LDS2 = SPARE + 4 * LIST_B
ST2 = ' sc1'
SKIP = ()
PREFETCH = 1
REAL = 0
PUB, POLL, RDY, WK = 2, 2, 5, 0
P2 = 0
WQL = 1
WS_BYTES = XCH_OFF + NWG * XCH_WG
MF = "v_mfma_f32_16x16x32_bf16"
MF16 = "v_mfma_f32_16x16x16_bf16"
OOB = "0x7fffff00"
NORM2_MAX = 48.0
O = lambda j, qb: (qb * 8 + j) * 4
Q = lambda qb, ks: 160 + (qb * 4 + ks) * 4
AM = lambda m, hf, ks: 160 + ((m * 2 + hf) * 4 + ks) * 4
KF = lambda par, kb, ks: 32 + par * 32 + (kb * 4 + ks) * 4
VF = lambda par, j: 96 + par * 32 + j * 4
S = lambda par, kb: 160 + par * 8 + kb * 4
P = lambda n: 176 + (n % 2) * 4 if n % 4 < 2 else 232 + (n % 2) * 4
KA = lambda ks: 8 + ks
VA = lambda j: 12 + j
VOFF0, VOFF1 = 20, 21
V_TAB, V_L4, V_Q, V_G = 22, 23, 24, 25
V_DEG, V_HOT, V_RED = 26, 27, 1
V_ROW = lambda b: 28 + b
ENT = lambda j: 184 + j
CM = lambda qb: 200 + qb * 4
XR = lambda b: 220 + b * 4
LK = lambda ks: 184 + 4 * ks
LV = lambda j: 240 + 2 * j
LS, LP, LA = 200, 204, 244
U = 244
S_W, S_TILE, S_SPLIT, S_RING, S_KOFF, S_CNT, S_LEFT = 3, 28, 29, 30, 31, 33, 34
S_AM, S_LIST, S_NB, S_I, S_PART, S_TAG, S_KEY = 40, 45, 46, 47, 56, 59, 38
S_C = lambda p: 84 + p
S_S = lambda p: 90 + p
PL = ' sc1'
ST_OFF = 0x1000000
def red_off(s, qb, h):
    k = qb * 6 + (s - 1) * 2 + h
    return (8 + k) * 1024 if qb < 4 else (k - 22) * 1024

def gen_k2(a, stamps=False):
    nst = [0]
    seq = [0]
    def stamp():
        seq[0] += 1
        if not stamps or (SKIP and seq[0] in SKIP): return
        i = nst[0]; nst[0] += 1
        a(f"{'s_memrealtime' if REAL else 's_memtime'} s[{64+2*i}:{65+2*i}]")
    def emit(xs):
        for x in xs: a(x)
    def weave(main, groups, first=0):
        n = len(main) - first
        pos = {first + (k * n) // len(groups): g for k, g in enumerate(groups)} if groups else {}
        assert len(pos) == len(groups)
        for x, ins in enumerate(main):
            a(ins)
            emit(pos.get(x, []))
    kernel_begin(a, NAME2)
    a(f"s_cmp_ge_u32 s2, {NWG}")
    a("s_cbranch_scc1 L2_end")
    a(f"s_load_dwordx2 s[4:5], s[0:1], {A_WS}")
    a("s_cmp_ge_u32 s2, 250")
    a("s_cbranch_scc1 LH")
    a(f"s_load_dwordx2 s[16:17], s[0:1], {A_X}")
    a(f"s_load_dwordx4 s[60:63], s[0:1], {A_WQ}")
    a(f"s_load_dwordx2 s[20:21], s[0:1], {A_OUT}")
    a(f"s_load_dwordx2 s[24:25], s[0:1], {A_DEG}")
    if stamps: a("s_memrealtime s[96:97]")
    stamp()
    if PREFETCH:
        a("s_getpc_b64 s[42:43]")
        a.label("L2_pc")
        a("s_lshr_b32 s35, s2, 3")
        a("v_and_b32 v2, 7, v0")
        a("v_lshl_add_u32 v2, s35, 3, v2")
        a("v_lshlrev_b32 v2, 7, v2")
        a("v_mov_b32 v3, L2_slow-L2_pc")
        a("v_cmp_gt_u32 vcc, v3, v2")
        a("v_add_u32 v3, L2_epi-L2_slow, v2")
        a("v_cndmask_b32 v2, v3, v2, vcc")
        a("v_min_u32 v2, LH-L2_pc, v2")
        a("v_mov_b32 v3, s43")
        a("v_add_co_u32 v2, vcc, s42, v2")
        a("v_addc_co_u32 v3, vcc, 0, v3, vcc")
        a("global_load_dword v160, v[2:3], off")
    a("v_lshrrev_b32 v1, 6, v0")
    a("v_and_b32 v0, 63, v0")
    a(f"s_lshr_b32 s{S_TILE}, s2, 4")
    a(f"v_readfirstlane_b32 s{S_W}, v1")
    a(f"s_lshl_b32 s{S_TILE}, s{S_TILE}, 3")
    a("s_and_b32 s35, s2, 7")
    a(f"s_add_u32 s{S_TILE}, s{S_TILE}, s35")
    a(f"s_bfe_u32 s{S_SPLIT}, s2, 0x10003")
    a(f"s_xor_b32 s{S_PART}, s2, 8")
    a("s_sub_u32 s35, s2, 242")
    a("s_cmp_lt_u32 s35, 6")
    a("s_cbranch_scc0 L2_ids")
    a(f"s_and_b32 s{S_SPLIT}, s2, 1")
    a(f"s_xor_b32 s{S_PART}, s2, 1")
    a("s_lshr_b32 s35, s35, 1")
    a(f"s_add_u32 s{S_TILE}, s35, 122")
    a.label("L2_ids")
    a(f"v_and_b32 v{V_Q}, 15, v0")
    a(f"v_lshrrev_b32 v{V_G}, 4, v0")
    a(f"v_lshlrev_b32 v{VOFF0}, 4, v0")
    a(f"v_add_u32 v{VOFF1}, 4096, v{VOFF0}")
    a(f"s_lshl_b32 s{S_RING}, s{S_W}, 15")
    a(f"s_mul_i32 s36, s{S_TILE}, {80*256}")
    a(f"s_mul_i32 s35, s{S_SPLIT}, 10")
    a(f"s_add_u32 s35, s35, s{S_W}")
    SO = lambda i: 84 + i
    for i in range(5):
        a(f"s_add_u32 s{SO(i)}, s35, {4*i}")
        a(f"s_sub_u32 s41, s{SO(i)}, 20")
        a(f"s_cselect_b32 s{SO(i)}, s{SO(i)}, s41")
        a(f"s_lshl_b32 s{SO(i)}, s{SO(i)}, 10")
    a(f"v_lshrrev_b32 v2, 1, v{V_Q}")
    a(f"v_xor_b32 v2, v2, v{V_G}")
    a("v_lshlrev_b32 v2, 5, v2")
    a(f"v_and_b32 v3, 1, v{V_Q}")
    a("v_lshl_or_b32 v2, v3, 4, v2")
    a(f"v_lshl_or_b32 v218, v{V_G}, 8, v2")
    a("v_xor_b32 v219, 0x80, v218")
    a(f"s_and_b32 s41, s{S_W}, 1")
    a("s_lshl_b32 s41, s41, 7")
    a("v_xor_b32 v4, s41, v218")
    a(f"v_lshlrev_b32 v220, 6, v{V_G}")
    a(f"v_xor_b32 v220, v220, v{VOFF0}")
    a(f"s_lshl_b32 s50, s{S_W}, 13")
    a("s_add_u32 s51, s50, 4096")
    a("s_waitcnt lgkmcnt(0)")
    stamp()
    a(f"s_mov_b32 s18, {N*256}")
    a("s_mov_b32 s19, 0x00020000")
    W = lambda i: 32 + 4 * i
    for i in range(5):
        a(f"s_add_u32 s41, s36, s{SO(i)}")
        a(f"buffer_load_dwordx4 {vr(W(i),4)}, v{VOFF0}, s[16:19], s41 offen ; #x{i}")
    a(f"s_add_u32 s48, s4, {EPO_OFF}")
    a("s_addc_u32 s49, s5, 0")
    a(f"s_load_dword s{S_TAG}, s[48:49], 0")
    def w_groups(m):
        tmp = Asm(); srd(tmp, 52, 60 + 2 * m, 32768)
        g = [([f"s_add_u32 m0, s{S_RING}, {m*8192 + pc//4*4096}"] if pc % 4 == 0 else []) +
             [f"buffer_load_dwordx4 v{218 + (pc%2 if m else 2)}, s[52:55], s{50 + pc//4} offen offset:{pc%4*1024} lds ; #w{m}"] for pc in range(8)]
        g[0] = [x.strip() for x in tmp.lines] + g[0]
        return g
    def w_dma(m):
        for g in w_groups(m): emit(g)
    if not WQL: w_dma(0)
    stamp()
    srd(a, 12, 4, WS_BYTES)
    srd(a, 8, 4, N * 256, HP_OFF)
    for s, nb in ((20, N * 256), (24, N * 2)):
        a(f"s_mov_b32 s{s+2}, {nb}")
        a(f"s_mov_b32 s{s+3}, 0x00020000")
    a(f"s_lshl_b32 s35, s{S_SPLIT}, 2")
    a(f"s_add_u32 s{S_KEY}, s35, s{S_W}")
    a(f"s_mul_i32 s{S_KOFF}, s{S_KEY}, {NSTEP*8192}")
    a(f"s_lshl_b32 s{S_AM}, s{S_W}, 13")
    a(f"s_add_u32 s{S_AM}, s{S_AM}, {MV_OFF}")
    a(f"s_lshl_b32 s39, s{S_TILE}, 3")
    a("s_add_u32 s39, s39, s35")
    a(f"s_xor_b32 s35, s{S_SPLIT}, 1")
    a("s_mul_i32 s37, s35, 15")
    a(f"v_xor_b32 v3, s37, v{V_Q}")
    a("s_mul_i32 s37, s35, 3")
    a(f"s_xor_b32 s48, s37, s{S_W}")
    a("s_add_u32 s39, s39, s48")
    a(f"s_mul_i32 s49, s35, {4*4096}")
    a("s_add_u32 s42, s36, s49")
    a(f"s_add_u32 s49, s49, {SPARE}")
    a("s_lshl_b32 s37, s35, 13")
    a("s_sub_u32 s37, 4096, s37")
    a(f"s_mul_i32 s{S_LEFT}, s35, 4")
    a(f"s_mul_i32 s{S_LEFT}, s{S_LEFT}, s{S_W}")
    a(f"s_add_u32 s{S_LEFT}, s{S_LEFT}, s{S_W}")
    a(f"s_mul_i32 s{S_LIST}, s{S_W}, {LIST_B}")
    a(f"s_add_u32 s{S_LIST}, s{S_LIST}, {SPARE}")
    a(f"v_lshrrev_b32 v5, 1, v{V_G}")
    a(f"v_and_b32 v6, 1, v{V_G}")
    a(f"v_lshrrev_b32 v2, 2, v{V_Q}")
    a(f"v_and_b32 v7, 3, v{V_Q}")
    a("v_lshlrev_b32 v5, 5, v5")
    a("v_lshl_add_u32 v200, v2, 3, v7")
    a("v_lshl_or_b32 v31, v6, 4, v5")
    a(f"s_add_u32 s41, s{S_RING}, 8192")
    fam = (("v3", "s49", 232), (f"v{V_Q}", f"s{S_RING}", KA(0)), ("v200", "s41", 204))
    for row, base, dst in fam: a(f"v_and_b32 v{dst+1}, 7, {row}")
    for row, base, dst in fam: a(f"v_lshl_add_u32 v{dst}, {row}, 8, {base}")
    for row, base, dst in fam: a(f"v_lshl_or_b32 v{dst}, v{dst+1}, 5, v{dst}")
    for row, base, dst in fam: a(f"v_xor_b32 v{dst}, v{dst}, v31")
    for ks in range(1, 4):
        for row, base, dst in fam: a(f"v_xor_b32 v{dst+ks}, {64*ks}, v{dst}")
    for ks in range(4): a(f"v_xor_b32 v{208+ks}, 0x480, v{204+ks}")
    a(f"v_lshlrev_b32 v5, 4, v7")
    a(f"v_lshl_add_u32 v5, v{V_G}, 11, v5")
    a("v_mul_u32_u24 v6, 0x140, v2")
    a(f"s_lshl_b32 s41, s{S_W}, 6")
    a("v_add_u32 v5, v5, v6")
    a("v_xor_b32 v212, s41, v5")
    a("v_add_u32 v213, 1024, v212")
    a(f"v_add_u32 v214, {2*RING}, v212")
    a(f"v_add_u32 v215, {2*RING+1024}, v212")
    a(f"v_lshl_add_u32 v2, v{V_G}, 2, v2")
    a(f"v_lshl_add_u32 v5, v7, 3, s{S_RING}")
    a("v_and_b32 v6, 7, v2")
    a("v_lshl_add_u32 v5, v2, 8, v5")
    a("v_lshl_or_b32 v5, v6, 5, v5")
    a(f"v_xor_b32 v{VA(0)}, s41, v5")
    for j in range(1, 8): a(f"v_xor_b32 v{VA(j)}, {32*j}, v{VA(0)}")
    a("v_lshlrev_b32 v3, 8, v3")
    a(f"v_lshl_add_u32 v3, v{V_G}, 4, v3")
    a(f"s_lshl_b32 s44, s{S_W}, 6")
    a("s_add_u32 s44, s44, s42")
    a("s_mul_i32 s43, s37, 3")
    a("s_add_u32 s44, s44, s43")
    a(f"v_add_u32 v{V_ROW(1)}, s44, v3")
    a(f"v_mov_b32 v3, {OOB}")
    a(f"v_cmp_lt_u32 vcc, 7, v{V_Q}")
    a(f"v_add_u32 v{V_ROW(2)}, s37, v{V_ROW(1)}")
    a(f"v_subrev_u32 v{V_ROW(0)}, s37, v{V_ROW(1)}")
    a(f"v_cndmask_b32 v{V_ROW(0)}, v3, v{V_ROW(0)}, vcc")
    a(f"v_sub_u32 v2, 9, v{V_Q}")
    a(f"s_cmp_eq_u32 s{S_SPLIT}, 1")
    a("s_cselect_b64 vcc, -1, 0")
    a("s_mul_i32 s44, s39, 10")
    a(f"v_cndmask_b32 v5, v2, v{V_Q}, vcc")
    a(f"v_cmp_gt_u32 vcc, 10, v{V_Q}")
    a("v_add_lshl_u32 v2, v5, s44, 1")
    a("v_sub_u32 v5, 15, v5")
    a("v_lshlrev_b32 v5, v5, 1")
    a(f"v_cndmask_b32 v{V_DEG}, v3, v2, vcc")
    a(f"v_cndmask_b32 v{V_HOT}, 0, v5, vcc")
    a(f"v_lshlrev_b32 v{V_L4}, 2, v0")
    a("s_lshl_b32 s39, s39, 5")
    a(f"s_add_u32 s39, s39, {TAB_OFF}")
    a(f"v_add_u32 v{V_RED}, s{S_RING}, v{VOFF0}")
    a(f"v_add_u32 v6, {2*RING}, v{VOFF0}")
    a(f"s_lshl_b32 s44, s{S_W}, 2")
    a(f"v_add_u32 v5, {OFR}, v{VOFF0}")
    a("v_add_u32 v2, s44, v5")
    def flag_addr(dst, r, tail):
        a(f"s_mul_i32 s41, {r}, 156")
        a("s_mul_i32 s41, s41, 52429")
        a("s_lshr_b32 s41, s41, 18")
        a(f"v_add_u32 v{dst}, s41, v0")
        a(f"v_min_u32 v{dst}, 249, v{dst}")
        a("v_cmp_gt_u32 vcc, 33, v0")
        emit(tail)
        a(f"v_cndmask_b32 v{dst}, v7, v{dst}, vcc")
        a(f"v_lshlrev_b32 v{dst}, 7, v{dst}")
    flag_addr(216, f"s{S_KEY}", ["v_mov_b32 v7, 249", "s_nop 0"])
    a(f"s_xor_b32 s44, s{S_KEY}, 4")
    flag_addr(V_TAB, "s44", ["v_and_b32 v7, 7, v0", "v_min_u32 v7, 5, v7", "v_add_u32 v7, 250, v7"])
    a(f"s_lshl_b32 s57, s{S_TILE}, 1")
    a(f"s_add_u32 s57, s57, s{S_SPLIT}")
    a("s_lshl_b32 s57, s57, 7")
    a(f"s_lshl_b32 s44, s{S_W}, 2")
    a("s_add_u32 s57, s57, s44")
    a(f"s_add_u32 s57, s57, {FLH_OFF}")
    a(f"s_mov_b32 s58, {FLH_OFF}")
    a(f"s_sub_u32 s35, s{S_LIST}, s{S_RING}")
    for i in range(12): a(f"v_add_u32 v{LA+i}, s35, v{KA(0)+i}")
    a(f"v_cmp_eq_u32 vcc, 0, v{V_Q}")
    a(f"s_mov_b32 s41, {f32(1.0/128)}")
    a(f"v_mov_b32 v217, {f32(1e-5)}")
    a("v_mov_b32 v221, 0x3f80")
    a("v_mov_b32 v31, 0xffff")
    a("v_cndmask_b32 v31, 0, v31, vcc")
    a("s_mov_b32 s43, 0xffff0000")
    a(f"s_cmp_lt_u32 s{S_W}, 2")
    a(f"s_cselect_b32 s44, s{SO(2)}, 0x7ff00000")
    if WQL: w_dma(0)
    if WK == 0: w_dma(1)
    X = lambda i, k: 64 + 8 * i + k
    A_, B_ = (lambda i: 136 + 2 * i), (lambda i: 146 + 2 * i)
    p2 = lambda r: vr(r, 2)
    def layernorm(I, own):
        for i in I:
            a(f"@wait vm x{i}")
            for c in range(4):
                a(f"v_lshlrev_b32 v{X(i,2*c)}, 16, v{W(i)+c}")
                a(f"v_and_b32 v{X(i,2*c+1)}, s43, v{W(i)+c}")
        if own: stamp()
        for i in I: a(f"v_pk_add_f32 {p2(A_(i))}, {p2(X(i,0))}, {p2(X(i,2))}")
        for i in I: a(f"v_pk_add_f32 {p2(B_(i))}, {p2(X(i,4))}, {p2(X(i,6))}")
        for i in I: a(f"v_pk_add_f32 {p2(A_(i))}, {p2(A_(i))}, {p2(B_(i))}")
        for i in I: a(f"v_add_f32 v{A_(i)}, v{A_(i)}, v{A_(i)+1}")
        row_sum(a, [A_(i) for i in I])
        for i in I: a(f"v_mul_f32 v{A_(i)}, s41, v{A_(i)}")
        for k in range(0, 8, 2):
            for i in I: a(f"v_pk_add_f32 {p2(X(i,k))}, {p2(X(i,k))}, {p2(A_(i))} op_sel_hi:[1,0] neg_lo:[0,1] neg_hi:[0,1]")
        for i in I: a(f"v_pk_mul_f32 {p2(B_(i))}, {p2(X(i,0))}, {p2(X(i,0))}")
        for k in range(2, 8, 2):
            for i in I: a(f"v_pk_fma_f32 {p2(B_(i))}, {p2(X(i,k))}, {p2(X(i,k))}, {p2(B_(i))}")
        for i in I: a(f"v_add_f32 v{B_(i)}, v{B_(i)}, v{B_(i)+1}")
        row_sum(a, [B_(i) for i in I])
        for i in I: a(f"v_fma_f32 v{B_(i)}, v{B_(i)}, s41, v217")
        for i in I: a(f"v_rsq_f32 v{B_(i)}, v{B_(i)}")
        for k in range(0, 8, 2):
            for i in I: a(f"v_pk_mul_f32 {p2(X(i,k))}, {p2(X(i,k))}, {p2(B_(i))} op_sel_hi:[1,0]")
        for i in I:
            a(f"s_add_u32 s42, s{SO(i)}, {SPARE}")
            a(f"v_add_u32 v{B_(i)}, s42, v4")
            for c in range(4): a(f"v_cvt_pk_bf16_f32 v{W(i)+c}, v{X(i,2*c)}, v{X(i,2*c+1)}")
            if own:
                a(f"v_bfi_b32 v{X(i,0)}, v31, v221, v{W(i)}")
                for c in range(1, 4): a(f"v_mov_b32 v{X(i,c)}, v{W(i)+c}")
                a(f"s_add_u32 s42, s36, s{SO(i) if i < 2 else 44}")
                a(f"buffer_store_dwordx4 {vr(X(i,0),4)}, v4, s[8:11], s42 offen sc1 ; #hp")
        for i in I: a(f"ds_write_b128 v{B_(i)}, {vr(W(i),4)}")
    layernorm(range(3), True)
    stamp()
    a("@wait vm w0")
    a("s_barrier")
    WQ = lambda hf, ks: 32 + (hf * 4 + ks) * 4
    for hf in range(2):
        for ks in range(4):
            for hh in range(2): a(f"ds_read_b64_tr_b16 {ar(WQ(hf,ks)+2*hh,2)}, v{212 + 2*(ks//2) + hh} offset:{(ks%2)*RING + 8*hf}")
    if WK == 1: w_dma(1)
    layernorm(range(3, 5), False)
    stamp()
    a("s_waitcnt lgkmcnt(0)")
    a(f"s_add_u32 s{S_TAG}, s{S_TAG}, 0x9e3779b1")
    publish = [f"v_mov_b32 v7, s{S_TAG}", "@wait vm hp",
               "buffer_store_dword v7, off, s[12:15], s57 sc1"]
    if PUB < 0: emit(publish)
    stamp()
    a("s_barrier")
    stamp()

    def dma(slot, piece, last=7):
        out = []
        half, sub = piece // 4, piece % 4
        if sub == 0: out.append(f"s_add_u32 m0, s{S_RING}, {slot*8192 + half*4096}")
        out.append(f"buffer_load_dwordx4 v{VOFF0+half}, s[8:11], s{S_KOFF} offen offset:{sub*1024}{PL} lds")
        if piece == last: out.append(f"s_add_u32 s{S_KOFF}, s{S_KOFF}, 8192")
        return out
    tagged = lambda grp, tag: [x + f" ; #{tag}" if x.startswith("buffer_") else x for x in grp]
    HB = lambda qb, ks: 32 + (qb * 4 + ks) * 4
    MA = lambda hf, ks: 112 + (hf * 4 + ks) * 4
    QD = lambda qb, hf: 144 + (qb * 2 + hf) * 4
    def ready(regs, addr, tag, wait):
        a(wait)
        a("s_mov_b32 s49, 0x40000")
        a.label(f"L2_rdy_{tag}")
        for i in range(4): a(f"v_xor_b32 v{regs+i}, s{S_TAG}, v{regs+i}")
        a(f"v_or3_b32 v{regs}, v{regs}, v{regs+1}, v{regs+2}")
        a(f"v_or_b32 v{regs}, v{regs}, v{regs+3}")
        a(f"v_cmp_ne_u32 vcc, 0, v{regs}")
        a("s_sub_u32 s49, s49, 1")
        a("s_cselect_b64 vcc, 0, vcc")
        a(f"s_cbranch_vccz L2_go_{tag}")
        a(f"buffer_load_dwordx4 {vr(regs,4)}, v{addr}, s[12:15], s58 offen{PL} ; #offpath")
        a("s_waitcnt vmcnt(0)")
        a(f"s_branch L2_rdy_{tag}")
        a.label(f"L2_go_{tag}")
    def pack_gaps(mf, mems, vals, vstart=1):
        cost = lambda x: 0 if x.startswith(("s_", "@")) else 8 if x.startswith(("buffer_", "ds_write_b128")) else 4
        for n, m in enumerate(mf):
            a(m)
            room = 8
            while mems and sum(map(cost, mems[0])) <= room and not (mems[0][-1].startswith("ds_write") and vals):
                room -= sum(map(cost, mems[0])); emit(mems.pop(0))
            while vals and room >= 4 and n >= vstart:
                a(vals.pop(0)); room -= 4
        emit(vals)
        for g in mems: emit(g)
    def gemm(blocks, reads, post, extra):
        for qb in range(5):
            x = extra.get(qb, [])
            if callable(x): x = x()
            rd = reads(qb + 2) if qb + 2 < 5 else []
            po = post(qb - 1) if qb else []
            a(f"@wait lg hb{qb}")
            pack_gaps(blocks(qb), [[y] for y in rd if y.startswith("ds_")] + x + [[y] for y in po if y.startswith("ds_")],
                      [y for y in rd + po if y.startswith("v_")], 2)
        x = extra.get(5, [])
        for g in (x() if callable(x) else x): emit(g)
        if not callable(x): emit(post(4))
        a("s_waitcnt lgkmcnt(0)")
        a("s_barrier")
    def chain(d, A, qb): return [f"{MF} {vr(d,4)}, {ar(A(ks),4)}, {vr(HB(qb,ks),4)}, {'0' if ks==0 else vr(d,4)}" for ks in range(4)]
    def reads1(qb):
        return [f"ds_read_b128 {vr(HB(qb,ks),4)}, v{232+ks} ; #hb{qb}" for ks in range(4)] + ([f"v_add_u32 v{232+ks}, s37, v{232+ks}" for ks in range(4)] if qb < 4 else [])
    def post1(qb):
        return [f"v_cvt_pk_bf16_f32 v{QD(qb,0)+c}, v{QD(qb,0)+2*c}, v{QD(qb,0)+2*c+1}" for c in range(4)] + [f"ds_write_b128 v{V_RED}, {vr(QD(qb,0),4)} offset:{16384 + qb*1024}"]
    wk_reads = [f"ds_read_b128 {ar((hf*4+ks)*4,4)}, v{204 + 4*hf + ks}" for hf in range(2) for ks in range(4)]
    flag1 = f"buffer_load_dwordx4 v[236:239], v216, s[12:15], s58 offen{PL} ; #flag1"
    xl = [f"buffer_load_dwordx4 {vr(XR(b),4)}, v{V_ROW(b)}, s[16:19], 0 offen" for b in range(3)] + [f"buffer_load_ushort v{V_DEG}, v{V_DEG}, s[24:27], 0 offen"]
    emit(reads1(0) + reads1(1))
    gemm(lambda qb: chain(QD(qb, 0), lambda ks: WQ(0, ks), qb) + chain(QD(qb, 1), lambda ks: WQ(1, ks), qb), reads1, post1,
         {**({0: [publish] + w_groups(1)[:3], 1: w_groups(1)[3:5], 2: w_groups(1)[5:], 5: [["@wait vm w1"] + wk_reads]} if WK == 2 else
             {PUB: [publish], 3: [[y] for y in xl], 4: [["@wait vm w1", wk_reads[0]]] + [[y] for y in wk_reads[1:]]})})
    stamp()
    Z = lambda qb: 184 + 4 * qb
    def reads2(qb): return [f"ds_read_b128 {vr(HB(qb,ks),4)}, v{VOFF0 if ks<2 else 6} offset:{(ks%2)*RING + 16384 + qb*1024} ; #hb{qb}" for ks in range(4)]
    def post2(qb):
        q = QD(qb, 0); z = Z(qb)
        po = [f"v_mul_f32 v{z}, s44, v{z}", f"v_mul_f32 v{z+1}, v{q}, v{q}", f"v_mul_f32 v{z+2}, v{q+1}, v{q+1}"]
        for i in range(2, 8): po.append(f"v_fmac_f32 v{z+1+i%2}, v{q+i}, v{q+i}")
        po += [f"v_fma_f32 v{q+i}, v{q+i}, s41, v{z}" for i in range(8)]
        po += [f"v_add_f32 v{z+1}, v{z+1}, v{z+2}"] + [f"v_cvt_pk_bf16_f32 v{q+c}, v{q+2*c}, v{q+2*c+1}" for c in range(4)]
        po += [f"v_max_f32 v{Z(0)+1}, v{Z(0)+1}, v{z+1}"] if qb else []
        po += [f"ds_write_b128 v{V_RED}, {vr(q,4)} offset:{24576 + qb*1024}"]
        if qb == 4: po += [f"ds_write_b32 v2, v{Z(0)+1}"]
        return po
    tl = [tagged(dma(pc // 8, pc % 8), f"t{pc//8}") for pc in range(24)]
    def first_tile():
        stamp()
        a("@wait vm flag1")
        for i in range(4): a(f"v_xor_b32 v{240+i}, s{S_TAG}, v{236+i}")
        a("v_or3_b32 v240, v240, v241, v242")
        a("v_or_b32 v240, v240, v243")
        a("v_cmp_ne_u32 vcc, 0, v240")
        a(f"s_mov_b32 s{S_CNT}, 0")
        a("s_nop 3")
        a("s_cbranch_vccz L2_isready")
        emit(post2(4))
        a("s_branch L2_posted")
        a.label("L2_isready")
        a(f"s_mov_b32 s{S_CNT}, 1")
        weave(post2(4), tl[:8])
        a.label("L2_posted")
        stamp()
        return []
    a(f"v_lshlrev_b32 v7, 4, v{V_G}")
    for ks in range(4): a(f"ds_read_b128 {ar(64+4*ks,4)}, v7 offset:{8192 + 64*ks}")
    emit(reads2(0) + reads2(1) + [f"s_mov_b32 s41, {f32(QSCALE)}", f"s_mov_b32 s44, {f32(-QSCALE)}"])
    gemm(lambda qb: chain(Z(qb), lambda ks: 64 + 4 * ks, qb) + chain(QD(qb, 0), lambda ks: 4 * ks, qb) + chain(QD(qb, 1), lambda ks: 16 + 4 * ks, qb),
         reads2, post2, {POLL: [[flag1]], RDY: first_tile})
    stamp()

    def kread(par, slot, j):
        kb, ks = j // 4, j % 4
        return f"ds_read_b128 {vr(KF(par,kb,ks),4)}, v{KA(ks)} offset:{slot*8192 + kb*4096}"
    def vread(par, slot, j):
        db, hf = j // 2, j % 2
        return f"ds_read_b64_tr_b16 {vr(VF(par,db)+2*hf,2)}, v{VA(db)} offset:{slot*8192 + hf*4096}"
    def qk(spar, kpar, qb, j, slow):
        kb, ks = j // 4, j % 4
        c = (vr(CM(qb), 4) if slow else "0") if ks == 0 else vr(S(spar, kb), 4)
        return f"{MF} {vr(S(spar,kb),4)}, {vr(KF(kpar,kb,ks),4)}, {ar(Q(qb,ks),4)}, {c}"
    def pv(n, vpar, qb, j, first=False):
        return f"{MF} {ar(O(j,qb),4)}, {vr(VF(vpar,j),4)}, {vr(P(n),4)}, {'0' if first else ar(O(j,qb),4)}"
    def qread(qb): return [f"ds_read_b128 {ar(Q(qb,ks),4)}, v{VOFF0 if ks<2 else 6} offset:{(ks%2)*RING + 24576 + qb*1024}" for ks in range(4)]
    a(f"ds_read_b128 v[188:191], v5 ; #nq")
    for qb in range(5): emit([x + " ; #q" for x in qread(qb)])
    a(f"s_cmp_eq_u32 s{S_CNT}, 1")
    a("s_cbranch_scc1 L2_fired")
    a(flag1.replace("#flag1", "#offpath"))
    ready(236, 216, "a", "s_waitcnt vmcnt(0)")
    for g in tl[:8]: emit([x.replace("#t0", "#offpath") for x in g])
    a.label("L2_fired")
    for g in tl[8:12]: emit(g)
    a("@wait lg nq")
    emit(["v_add_f32 v188, v188, v189", "v_add_f32 v190, v190, v191", "v_add_f32 v188, v188, v190", "v_mov_b32 v189, v188"])
    emit(tl[12])
    emit(["v_permlane32_swap_b32 v188, v189", "v_add_f32 v188, v188, v189", "v_mov_b32 v189, v188"])
    emit(tl[13])
    emit(["v_permlane16_swap_b32 v188, v189", "v_add_f32 v188, v188, v189", f"v_mov_b32 v189, {f32(NORM2_MAX / QSCALE**2)}", "v_cmp_nle_f32 vcc, v188, v189"])
    emit(tl[14] + tl[15])
    a("@wait vm t0")
    stamp()
    for j in range(8): a(kread(0, 0, j) + f" ; #k0{j//4}")
    vl = [vread(0, 0, j) + " ; #v0" for j in range(16)]
    emit(vl[:4])
    a("@wait lg q")
    a("s_barrier")
    a(f"s_mov_b32 s{S_CNT}, 8")
    for j in range(8):
        if j % 4 == 0: a(f"@wait lg k0{j//4}")
        a(qk(0, 0, 0, j, False))
        emit(tl[16 + j])
        if j < 6: emit(vl[4+2*j:6+2*j])
    a("s_cbranch_vccnz L2_slow")

    V_R4, V_AD, V_OH, S_MASK = 216, 254, 255, 7
    def red_write(s, qb, h): return f"ds_write_b128 v{V_RED if qb < 4 else V_R4}, {ar(O(2*s+h,qb),4)} offset:{red_off(s,qb,h)}"
    def gather(k, regs, slot):
        g = [[f"s_add_u32 m0, s{S_RING}, {slot*8192 + i*1024}",
              f"v_bitop3_b32 v{regs+i}, v{regs+i}, v{9 + i%2}, s{S_MASK} bitop3:0x28",
              f"buffer_load_dwordx4 v{regs+i}, s[52:55], 0 offen{PL} lds ; #b{k}"] for i in range(8)]
        g[0] = [f"s_cmp_gt_u32 s{S_NB}, {k}", f"s_cselect_b32 s54, {N*256}, 0"] + g[0]
        return g
    S_T = lambda p: 60 + p if p < 4 else 46 + p
    S_P = lambda p: 41 + p if p < 4 else 44 + p
    def seg_scalars(first):
        out = []
        for p in range(NPROD):
            if first:
                out += [f"s_and_b32 s{S_S(p)}, s{S_C(p)}, 0xffff", f"s_lshr_b32 s{S_C(p)}, s{S_C(p)}, 16"]
                out += [f"s_lshl2_add_u32 s{S_S(p)}, s{S_S(p)}, {SEG_OFF + p*EPP*4}"]
            out += [f"s_min_u32 s{S_T(p)}, s{S_C(p)}, 64"]
            out += [f"s_mov_b32 s{S_NB}, s{S_T(0)}"] if p == 0 else []
            if p: out += [f"s_lshl_b32 s{S_P(p)}, s{S_NB}, 2", f"s_add_u32 s{S_NB}, s{S_NB}, s{S_T(p)}"]
        return out
    def seg_load(p):
        return [f"v_sub_u32 v{U+p}, v{U+6}, s{S_T(p)} clamp", f"v_lshl_add_u32 v{ENT(8+p)}, v{U+p}, 26, v{V_L4}",
                f"buffer_load_dword v{ENT(p)}, v{ENT(8+p)}, s[12:15], s{S_S(p)} offen{PL} ; #ent"]
    def seg_store(p):
        return [f"v_lshl_add_u32 v{U+p}, v{U+p}, 18, v{U+7}"] + ([f"v_add_u32 v{U+p}, s{S_P(p)}, v{U+p}"] if p else []) + [f"ds_write_b32 v{U+p}, v{ENT(p)}"]
    NU = 5 * NSTEP
    def unit(n): return (0, n) if n < 5 else (1 + 2 * ((n - 5) // 10) + (n - 5) % 2, ((n - 5) % 10) // 2)
    def phase_mfmas(n, slow):
        qks = [None] * 8
        if n + 1 < NU:
            t1, q1 = unit(n + 1)
            qks = [qk((n + 1) % 2, t1 % 2, q1, j, slow) for j in range(8)]
        pvs = [None] * 8
        if 1 <= n <= 5: pvs = [pv(n - 1, 0, n - 1, j, True) for j in range(8)]
        elif n >= 7:
            h = (n - 7) % 2; n0 = n - 2 - h
            pvs = [pv(n0 + k, 1 - k, unit(n0)[1], 4 * h + jj) for jj in range(4) for k in range(2)]
        return qks[:4] + pvs[:4] + qks[4:] + pvs[4:]
    class Block:
        def __init__(b, n0, nph):
            b.n0, b.nph, b.len = n0, nph, 16 * nph
            b.sc = [[] for _ in range(b.len + 1)]; b.mem = [[] for _ in range(b.len)]; b.val = [[] for _ in range(b.len)]
            b.used = [8 if G % 2 == 0 else (4 if G % 4 == 3 else 0) for G in range(b.len)]
            b.hook = {}
        def cost(b, x): return 8 if x.startswith(("buffer_", "v_exp", "ds_write_b128")) else 4
        def put(b, G, x):
            (b.val if x.startswith("v_") else b.mem)[G].append(x); b.used[G] += b.cost(x)
        def place(b, items, G, sep=0, room=8, only=None):
            prev = None
            for x in items:
                grp = x if isinstance(x, list) else [x]
                y = next(z for z in grp if not z.startswith("s_"))
                if prev is not None: G += sep if sep else (1 if prev.startswith("v_") and not y.startswith("v_") else 0)
                while G % 2 == 0 or b.used[G] + b.cost(y) > room or (only and G % 4 != only): G += 1
                b.put(G, y)
                k = grp.index(y)
                b.sc[G - 1] += grp[:k]; b.sc[G + 1] += grp[k + 1:]
                prev = y
            return G
        def emit(b, slow):
            for p in range(b.nph):
                n = b.n0 + p
                mf = phase_mfmas(n, slow)
                if n < NU:
                    for e in range(8): b.val[16*p + 2*e].append(f"v_exp_f32 v{S(n%2,e//4)+e%4}, v{S(n%2,e//4)+e%4}")
                    for c in range(4): b.val[16*p + 4*c + 3].append(f"v_cvt_pk_bf16_f32 v{P(n)+c}, v{S(n%2,c//2)+2*(c%2)}, v{S(n%2,c//2)+2*(c%2)+1}")
                for i in range(16):
                    G = 16 * p + i
                    if mf[i]: a(mf[i])
                    emit(b.sc[G] + b.mem[G] + b.val[G])
                if p in b.hook: b.hook[p]()
            emit(b.sc[b.len])
    tg = lambda grp, tag: [x + f" ; #{tag}" if x.startswith("buffer_") else x for x in grp]
    kr = lambda t: [kread(t % 2, t % 4, j) + f" ; #k{t%2}{'ab'[j//4]}" for j in range(8)]
    def single(slow):
        b = Block(0, 5)
        b.sc[0].append("@wait vm t1")
        b.place(kr(1), 1)
        b.sc[14].append("@wait lg v0")
        b.place([vread(1, 1, j) + " ; #v1" for j in range(16)], 13, only=3)
        b.place([tg(dma(3, pc), "p1") for pc in range(8)] + [tg(dma(0, pc), "p1") for pc in range(4)], 17, 4)
        b.sc[62] += ["@wait lg k1b", "@wait vm t2"]
        b.place(kr(2), 65, only=1)
        b.sc[80].append("@wait lg k0a")
        b.emit(slow)
    def am_load(m): return [f"buffer_load_dwordx4 {ar(AM(m,hf,ks),4)}, v{VOFF0+hf}, s[12:15], s{(S_AM,6)[m]} offen offset:{ks*1024}{PL}" for hf in range(2) for ks in range(4)]
    ND = (NSTEP - 1) // 2
    def double(D, slow, tag):
        last = D == ND - 1
        tA, tB = 1 + 2 * D, 2 + 2 * D
        b = Block(5 + 10 * D, 10)
        b.sc[6].append("@wait lg k0b")
        lo = (lambda j: (7, 15)[j // 4]) if D == 0 else (lambda j: 7 + 8 * (j // 2))
        G = 7
        for j in range(8):
            for t in ((tB,) if D == 0 else (tA, tB)):
                for hf in range(2): G = b.place([vread(t % 2, t % 4, 2 * j + hf) + f" ; #vv{j//2}"], max(G, lo(j)))
        for k in range(4): b.sc[34 + 8 * k].append(f"@wait lg vv{k}")
        if D == 0:
            b.place([tg(dma(0, pc), "p1") for pc in range(4, 8)], 33, only=1)
        if D + 2 < ND:
            b.place([tg(dma((tA + pc // 8) % 4, pc % 8), f"p{D%2}") for pc in range(16)], 61, 4)
        if not last:
            b.sc[116].append(f"@wait vm p{(D+1)%2}")
            b.place(kr(tA + 2)[:4], 119, only=3)
            b.place(kr(tA + 2)[4:], 129)
            b.sc[142].append("@wait lg k1a")
            b.sc[150].append("@wait lg k1b")
            G = b.place(kr(tB + 2)[:4], 135, only=3)
            b.place(kr(tB + 2)[4:], 145)
            b.sc[158].append("@wait lg k0a")
        if D == 0:
            b.sc[48] += [f"s_mov_b32 s35, {8*NSTEP*8192}", f"s_mov_b32 m0, s{S_LIST}"]
            b.place([f"buffer_load_dwordx4 v{VOFF0}, s[8:11], s35 offen offset:{pc*1024}{PL} lds ; #left" for pc in range(4)], 49, room=12)
            b.sc[82].append("@wait vm left")
            rl = [f"ds_read_b128 {vr(LK(ks),4)}, v{LA+ks} ; #lk" for ks in range(4)] + [f"ds_read_b64_tr_b16 {ar(LV(j),2)}, v{LA+4+j} ; #lv" for j in range(8)]
            b.place(rl[:9], 83, only=3)
            b.place(rl[9:], 125)
            b.hook[6] = lambda: variants(f"L2_lq{tag}", lambda r: [f"{MF} {vr(LS if not slow else 240,4)}, {vr(LK(ks),4)}, {ar(Q(r,ks),4)}, {(vr(CM(r),4) if slow else '0') if ks==0 else vr(LS if not slow else 240,4)}" for ks in range(4)], ["@wait lg lk"])
            ls = LS if not slow else 240
            b.place([f"v_exp_f32 v{ls+e}, v{ls+e}" for e in range(4)] + [f"v_cvt_pk_bf16_f32 v{ls+c}, v{ls+2*c}, v{ls+2*c+1}" for c in range(2)], 137, room=16, only=1)
            b.hook[9] = lambda: variants(f"L2_lv{tag}", lambda r: [f"{MF16} {ar(O(j,r),4)}, {ar(LV(j),2)}, {vr(ls,2)}, {ar(O(j,r),4)}" for j in range(8)], ["@wait lg lv"])
        if D == 2:
            b.put(53, f"buffer_load_dwordx4 v[240:243], v{V_TAB}, s[12:15], s58 offen{PL} ; #flag2")
            b.sc[154].append(f"s_sub_u32 s{S_CNT}, s{S_CNT}, 1")
            b.sc[156].append(f"s_cmp_lg_u32 s{S_CNT}, 0")
        if D == ND - 2:
            b.put(1, f"buffer_load_dword v{V_TAB}, v{V_L4}, s[12:15], s39 offen{PL} ; #tab")
            b.place([f"v_add_u32 v{U+6}, 1, v0", f"v_add_u32 v{U+7}, s{S_LIST}, v{V_L4}"], 5)
            b.sc[56].append("@wait vm tab")
            G = b.place([f"v_readlane_b32 s{S_C(p)}, v{V_TAB}, {p}" for p in range(NPROD)], 57)
            for k, x in enumerate(seg_scalars(True)): b.sc[64 + 2 * (k // 2) + 2 * (k // 6)].append(x)
            for p in range(NPROD): G = b.place(seg_load(p), max(G, 73 + 8 * p))
            b.place([f"v_lshl_add_u32 v{U+8}, s{S_NB}, 2, v{U+7}", f"v_mov_b32 v{U+9}, 0x7fffff0f", f"ds_write_b32 v{U+8}, v{U+9}"], 125)
            b.sc[128] += [f"s_add_u32 s6, s{S_AM}, {MM_OFF-MV_OFF}"]
            b.sc[130] += [f"s_mov_b32 s{S_MASK}, 0xfffffff0"]
            b.sc[132] += ["s_mov_b32 s52, s8"]
            b.sc[134] += ["s_mov_b32 s53, s9"]
            b.sc[136] += ["s_mov_b32 s55, 0x00020000"]
        if last:
            cst = [f"v_lshrrev_b32 v9, 1, v{V_Q}", f"v_and_b32 v10, 1, v{V_Q}", f"v_xor_b32 v9, v9, v{V_G}", "v_lshlrev_b32 v10, 4, v10",
                   "v_lshl_or_b32 v9, v9, 5, v10", f"v_lshl_add_u32 v{V_AD}, v{V_G}, 5, s{S_LIST}", "v_xor_b32 v10, 0x80, v9"]
            b.place(cst[:4], 1)
            b.sc[48].append("@wait vm ent")
            G = 49
            for p in range(NPROD): G = b.place(seg_store(p), G, room=12)
            b.place(cst[4:], 49, room=12)
            G = b.place([f"ds_read_b128 v[192:195], v{V_AD} ; #ga", f"ds_read_b128 v[196:199], v{V_AD} offset:16 ; #ga"], G + 1, only=3)
            for qb in range(3):
                b.place([red_write(s, qb, h) + " ; #send" for s in range(1, 4) for h in range(2)], 69 + 32 * qb - 4 * (qb // 2), 4, room=12)
            b.sc[G + 5].append("@wait lg ga")
            g0 = gather(0, 192, 0)
            Gv = b.place([x[-2] for x in g0], G + 6, only=3, room=12)
            b.place([[y for y in x if not y.startswith("v_")] for x in g0], Gv - 8, room=16, only=3, sep=4)
            b.place(am_load(0), 93, room=16, only=1, sep=4)
            b.place(am_load(1), 125, room=16, only=1, sep=4)
            b.place([f"v_xor_b32 v{2+s}, {s*RING}, v{V_RED}" for s in range(1, 4)] + [f"v_add_u32 v{V_R4}, s{S_LIST}, v{VOFF0}"], 143, room=12)
        b.emit(slow)

    def variants(tag, body, pre=()):
        emit(pre)
        a(f"s_cmp_ge_u32 s{S_LEFT}, 4")
        a(f"s_cbranch_scc1 {tag}_x")
        for r in range(3):
            a(f"s_cmp_eq_u32 s{S_LEFT}, {r}")
            a(f"s_cbranch_scc1 {tag}_{r}")
        for r in (3, 2, 1, 0):
            if r < 3: a.label(f"{tag}_{r}")
            emit(body(r))
            if r: a(f"s_branch {tag}_x")
        a.label(f"{tag}_x")
    def main_loop(slow):
        tag = "s" if slow else "f"
        if not slow: stamp()
        single(slow)
        double(0, slow, tag)
        a.raw(".p2align 6")
        a.label(f"L2_loop_{tag}")
        double(1, slow, tag)
        double(2, slow, tag)
        a(f"s_cbranch_scc1 L2_loop_{tag}")
        ready(240, V_TAB, "b" + tag, "@wait vm flag2")
        double(ND - 2, slow, tag)
        double(ND - 1, slow, tag)
        if not slow: a("s_branch L2_epi")
    main_loop(False)

    a.label("L2_slow")
    for k in range(4):
        a(f"v_add_u32 v216, {64*k}, v0")
        a("v_min_u32 v216, 249, v216")
        a("v_lshlrev_b32 v216, 7, v216")
        a(f"buffer_load_dwordx4 v[236:239], v216, s[12:15], s58 offen{PL}")
        ready(236, 216, f"c{k}", "s_waitcnt vmcnt(0)")
    a("s_waitcnt lgkmcnt(0)")
    for ks in range(4): a(f"v_subrev_u32 v{232+ks}, s{S_RING}, v{KA(ks)}")
    for qb in range(5): a(f"v_mov_b32 v{CM(qb)}, 0xff800000")
    a("s_mov_b32 s35, 0")
    a.label("L2_max")
    for ks in range(4): a(f"buffer_load_dwordx4 {vr(KF(1,0,ks),4)}, v{232+ks}, s[8:11], s35 offen{PL}")
    a("s_waitcnt vmcnt(0)")
    for qb in range(5):
        for ks in range(4): a(f"{MF} {vr(160+4*qb,4)}, {vr(KF(1,0,ks),4)}, {ar(Q(qb,ks),4)}, {'0' if ks==0 else vr(160+4*qb,4)}")
    for qb in range(5):
        a(f"v_max3_f32 v{CM(qb)}, v{CM(qb)}, v{160+4*qb}, v{161+4*qb}")
        a(f"v_max3_f32 v{CM(qb)}, v{CM(qb)}, v{162+4*qb}, v{163+4*qb}")
    a("s_add_u32 s35, s35, 4096")
    a(f"s_cmp_lt_u32 s35, {N*256}")
    a("s_cbranch_scc1 L2_max")
    for x in (16, 32):
        a(f"v_xor_b32 v2, {x}, v0")
        a("v_lshlrev_b32 v2, 2, v2")
        for qb in range(5): a(f"ds_bpermute_b32 v{CM(qb)+1}, v2, v{CM(qb)}")
        a("s_waitcnt lgkmcnt(0)")
        for qb in range(5): a(f"v_max_f32 v{CM(qb)}, v{CM(qb)}, v{CM(qb)+1}")
    for qb in range(5):
        a(f"v_sub_f32 v{CM(qb)}, 0, v{CM(qb)}")
        for r in range(1, 4): a(f"v_mov_b32 v{CM(qb)+r}, v{CM(qb)}")
    for j in range(8): a(qk(0, 0, 0, j, True))
    a("s_nop 7")
    main_loop(True)

    a.label("L2_epi")
    stamp()
    R = lambda qb: 32 + qb * 8
    T = lambda k: (72, 80, 88, 160, 168, 184, 192, 200, 208)[k]
    AG = lambda j: 96 + 4 * j
    GV = lambda j: 128 + 4 * j
    V_BA, TMP = 206, 210
    V_OW, V_OR, V_P0, V_P1 = 214, 215, 218, 219
    FLG, SEL = 232, 236
    PK = lambda b: 240 + 4 * b
    GA = lambda k, i: 160 + 8 * k + i
    OH = lambda i: 84 + i
    OB = 92
    BO = lambda b, ks: (b * 4 + ks) * 4
    BP = lambda b, ks: 48 + (b * 4 + ks) * 4
    FO = lambda b, hf: 32 + (b * 2 + hf) * 4
    LD = lambda b: 56 + 4 * b
    def acc_reads(qb): return [f"v_accvgpr_read_b32 v{R(qb)+4*h+r}, a{O(h,qb)+r}" for h in range(2) for r in range(4)]
    def pack(d, qb): return [f"v_cvt_pk_bf16_f32 v{d+c}, v{R(qb)+2*c}, v{R(qb)+2*c+1}" for c in range(4)]
    a("@wait lg send")
    a("s_barrier")
    stamp()
    def red_read(k, s, qb): return [f"ds_read_b128 {vr(T(k)+4*h,4)}, v{3+s if qb < 4 else 200+s} offset:{red_off(s+1,qb,h)} ; #r{k}" for h in range(2)]
    def red_add(k, qb): return [f"@wait lg r{k}"] + [f"v_pk_add_f32 {vr(R(qb)+i,2)}, {vr(R(qb)+i,2)}, {vr(T(k)+i,2)}" for i in range(0, 8, 2)]
    tail = [x for n in (NU, NU + 1) for x in phase_mfmas(n, False) if x]
    pack_gaps(tail, [red_read(3 * qb + s, s, qb) for qb in range(3) for s in range(3)], acc_reads(0) + acc_reads(1)[:6], 9)
    emit(acc_reads(1)[6:] + acc_reads(2))
    emit([f"s_mul_i32 s42, s{S_PART}, {XCH_WG}", f"s_mul_i32 s43, s{S_W}, 2560", f"s_add_u32 s43, s43, {XCH_OFF}",
          "s_add_u32 s42, s42, s43",
          f"s_mul_i32 s44, s2, {XCH_WG}", "s_add_u32 s43, s43, s44",
          f"v_sub_u32 v6, 23, v{V_Q}", "v_lshlrev_b32 v6, 6, v6", f"v_lshl_add_u32 v6, v{V_G}, 4, v6",
          f"v_cmp_gt_u32 vcc, 8, v{V_Q}", "v_subrev_u32 v7, 1024, v6", f"v_mov_b32 v31, {OOB}", "v_cndmask_b32 v7, v31, v7, vcc"])
    SK = lambda qb: 240 + 4 * qb
    wr = [red_write(s, qb, h) for qb in (3, 4) for s in range(1, 4) for h in range(2)]
    for qb in range(3):
        for s in range(3):
            emit(red_add(3 * qb + s, qb))
            a(wr.pop(0))
        emit(pack(SK(qb), qb))
        a(wr.pop(0))
        va, off = (7, 0) if qb == 2 else (6, (1 - qb) * 1024)
        a(f"buffer_store_dwordx4 {vr(SK(qb),4)}, v{va}, s[12:15], s42 offen offset:{off} sc1 ; #xst")
    a("s_waitcnt lgkmcnt(0)")
    a("s_barrier")
    stamp()
    def list_done():
        a(f"s_add_u32 s{S_NB}, s{S_NB}, 31")
        a(f"s_lshr_b32 s{S_NB}, s{S_NB}, 5")
        a(f"v_lshl_add_u32 v{V_AD}, v{V_G}, 5, s{S_LIST}")
        a(f"v_lshl_add_u32 v{V_OH}, v{V_G}, 2, s{S_LIST}")
    def addr_reads(k, off):
        return [f"ds_read_b128 {vr(GA(k,0),4)}, v{V_AD} offset:{off}", f"ds_read_b128 {vr(GA(k,4),4)}, v{V_AD} offset:{off+16}"]
    def fire(k, regs, slot): return gather(k, GA(regs, 0), slot)
    GW = lambda p, j: 96 + 32 * p + 4 * j
    OBP = lambda p: (92, 80)[p]
    def loads(k, slot, p, extra=()):
        m = [f"ds_read2_b32 {vr(OH(2*c),2)}, v{V_OH} offset0:{32*k + 16*(c%2) + 4*(c//2)} offset1:{32*k + 16*(c%2) + 4*(c//2) + 8}" for c in range(4)]
        m += list(extra)
        for j in range(16):
            m.append(f"ds_read_b64_tr_b16 {ar(GW(p,j//2)+2*(j%2),2)}, v{VA(j//2)} offset:{slot*8192 + (j%2)*4096}")
            if j == 7: m.append("s_waitcnt lgkmcnt(8)")
            if 8 <= j < 12:
                c = j - 8; o = OBP(p) + c
                m += [f"v_lshlrev_b32 v{o}, v{OH(2*c)}, v{V_HOT}", f"v_lshl_or_b32 v{o}, v11, v{OH(2*c+1)}, v{o}",
                      f"v_pk_ashrrev_i16 v{o}, 15, v{o} op_sel_hi:[0,1]", f"v_and_b32 v{o}, v{V_DEG}, v{o}"]
        return m
    def mults(p, first=False): return [f"{MF} {vr(AG(j),4)}, {ar(GW(p,j),4)}, {vr(OBP(p),4)}, {'0' if first else vr(AG(j),4)}" for j in range(8)]
    def stage(k, slot_next, groups=(), extra=()):
        a("s_waitcnt lgkmcnt(0)")
        mm = mults(k % 2, k == 0)
        emit(mm[:2] + sum(list(groups[:2]), []))
        a(f"@wait vm b{k+1}")
        ld = loads(k + 1, slot_next, (k + 1) % 2, extra)
        main = []
        for x, ins in enumerate(ld):
            main.append(ins)
            if x % 4 == 1 and len(mm) > 2: main.append(mm.pop(2))
        assert len(mm) == 2
        weave(main, list(groups[2:]))
    list_done()
    for k in range(2): emit([x + " ; #ga" for x in addr_reads(k, (k + 1) * 128)])
    for s in range(1, 4): a(f"v_xor_b32 v{199+s}, {s*LIST_B}, v{V_R4}")
    T = lambda k: 96 + 8 * k
    for n, qb in enumerate((3, 4)):
        for s in range(3): emit(red_read(3 * n + s, s, qb))
    emit([f"v_lshlrev_b32 v11, 16, v{V_HOT}", f"v_lshl_or_b32 v{V_DEG}, v{V_DEG}, 16, v{V_DEG}"])
    a("@wait lg ga")
    own = acc_reads(3) + acc_reads(4)
    for n, qb in enumerate((3, 4)):
        for s in range(3): own += red_add(3 * n + s, qb)
    weave(own, fire(1, 0, 1))
    a("s_barrier")
    stamp()
    pre = [f"v_add_u32 v{V_OR}, {SPARE+2048}, v{VOFF0}"] + addr_reads(2, 3 * 128) + addr_reads(3, 4 * 128)
    pre += [f"v_cmp_eq_u32 vcc, 0, v{V_G}", f"v_mov_b32 v{SEL}, 0x3f80", f"v_mov_b32 v{SEL+1}, 0", f"v_mov_b32 v{SEL+2}, 0", f"v_mov_b32 v{SEL+3}, 0",
            f"v_cndmask_b32 v{SEL}, 0, v{SEL}, vcc",
            "s_lshl_b32 s57, s2, 7", f"s_lshl_b32 s50, s{S_W}, 2", f"s_add_u32 s50, s50, {FLX_OFF}", "s_add_u32 s57, s57, s50",
            f"s_lshl_b32 s51, s{S_PART}, 7", "s_add_u32 s51, s51, s50", "s_mov_b32 s49, 0x40000", f"v_mov_b32 v2, s{S_TAG}"]
    pre2 = []
    for b in range(3):
        t = TMP
        pre2 += [f"v_add_u32 v{t}, {16*b-8}, v{V_Q}"] + ([f"v_max_i32 v{t}, 0, v{t}"] if b == 0 else [])
        pre2 += [f"v_mul_u32_u24 v{t+1}, 26, v{t}", f"v_lshrrev_b32 v{t+1}, 8, v{t+1}",
                 f"v_mul_u32_u24 v{t+2}, 10, v{t+1}", f"v_sub_u32 v{t}, v{t}, v{t+2}",
                 f"v_lshl_add_u32 v{t}, v{V_G}, 4, v{t}", f"v_lshlrev_b32 v{t}, 4, v{t}",
                 f"v_lshl_add_u32 v{V_BA+b}, v{t+1}, 15, v{t}"]
    prep = [f"v_add_u32 v{V_P1}, 8, v{V_Q}", f"v_lshlrev_b32 v{V_P1}, 6, v{V_P1}", f"v_lshl_add_u32 v{V_P1}, v{V_G}, 4, v{V_P1}",
             f"v_cmp_lt_u32 vcc, 7, v{V_Q}", f"v_subrev_u32 v{V_P0}, 1024, v{V_P1}", "s_mov_b32 s58, 0xffff0000",
             f"v_cndmask_b32 v{V_P0}, v31, v{V_P0}, vcc"]
    for s in range(4):
        pre2 += [f"s_lshl_b32 s41, s{S_W}, 10", f"v_add_u32 v3, s41, v{V_RED}"] if s == 0 else [f"v_xor_b32 v{3+s}, {s*1024}, v3"]
    publish2 = ["@wait vm xst",
                "buffer_store_dword v2, off, s[12:15], s57 sc1"]
    flag = f"buffer_load_dword v{FLG}, off, s[12:15], s51 sc1"
    weave(pre, fire(2, 1, 2))
    emit(publish2)
    a("s_waitcnt lgkmcnt(0)")
    weave(loads(0, 0, 0, addr_reads(0, 5 * 128)), fire(3, 2, 3))
    stamp()
    FD = lambda b, hf: 160 + (b * 2 + hf) * 4
    PX = lambda b: 68 + 4 * b if False else (32, 36, 40)[b]
    xun = [[f"v_lshlrev_b32 v{FD(b,0)+2*c}, 16, v{XR(b)+c}", f"v_and_b32 v{FD(b,0)+2*c+1}, s58, v{XR(b)+c}"] for b in range(3) for c in range(4)]
    pl = [f"buffer_load_dwordx4 {vr(PX(b),4)}, v{V_P0 if b==0 else V_P1}, s[12:15], s43 offen offset:{(b//2)*1024} sc1 ; #p" for b in range(3)]
    def poll():
        a("@wait vm flag")
        a.label("L2_poll")
        a(f"v_readfirstlane_b32 s50, v{FLG}")
        a(f"s_cmp_eq_u32 s50, s{S_TAG}")
        a("s_cbranch_scc1 L2_got")
        a(flag + " ; #offpath")
        a("s_sub_u32 s49, s49, 1")
        a("s_waitcnt vmcnt(0)")
        a("s_cbranch_scc0 L2_poll")
        a.label("L2_got")
        emit(pl)
    merge = []
    for b in range(3):
        for c in range(4):
            merge += [[f"v_dot2_f32_bf16 v{R(2+b)+2*c}, v{PX(b)+c}, s41, v{R(2+b)+2*c}", f"v_dot2_f32_bf16 v{R(2+b)+2*c+1}, v{PX(b)+c}, 1.0, v{R(2+b)+2*c+1}"]]
        merge += [pack(PK(b), 2 + b) + [f"ds_write_b128 v{V_R4}, {vr(PK(b),4)} offset:{2048 + b*1024}"]]
    merge = [["s_mov_b32 s41, 0x3f80", "s_mov_b32 s42, 0x3f800000"]] + [[y.replace(", 1.0,", ", s42,") for y in x] for x in merge]
    stage(0, 1, fire(4, 3, 0))
    a(flag + " ; #flag")
    stage(1, 2, fire(5, 0, 1))
    emit(prep if P2 else prep + pre2)
    stamp()
    poll()
    stamp()
    stage(2, 3, [pre2[k:k+4] for k in range(0, len(pre2), 4)] if P2 else ())
    a(f"s_cmp_le_u32 s{S_NB}, 6")
    a("s_cbranch_scc1 L2_no7a")
    emit(addr_reads(3, 6 * 128))
    a("s_waitcnt lgkmcnt(0)")
    for g in fire(6, 3, 2): emit([x.replace("#b6", "#offpath") for x in g])
    a.label("L2_no7a")
    stage(3, 0, xun)
    stage(4, 1)
    a("s_waitcnt lgkmcnt(0)")
    emit(mults(1))
    a(f"s_cmp_le_u32 s{S_NB}, 6")
    a("s_cbranch_scc1 L2_aggdone")
    a("s_waitcnt vmcnt(0)")
    emit(loads(6, 2, 0))
    a("s_waitcnt lgkmcnt(0)")
    emit(mults(0))
    a(f"s_mov_b32 s{S_I}, 7")
    a(f"v_add_u32 v{V_AD}, {7*128}, v{V_AD}")
    a(f"v_add_u32 v{V_OH}, {7*128}, v{V_OH}")
    a.label("L2_more")
    a(f"s_cmp_ge_u32 s{S_I}, s{S_NB}")
    a("s_cbranch_scc1 L2_aggdone")
    emit(addr_reads(3, 0))
    a("s_waitcnt lgkmcnt(0)")
    for g in fire(0, 3, 0): emit(g)
    a("s_waitcnt vmcnt(0)")
    emit(loads(0, 0, 0))
    a("s_waitcnt lgkmcnt(0)")
    emit(mults(0))
    a(f"s_add_u32 s{S_I}, s{S_I}, 1")
    a(f"v_add_u32 v{V_AD}, 128, v{V_AD}")
    a(f"v_add_u32 v{V_OH}, 128, v{V_OH}")
    a("s_branch L2_more")
    a.label("L2_aggdone")
    a(f"s_max_u32 s41, s{S_C(0)}, s{S_C(1)}")
    for p in range(2, NPROD): a(f"s_max_u32 s41, s41, s{S_C(p)}")
    a("s_cmp_le_u32 s41, 64")
    a("s_cbranch_scc1 L2_aggend")
    for p in range(NPROD):
        a(f"s_min_u32 s41, s{S_C(p)}, 64")
        a(f"s_sub_u32 s{S_C(p)}, s{S_C(p)}, s41")
        a(f"s_add_u32 s{S_S(p)}, s{S_S(p)}, 256")
    emit(seg_scalars(False))
    a("s_waitcnt vmcnt(0)")
    emit([f"v_add_u32 v{U+6}, 1, v0", f"v_add_u32 v{U+7}, s{S_LIST}, v{V_L4}"])
    for p in range(NPROD): emit(seg_load(p))
    emit([f"v_lshl_add_u32 v{U+8}, s{S_NB}, 2, v{U+7}", f"v_mov_b32 v{U+9}, 0x7fffff0f", f"ds_write_b32 v{U+8}, v{U+9}"])
    a("s_waitcnt vmcnt(0)")
    for p in range(NPROD): emit(seg_store(p))
    list_done()
    a(f"s_mov_b32 s{S_I}, 0")
    a("s_branch L2_more")
    a.label("L2_aggend")
    stamp()
    for s in range(4):
        for c in range(4): a(f"v_cvt_pk_bf16_f32 v{GV(s)+c}, v{AG(2*s)+2*c}, v{AG(2*s)+2*c+1}")
        a(f"ds_write_b128 v{3+s}, {vr(GV(s),4)}")
    a("s_waitcnt vmcnt(0)")
    emit(sum(merge, []))
    a("s_waitcnt lgkmcnt(0)")
    a("s_barrier")
    BA = lambda b, ks: 96 + (b * 4 + ks) * 4
    for b in range(3):
        for ks in range(4): a(f"ds_read_b128 {ar(BO(b,ks),4)}, v{V_OR} offset:{ks*LIST_B + b*1024}")
        for ks in range(4): a(f"ds_read_b128 {vr(BA(b,ks),4)}, v{V_BA+b} offset:{ks*1024}")
    stamp()
    def finish(b):
        out = [f"v_fmac_f32 v{FD(b,0)+i}, v{FO(b,0)+i}, v{LD(b)}" for i in range(8)]
        out += [f"v_cvt_pk_bf16_f32 v{PK(b)+c}, v{FD(b,0)+2*c}, v{FD(b,0)+2*c+1}" for c in range(4)]
        out += [f"buffer_store_dwordx4 {vr(PK(b),4)}, v{V_ROW(b)}, s[20:23], 0 offen{ST2}"]
        return out
    fz = []
    for b in range(3):
        pj = [f"s_waitcnt lgkmcnt({min(15, 20-8*b)})", f"{MF} {vr(LD(b),4)}, {vr(SEL,4)}, {ar(BO(b,0),4)}, 0"]
        pj += [f"{MF} {vr(FO(b,hf),4)}, {ar(AM(0,hf,ks),4)}, {ar(BO(b,ks),4)}, {'0' if ks==0 else vr(FO(b,hf),4)}" for hf in range(2) for ks in range(4)]
        pj += [f"s_waitcnt lgkmcnt({min(15, 16-8*b)})"]
        pj += [f"{MF} {vr(FD(b,hf),4)}, {ar(AM(1,hf,ks),4)}, {vr(BA(b,ks),4)}, {vr(FD(b,hf),4)}" for hf in range(2) for ks in range(4)]
        for i, x in enumerate(pj):
            a(x)
            if i == 11: a(f"v_rcp_f32 v{LD(b)}, v{LD(b)}")
            elif i >= 3:
                for _ in range(2):
                    if fz: a(fz.pop(0))
        assert not fz
        fz = finish(b)
    stamp()
    emit(fz)
    stamp()
    a(f"s_or_b32 s41, s2, s{S_W}")
    a("s_cbranch_scc1 L2_notag")
    a(f"s_mov_b32 s41, {EPO_OFF}")
    a("s_mov_b64 exec, 1")
    a("buffer_store_dword v2, off, s[12:15], s41 sc1")
    a("s_mov_b64 exec, -1")
    a.label("L2_notag")
    if stamps:
        a("s_waitcnt vmcnt(0)")
        stamp()
        assert nst[0] <= 10
        a("s_memrealtime s[98:99]")
        a("s_waitcnt lgkmcnt(0)")
        a(f"s_lshl_b32 s40, s{S_TILE}, 1")
        a(f"s_add_u32 s40, s40, s{S_SPLIT}")
        a("s_lshl_b32 s40, s40, 2")
        a(f"s_add_u32 s40, s40, s{S_W}")
        a("s_lshl_b32 s40, s40, 6")
        srd(a, 8, 4, 1 << 20, ST_OFF)
        a("s_mov_b64 exec, 1")
        for i, r in enumerate([96, 98] + [64 + 2 * k for k in range(nst[0])]):
            a(f"v_mov_b32 v1, s{r}")
            a(f"buffer_store_dword v1, off, s[8:11], s40 offset:{4*i}")
    a.label("L2_end")
    a("s_endpgm")
    gen_helper(a, S_TAG, WS_BYTES)
def desc_k2(a):
    kernel_desc(a, NAME2, 512, 256, 102)
K2_LAUNCH = f"; @launch grid=({NWG},1,1) block=(256,1,1) lds={LDS2}"
```
